```python
import torch

def _softmax(x, axis=-1):
    return torch.softmax(x, dim=axis)
def _gelu(x):
    return torch.nn.functional.gelu(x, approximate="tanh")
def _silu(x):
    return torch.nn.functional.silu(x)
def _sigmoid(x):
    return torch.sigmoid(x)
def _layernorm(x, axis=-1, eps=1e-5):
    m = x.mean(dim=axis, keepdim=True)
    v = x.var(dim=axis, keepdim=True, unbiased=False)
    return (x - m) / torch.sqrt(v + eps)
def _scatter_add(tgt, idx, src, axis=0):
    return tgt.clone().index_add_(axis, idx, src)
def _segment_sum(src, seg, n):
    out = torch.zeros((n,) + src.shape[1:], dtype=src.dtype)
    return out.index_add_(0, seg, src)
def _pad(x, pw):
    flat = tuple(v for pair in reversed(pw) for v in pair)
    return torch.nn.functional.pad(x, flat)

kernel_name = 'sequential_preLN__spectral_gfnet__glu_gated_geglu__prompt'

def setup_inputs():

    _w = (lambda a: (lambda t: t.to(torch.bfloat16) if t.is_floating_point() else t)(torch.as_tensor(a)))
    def _A_setup():
        B, S, D = 1, 2048, 512
        Df = D // 2 + 1
        return {
            "x": _w((lambda *s: torch.randn(*s, dtype=torch.bfloat16) * 0.05)(B, S, D)),
            "w_r": _w((lambda *s: torch.randn(*s, dtype=torch.bfloat16) * 0.4)(S, Df) * 0.02),
            "w_i": _w((lambda *s: torch.randn(*s, dtype=torch.bfloat16) * 0.4)(S, Df) * 0.02),
        }
    _A_in = _A_setup()

    def _B_setup():
        B, S, Dm, Df = 1, 2048, 512, 1376
        return {
            "x": _w((lambda *s: torch.randn(*s, dtype=torch.bfloat16) * 0.05)(B, S, Dm)),
            "w_gate": _w((lambda *s: torch.randn(*s, dtype=torch.bfloat16) * 0.4)(Dm, Df) * (Dm ** -0.5)),
            "w_up": _w((lambda *s: torch.randn(*s, dtype=torch.bfloat16) * 0.4)(Dm, Df) * (Dm ** -0.5)),
            "w_down": _w((lambda *s: torch.randn(*s, dtype=torch.bfloat16) * 0.4)(Df, Dm) * (Df ** -0.5)),
        }
    _B_in = _B_setup()

    return {
        "A_x": _A_in["x"],
        "A_w_r": _A_in["w_r"],
        "A_w_i": _A_in["w_i"],
        "B_x": _B_in["x"],
        "B_w_gate": _B_in["w_gate"],
        "B_w_up": _B_in["w_up"],
        "B_w_down": _B_in["w_down"],
    }

def reference(A_x, A_w_r, A_w_i, B_x, B_w_gate, B_w_up, B_w_down):
    def _A_ref(x, w_r, w_i):
        B, S, D = x.shape
        X = (lambda x, axes=(-2,-1): torch.fft.rfft2(x.float(), dim=axes))(x, axes=(-2, -1))
        W = w_r + 1j * w_i
        X = X * W
        y = (lambda x, s, axes=(-2,-1): torch.fft.irfft2(x, s=s, dim=axes).to(torch.bfloat16))(X, (S, D), axes=(-2, -1))
        return y

    def _B_ref(x, w_gate, w_up, w_down):
        g = torch.einsum("bsd,df->bsf", x, w_gate)
        u = torch.einsum("bsd,df->bsf", x, w_up)
        h = _gelu(g) * u
        return torch.einsum("bsf,fd->bsd", h, w_down)

    x = A_x
    h = x + _A_ref(_layernorm(x, axis=-1), A_w_r, A_w_i)
    h2 = h + _B_ref(_layernorm(h, axis=-1), B_w_gate, B_w_up, B_w_down)
    return h2
```

```python
import re

TRANS = ("v_exp_f32", "v_log_f32", "v_rcp_f32", "v_rsq_f32", "v_sqrt_f32", "v_sin_f32", "v_cos_f32",
         "v_rcp_iflag_f32", "v_exp_f16", "v_rcp_f16")

_reg_re = re.compile(r"^(-|abs\()?\s*([vsa])(?:(\d+)|\[(\d+):(\d+)\])\)?$")


def regs_of(op):
    op = op.strip()
    if op.startswith("-"):
        op = op[1:]
    if op.startswith("|") and op.endswith("|"):
        op = op[1:-1]
    if op.startswith("abs(") and op.endswith(")"):
        op = op[4:-1]
    if op in ("vcc", "vcc_lo", "vcc_hi"):
        return {("vcc", 0)}
    if op in ("exec", "exec_lo", "exec_hi"):
        return {("exec", 0)}
    if op == "m0":
        return {("m0", 0)}
    m = re.match(r"^([vsa])(\d+)$", op)
    if m:
        return {(m.group(1), int(m.group(2)))}
    m = re.match(r"^([vsa])\[(\d+):(\d+)\]$", op)
    if m:
        return {(m.group(1), i) for i in range(int(m.group(2)), int(m.group(3)) + 1)}
    return set()


def split_ops(s):
    out, depth, cur = [], 0, ""
    for ch in s:
        if ch in "[(":
            depth += 1
        if ch in "])":
            depth -= 1
        if ch == "," and depth == 0:
            out.append(cur.strip())
            cur = ""
        else:
            cur += ch
    if cur.strip():
        out.append(cur.strip())
    return out


class Ins:
    def __init__(self, text):
        self.text = text
        t = text.split(";")[0].strip()
        parts = t.split(None, 1)
        self.mn = parts[0]
        rest = parts[1] if len(parts) > 1 else ""
        ops = split_ops(rest)
        self.mods = ""
        if ops:
            lp = ops[-1].split(None, 1)
            if len(lp) > 1 and not ops[-1].startswith("hwreg") and not ops[-1].startswith("vmcnt") \
                    and not ops[-1].startswith("lgkmcnt"):
                ops[-1] = lp[0]
                self.mods = lp[1]
        self.ops = ops
        mn = self.mn
        self.is_mfma = mn.startswith("v_mfma")
        self.is_valu = mn.startswith("v_") and not self.is_mfma
        self.is_trans = any(mn.startswith(x) for x in TRANS)
        self.is_dpp = "_dpp" in mn or "row_" in self.mods or "quad_perm" in self.mods
        self.is_vmem = mn.startswith(("buffer_", "global_", "flat_"))
        self.is_ds = mn.startswith("ds_")
        self.is_salu = mn.startswith("s_")
        self.is_lds_dma = self.is_vmem and (re.search(r"\blds\b", self.mods) is not None or "load_lds" in mn)
        self.w = set()
        self.r = set()
        self.srcc = set()
        self.srcab = set()
        self.store_data = set()
        self.states = 1
        R = [regs_of(o) for o in ops]
        if mn == "s_nop":
            self.states = int(ops[0], 0) + 1
        if self.is_mfma:
            self.w = R[0]
            self.srcab = R[1] | R[2]
            self.srcc = R[3]
            self.r = self.srcab | self.srcc
            if "32x32x16" in mn or "32x32x8" in mn:
                self.passes = 8
            elif "16x16x32" in mn or "16x16x16" in mn:
                self.passes = 4
            elif "4x4x4" in mn:
                self.passes = 2
            else:
                raise ValueError("unknown mfma " + mn)
        elif self.is_valu:
            if mn.startswith(("v_swap", "v_permlane16_swap", "v_permlane32_swap")):
                self.w = R[0] | R[1]
                self.r = R[0] | R[1]
            elif mn.startswith("v_cmpx"):
                self.w = R[0] | {("exec", 0)}
                self.r = set().union(*R[1:])
            elif mn.startswith(("v_add_co", "v_sub_co", "v_subrev_co", "v_addc_co", "v_subb_co", "v_mad_u64_u32",
                                "v_div_scale")):
                self.w = R[0] | R[1]
                self.r = set().union(*R[2:])
            elif mn == "v_nop":
                pass
            else:
                self.w = R[0]
                self.r = set().union(*R[1:]) if len(R) > 1 else set()
                if mn.startswith(("v_fmac", "v_mac", "v_pk_fmac", "v_dot2c", "v_writelane")) or self.is_dpp \
                        or "d16" in mn or "UNUSED_PRESERVE" in self.mods:
                    self.r |= R[0]
                if mn.startswith("v_cndmask") and len(ops) == 3:
                    self.r |= {("vcc", 0)}
        elif self.is_vmem:
            if mn in ("buffer_wbl2", "buffer_inv"):
                pass
            elif self.is_lds_dma:
                self.r = set().union(*R) | {("m0", 0)}
            elif mn.startswith("buffer_load"):
                self.w = R[0]
                self.r = set().union(*R[1:])
                if "d16" in mn:
                    self.r |= R[0]
            elif mn.startswith(("buffer_store", "buffer_atomic")):
                self.r = set().union(*R)
                self.store_data = R[0]
                if "atomic" in mn and "sc0" in self.mods:
                    self.w = R[0]
            elif mn.startswith(("global_load", "flat_load")):
                self.w = R[0]
                self.r = set().union(*R[1:])
            elif mn.startswith(("global_store", "flat_store")):
                self.r = set().union(*R)
                self.store_data = R[1]
            elif mn.startswith("global_atomic"):
                if "sc0" in self.mods:
                    self.w = R[0]
                    self.r = set().union(*R[1:])
                else:
                    self.r = set().union(*R)
            else:
                raise ValueError("unknown vmem " + mn)
        elif self.is_ds:
            if mn.startswith(("ds_read", "ds_bpermute", "ds_permute", "ds_swizzle")) or "_rtn" in mn:
                self.w = R[0]
                self.r = set().union(*R[1:])
            else:
                self.r = set().union(*R)
        elif self.is_salu:
            if mn.startswith(("s_cmp", "s_cbranch", "s_branch", "s_waitcnt", "s_barrier", "s_nop", "s_endpgm",
                              "s_sleep", "s_setprio", "s_bitcmp", "s_setreg", "s_sethalt")):
                self.r = set().union(*R) if R else set()
            else:
                self.w = R[0] if R else set()
                self.r = set().union(*R[1:]) if len(R) > 1 else set()
                if "saveexec" in mn:
                    self.w |= {("exec", 0)}
        self.wide_store = self.store_data and ("x3" in mn or "x4" in mn)

    def is_branch(self):
        return self.mn.startswith(("s_cbranch", "s_branch"))


def vg(s):
    return {x for x in s if x[0] in "va"}


def sg(s):
    return {x for x in s if x[0] in ("s", "vcc")}


XDL_RAW = {2: 5, 4: 8, 8: 12, 16: 20}
XDL_COVL = {2: 4, 4: 6, 8: 10, 16: 18}
XDL_WAR = {2: 1, 4: 3, 8: 7, 16: 15}


def need(p, c):
    n = 0
    if p.is_valu:
        pv = vg(p.w)
        ps = sg(p.w)
        if c.is_mfma and pv & c.r:
            n = max(n, 2)
        if c.is_valu and c.is_dpp and pv & c.r:
            n = max(n, 2)
        if c.is_valu and c.mn.startswith(("v_readlane", "v_readfirstlane")) and pv & c.r:
            n = max(n, 1)
        if c.is_valu and c.mn.startswith("v_permlane") and pv & c.r:
            n = max(n, 2)
        if p.is_trans and c.is_valu and pv & c.r:
            n = max(n, 1)
        if p.is_trans and c.is_mfma and pv & c.r:
            n = max(n, 2)
        if ("sdwa" in p.mn or ("op_sel" in p.mods and not p.mn.startswith("v_pk_"))) and (c.is_valu or c.is_mfma) and pv & (c.r | c.w):
            n = max(n, 1)
        if ps:
            if c.is_valu and ps & c.r:
                n = max(n, 2)
                if c.mn.startswith(("v_readlane", "v_writelane", "v_div_fmas")):
                    n = max(n, 4)
            if c.is_vmem and ps & c.r:
                n = max(n, 5)
            if c.is_salu and ps & c.r:
                n = max(n, 1)
        if ("exec", 0) in p.w:
            if c.is_dpp:
                n = max(n, 5)
            if c.is_mfma:
                n = max(n, 4)
            if c.is_valu and c.mn.startswith(("v_readlane", "v_readfirstlane", "v_writelane", "v_permlane")):
                n = max(n, 4)
    if (p.is_vmem or p.is_ds) and c.is_valu and c.is_dpp and vg(p.w) & c.r:
        n = max(n, 2)
    if p.is_salu and ("m0", 0) in p.w and (c.is_lds_dma or "addtid" in c.mn):
        n = max(n, 1)
    if p.is_vmem and p.wide_store:
        if vg(c.w) & p.store_data:
            n = max(n, 2 if (c.is_valu or c.is_mfma) else 1)
    if p.is_mfma:
        d = p.w
        if c.is_mfma:
            if c.srcab & d:
                n = max(n, XDL_RAW[p.passes])
            if c.srcc & d:
                if c.srcc == d and c.passes == p.passes:
                    n = max(n, 2 if p.passes == 2 else 0)
                else:
                    n = max(n, XDL_COVL[p.passes])
            elif c.w & d:
                n = max(n, XDL_COVL[p.passes])
        elif c.is_valu or c.is_vmem or c.is_ds:
            if (c.r | c.w) & d:
                n = max(n, XDL_RAW[p.passes])
        if c.is_valu and vg(c.w) & p.srcc:
            n = max(n, XDL_WAR[p.passes])
        if (c.is_vmem or c.is_ds) and vg(c.w) & p.srcc:
            n = max(n, XDL_WAR[p.passes])
    return n


WINDOW = 24


class Asm:
    def __init__(self):
        self.items = []

    def __call__(self, text):
        for line in text.strip().split("\n"):
            line = line.strip()
            if not line:
                continue
            if line.startswith(";"):
                self.items.append(("t", "    " + line))
            elif line.endswith(":"):
                self.items.append(("l", line[:-1]))
            elif line.startswith("."):
                self.items.append(("t", line))
            else:
                self.items.append(("i", Ins(line)))

    def label(self, name):
        self.items.append(("l", name))

    def raw(self, text):
        self.items.append(("t", text))

    @staticmethod
    def _short(hist, c):
        miss = 0
        dist = 0
        for p in reversed(hist):
            n = need(p, c)
            if n > dist:
                miss = max(miss, n - dist)
            dist += p.states
            if dist > WINDOW:
                break
        return miss

    def finalize(self):
        out = []
        hist = []
        for kind, x in self.items:
            if kind == "i":
                miss = self._short(hist, x)
                while miss > 0:
                    k = min(miss, 16)
                    nop = Ins("s_nop %d" % (k - 1))
                    out.append(("i", nop))
                    hist.append(nop)
                    miss -= k
                out.append((kind, x))
                hist.append(x)
                if x.mn in ("s_endpgm", "s_branch"):
                    hist = []
            else:
                out.append((kind, x))
        changed = True
        while changed:
            changed = False
            labels = {x: i for i, (k, x) in enumerate(out) if k == "l"}
            for i, (k, x) in enumerate(out):
                if k != "i" or not x.is_branch():
                    continue
                tgt = x.ops[0]
                if tgt not in labels:
                    raise ValueError("unknown label " + tgt)
                hist = [y for kk, y in out[max(0, i - 60):i + 1] if kk == "i"]
                h = list(hist)
                dist = 0
                worst = 0
                for kk, y in out[labels[tgt]:]:
                    if kk != "i":
                        continue
                    d = dist
                    for p in reversed(hist):
                        n = need(p, y)
                        if n > d:
                            worst = max(worst, n - d)
                        d += p.states
                        if d > WINDOW:
                            break
                    dist += y.states
                    if dist > WINDOW or y.mn in ("s_endpgm", "s_branch"):
                        break
                if worst > 0:
                    out.insert(i, ("i", Ins("s_nop %d" % (min(worst, 16) - 1))))
                    changed = True
                    break
        lines = []
        for k, x in out:
            if k == "i":
                lines.append("    " + x.text)
            elif k == "l":
                lines.append(x + ":")
            else:
                lines.append(x)
        return "\n".join(lines) + "\n"


def f2u(x):
    import struct
    return struct.unpack("<I", struct.pack("<f", x))[0]


def fhex(x):
    return "0x%08x" % f2u(x)
```

```python
import sys, math
sys.path.insert(0, "work")
from asmlib import Asm, fhex
from gen import *

HH_BYTES = 128 * 43 * 1024
GC = math.sqrt(2.0 / math.pi)
LOG2E = math.log2(math.e)
K0 = -2.0 * GC * LOG2E
K1 = K0 * 0.044715


def ar(a, n=1):
    return "a%d" % a if n == 1 else "a[%d:%d]" % (a, a + n - 1)


def interleave(A, main, side, start=0, every=1):
    si = 0
    for i, m in enumerate(main):
        A(m)
        if i >= start and (i - start) % every == 0 and si < len(side):
            s = side[si]
            si += 1
            for x in (s if isinstance(s, list) else [s]):
                A(x)
    while si < len(side):
        s = side[si]
        si += 1
        for x in (s if isinstance(s, list) else [s]):
            A(x)


def gen_D():
    A = Asm()
    name = "kd_kernel"
    kernel_header(A, name)
    R = RA(1)
    lane, g, j = R.get(), R.get(), R.get()
    t0, t1, t2, t3 = R.get(), R.get(), R.get(), R.get()
    va, vw = R.get(), R.get()
    ra = R.get()
    rw = [R.get(3), R.get(3)]
    so = R.get()
    Fx = [R.get(16, 4), R.get(16, 4)]
    Fw = [R.get(24, 4), R.get(24, 4)]
    acc = R.get(96, 4)
    tmp = R.get(16, 4)
    WB = 65536
    A("s_cmp_ge_u32 s2, 256")
    A("s_cbranch_scc1 LD_end")
    A("s_and_b32 s30, s2, 7")
    A("s_lshr_b32 s31, s2, 3")
    A("s_and_b32 s32, s30, 1")
    A("s_lshl_b32 s32, s32, 3")
    A("s_and_b32 s33, s31, 7")
    A("s_add_u32 s32, s32, s33")
    A("s_lshr_b32 s33, s30, 1")
    A("s_lshl_b32 s33, s33, 2")
    A("s_lshr_b32 s34, s31, 3")
    A("s_add_u32 s33, s33, s34")
    A("s_cmp_ge_u32 s33, 15")
    A("s_cbranch_scc1 LD_end")
    A("s_load_dwordx4 s[4:7], s[0:1], 32")
    A("s_load_dwordx2 s[8:9], s[0:1], 72")
    A(f"v_and_b32 v{lane}, 63, v0")
    A(f"v_lshrrev_b32 v{t0}, 6, v0")
    A(f"v_lshrrev_b32 v{g}, 4, v{lane}")
    A(f"v_and_b32 v{j}, 15, v{lane}")
    A(f"v_readfirstlane_b32 s35, v{t0}")
    A(f"v_lshlrev_b32 v{va}, 4, v{lane}")
    A(f"v_lshrrev_b32 v{t0}, 2, v{lane}")
    A(f"v_mul_u32_u24 v{vw}, 2752, v{t0}")
    A(f"v_lshrrev_b32 v{t1}, 4, v{lane}")
    A(f"v_and_b32 v{t1}, 2, v{t1}")
    A(f"v_and_b32 v{t2}, 3, v{lane}")
    A(f"v_xor_b32 v{t1}, v{t1}, v{t2}")
    A(f"v_lshl_add_u32 v{vw}, v{t1}, 4, v{vw}")
    A("s_lshl_b32 s36, s32, 17")
    A("s_lshl_b32 s37, s35, 12")
    A("s_add_u32 s36, s36, s37")
    A(f"s_mul_i32 s38, s35, {16*2752}")
    A("s_mul_i32 s39, s33, 192")
    A("s_add_u32 s38, s38, s39")
    A("s_lshl_b32 s40, s35, 10")
    A(f"s_add_u32 s40, s40, {WB}")
    A("s_waitcnt lgkmcnt(0)")
    srd(A, 12, 8, 2 * MB, OFF_LN)
    srd(A, 16, 4, WG_BYTES)
    srd(A, 20, 6, WG_BYTES)
    srd(A, 24, 8, HH_BYTES, OFF_HH)

    def dma(kc):
        st = kc % 4
        out = []
        out.append([f"s_add_u32 m0, s37, {st*16384}", f"s_add_u32 s41, s36, {kc*16384}",
                    f"buffer_load_dwordx4 v{va}, s[12:15], s41 offen lds"])
        for i in range(1, 4):
            out.append([f"buffer_load_dwordx4 v{va}, s[12:15], s41 offen offset:{1024*i} lds"])
        first = True
        for mat in range(2):
            for cp in range(3):
                x = []
                if first:
                    x.append(f"s_add_u32 s42, s38, {kc*64*2752}")
                    first = False
                x.append(f"s_add_u32 m0, s40, {st*24576 + mat*12288 + cp*4096 - cp*64}")
                x.append(f"buffer_load_dwordx4 v{vw}, s[{16+4*mat}:{19+4*mat}], s42 offen offset:{cp*64} lds")
                out.append(x)
        return out

    for kc in range(4):
        for x in dma(kc):
            for y in x:
                A(y)
    A("s_lshr_b32 s43, s35, 1")
    A("s_and_b32 s44, s35, 1")
    A("s_lshl_b32 s45, s43, 13")
    A(f"v_lshl_add_u32 v{ra}, v{lane}, 4, s45")
    A(f"v_lshrrev_b32 v{t0}, 1, v{g}")
    A(f"v_lshlrev_b32 v{t0}, 10, v{t0}")
    A(f"v_and_b32 v{t1}, 1, v{g}")
    A(f"v_mul_u32_u24 v{t1}, {512+32}, v{t1}")
    A(f"v_add_u32 v{t0}, v{t0}, v{t1}")
    A(f"v_lshrrev_b32 v{t1}, 2, v{j}")
    A(f"v_lshl_add_u32 v{t0}, v{t1}, 6, v{t0}")
    A(f"v_and_b32 v{t1}, 3, v{j}")
    A(f"v_lshl_add_u32 v{t0}, v{t1}, 3, v{t0}")
    A("s_mul_i32 s46, s44, 3")
    for c in range(3):
        A(f"s_add_u32 s47, s46, {c}")
        A("s_and_b32 s48, s47, 1")
        A("s_lshl_b32 s48, s48, 5")
        A("s_lshr_b32 s47, s47, 1")
        A("s_lshl_b32 s47, s47, 12")
        A(f"s_add_u32 s47, s47, {WB}")
        A(f"v_xor_b32 v{t1}, s48, v{t0}")
        A(f"v_add_u32 v{rw[0]+c}, s47, v{t1}")
        A(f"v_add_u32 v{rw[1]+c}, {2*24576}, v{rw[0]+c}")
    for i in range(96):
        A(f"v_mov_b32 v{acc+i}, 0")

    def reads(kc, ks, buf):
        st = kc % 4
        out = []
        wl = []
        for mat in range(2):
            for c in range(3):
                for e4 in range(2):
                    off = (st % 2) * 24576 + mat * 12288 + ks * 2048 + e4 * 256
                    wl.append(f"ds_read_b64_tr_b16 {vr(Fw[buf]+(mat*3+c)*4+2*e4,2)}, v{rw[st//2]+c} offset:{off}")
        xl = [f"ds_read_b128 {vr(Fx[buf]+4*m,4)}, v{ra} offset:{st*16384 + m*2048 + ks*1024}" for m in range(4)]
        return xl + wl

    def mfmas(buf):
        out = []
        for t in range(6):
            for m in range(4):
                a = acc + (t * 4 + m) * 4
                out.append(f"v_mfma_f32_16x16x32_bf16 {vr(a,4)}, {vr(Fw[buf]+4*t,4)}, {vr(Fx[buf]+4*m,4)}, {vr(a,4)}")
        return out

    A("s_waitcnt vmcnt(30)")
    A("s_barrier")
    for x in reads(0, 0, 0):
        A(x)
    for kc in range(8):
        A("s_waitcnt lgkmcnt(0)")
        interleave(A, mfmas(0), reads(kc, 1, 1))
        A("s_waitcnt lgkmcnt(0)")
        side = []
        if kc < 7:
            n = 10 * (min(kc + 3, 7) - (kc + 1))
            A(f"s_waitcnt vmcnt({n})")
            A("s_barrier")
            side = reads(kc + 1, 0, 0)
            if kc + 4 < 8:
                d = dma(kc + 4)
                side = side + d
        interleave(A, mfmas(1), side)
    A(f"v_lshlrev_b32 v{so}, 4, v{lane}")
    A("s_lshl_b32 s47, s32, 3")
    A("s_lshl_b32 s48, s43, 2")
    A("s_add_u32 s47, s47, s48")
    A(f"s_mul_i32 s47, s47, {43*1024}")
    A("s_mul_i32 s48, s33, 6")
    A("s_add_u32 s48, s48, s46")
    A(f"s_mov_b32 s52, {fhex(K1)}")
    A(f"v_mov_b32 v{t3}, {fhex(K0)}")
    for c in range(3):
        A(f"s_add_u32 s49, s48, {c}")
        A("s_cmp_ge_u32 s49, 86")
        A("s_cbranch_scc1 LD_end")
        A("s_and_b32 s50, s49, 1")
        A("s_lshl_b32 s50, s50, 3")
        A("s_lshr_b32 s49, s49, 1")
        A("s_lshl_b32 s49, s49, 10")
        A("s_add_u32 s49, s49, s50")
        A("s_add_u32 s49, s49, s47")
        for m in range(4):
            gA = acc + (c * 4 + m) * 4
            uA = acc + ((3 + c) * 4 + m) * 4
            q = tmp + (m % 2) * 8
            for r in range(4):
                A(f"v_mul_f32 v{q+r}, v{gA+r}, v{gA+r}")
            for r in range(4):
                A(f"v_fma_f32 v{q+r}, v{q+r}, s52, v{t3}")
            for r in range(4):
                A(f"v_mul_f32 v{q+r}, v{q+r}, v{gA+r}")
            for r in range(4):
                A(f"v_exp_f32 v{q+r}, v{q+r}")
            for r in range(4):
                A(f"v_mul_f32 v{uA+r}, v{uA+r}, v{gA+r}")
            for r in range(4):
                A(f"v_add_f32 v{q+r}, 1.0, v{q+r}")
            for r in range(4):
                A(f"v_rcp_f32 v{q+r}, v{q+r}")
            for r in range(4):
                A(f"v_mul_f32 v{q+r}, v{q+r}, v{uA+r}")
            A(f"v_cvt_pk_bf16_f32 v{q+4}, v{q}, v{q+1}")
            A(f"v_cvt_pk_bf16_f32 v{q+5}, v{q+2}, v{q+3}")
            A(f"buffer_store_dwordx2 {vr(q+4,2)}, v{so}, s[24:27], s49 offen")
            if m < 3:
                A(f"s_add_u32 s49, s49, {43*1024}")
    A.label("LD_end")
    A("s_endpgm")
    return name, A.finalize(), R.hi, (256, 256, 163840)


def gen_E():
    A = Asm()
    name = "ke_kernel"
    kernel_header(A, name)
    R = RA(1)
    lane, g, j = R.get(), R.get(), R.get()
    t0, t1, t2, t3 = R.get(), R.get(), R.get(), R.get()
    vh, vw, vo, lw, lr = R.get(), R.get(), R.get(), R.get(), R.get()
    hres = R.get(8, 4)
    Wl = R.get(176, 4)
    Fw = [R.get(16, 4), R.get(16, 4)]
    ACC = 176
    A("s_cmp_ge_u32 s2, 256")
    A("s_cbranch_scc1 LE_end")
    A("s_load_dwordx4 s[4:7], s[0:1], 48")
    A("s_load_dwordx2 s[8:9], s[0:1], 72")
    A(f"v_and_b32 v{lane}, 63, v0")
    A(f"v_lshrrev_b32 v{t0}, 6, v0")
    A(f"v_lshrrev_b32 v{g}, 4, v{lane}")
    A(f"v_and_b32 v{j}, 15, v{lane}")
    A(f"v_readfirstlane_b32 s35, v{t0}")
    A("s_and_b32 s30, s2, 7")
    A("s_lshl_b32 s30, s30, 2")
    A("s_lshr_b32 s31, s2, 3")
    A("s_and_b32 s31, s31, 3")
    A("s_add_u32 s30, s30, s31")
    A("s_lshr_b32 s31, s2, 5")
    A(f"v_lshlrev_b32 v{vh}, 4, v0")
    A(f"v_lshlrev_b32 v{vw}, 15, v{t0}")
    A(f"v_lshl_add_u32 v{vw}, v{g}, 12, v{vw}")
    A(f"v_lshl_add_u32 v{vw}, v{j}, 3, v{vw}")
    A("s_lshl_b32 s36, s31, 7")
    A("s_add_u32 s37, s36, 16384")
    for m in range(4):
        A(f"s_add_u32 s38, s35, {m}")
        A("s_and_b32 s38, s38, 3")
        A("s_lshl_b32 s39, s30, 2")
        A("s_add_u32 s38, s38, s39")
        A(f"s_mul_i32 s{40+m}, s38, {43*1024}")
    A("s_mov_b32 s44, 0x05040100")
    A("s_mov_b32 s45, 0x07060302")
    A("s_waitcnt lgkmcnt(0)")
    srd(A, 12, 8, HH_BYTES, OFF_HH)
    srd(A, 16, 4, WG_BYTES)
    srd(A, 20, 8, 2 * MB, OFF_H)
    srd(A, 24, 6, 2 * MB)

    def loads(i):
        out = []
        for e in range(8):
            out.append(f"buffer_load_dwordx2 {vr(Wl+16*i+2*e,2)}, v{vw}, s[16:19], s{36+e//4} offen offset:{1024*(e%4)}")
        for m in range(4):
            out.append(f"buffer_load_dwordx4 {ar(16*i+4*m,4)}, v{vh}, s[12:15], s{40+m} offen")
        out.append(f"v_add_u32 v{vw}, {4*32768}, v{vw}")
        out.append(f"v_add_u32 v{vh}, 4096, v{vh}")
        return out

    def perms(i, buf):
        out = []
        for c in range(4):
            for q in range(4):
                out.append(f"v_perm_b32 v{Fw[buf]+4*c+q}, v{Wl+16*i+2*(2*q+1)+c//2}, v{Wl+16*i+2*(2*q)+c//2}, s{44+c%2}")
        return out

    def mfmas(i, buf):
        out = []
        for c in range(4):
            for m in range(4):
                a = ACC + (m * 4 + c) * 4
                cc = "0" if i == 0 else ar(a, 4)
                out.append(f"v_mfma_f32_16x16x32_bf16 {ar(a,4)}, {vr(Fw[buf]+4*c,4)}, {ar(16*i+4*m,4)}, {cc}")
        return out

    DEPTH = 5
    for i in range(DEPTH):
        for x in loads(i):
            A(x)
    A(f"v_and_b32 v{t1}, 7, v{j}")
    A(f"v_lshlrev_b32 v{vo}, 18, v{t1}")
    A(f"v_lshrrev_b32 v{t1}, 3, v{j}")
    A(f"v_lshl_add_u32 v{vo}, v{t1}, 10, v{vo}")
    A(f"v_lshl_add_u32 v{vo}, v{g}, 5, v{vo}")
    A("s_lshl_b32 s46, s30, 3")
    A("s_lshl_b32 s47, s35, 1")
    A("s_add_u32 s46, s46, s47")
    A("s_lshl_b32 s46, s46, 10")
    A("s_add_u32 s46, s46, s36")
    for i in range(10):
        nxt = i + DEPTH
        issued = min(nxt, 10)
        A(f"s_waitcnt vmcnt({12*(issued-1-i)})")
        for x in perms(i, i % 2):
            A(x)
        side = loads(nxt) if nxt < 10 else []
        interleave(A, mfmas(i, i % 2), side)
        if nxt == 10:
            pass
    A(f"buffer_load_dwordx4 {vr(hres,4)}, v{vo}, s[20:23], s46 offen")
    A(f"buffer_load_dwordx4 {vr(hres+4,4)}, v{vo}, s[20:23], s46 offen offset:16")
    A("s_cmp_eq_u32 s35, 3")
    A("s_cbranch_scc1 LE_red")
    for x in loads(10):
        A(x)
    A("s_waitcnt vmcnt(0)")
    for x in perms(10, 0):
        A(x)
    for x in mfmas(10, 0):
        A(x)
    A.label("LE_red")
    A(f"v_lshlrev_b32 v{lr}, 4, v{lane}")
    for m in range(1, 4):
        A(f"s_add_u32 s38, s35, {m}")
        A("s_and_b32 s38, s38, 3")
        A(f"s_mul_i32 s38, s38, {3*4096}")
        A(f"v_add_u32 v{lw}, s38, v{lr}")
        for c in range(4):
            A(f"ds_write_b128 v{lw}, {ar(ACC+(m*4+c)*4,4)} offset:{(m-1)*4096 + c*1024}")
    A(f"s_mul_i32 s38, s35, {3*4096}")
    A(f"v_add_u32 v{lr}, s38, v{lr}")
    A("s_waitcnt lgkmcnt(0)")
    A("s_barrier")
    red = Wl
    for m in range(3):
        for c in range(4):
            A(f"ds_read_b128 {vr(red+(m*4+c)*4,4)}, v{lr} offset:{m*4096 + c*1024}")
    own = Wl + 48
    for i in range(16):
        A(f"v_accvgpr_read_b32 v{own+i}, a{ACC+i}")
    for m in range(3):
        A(f"s_waitcnt lgkmcnt({4*(2-m)})")
        for i in range(16):
            A(f"v_add_f32 v{own+i}, v{own+i}, v{red+m*16+i}")
    A("s_waitcnt vmcnt(0)")
    o = Wl + 64
    for r in range(4):
        for cp in range(2):
            d = o + 2 * r + cp
            A(f"v_cvt_pk_bf16_f32 v{d}, v{own+(2*cp)*4+r}, v{own+(2*cp+1)*4+r}")
            A(f"v_lshlrev_b32 v{t0}, 16, v{d}")
            A(f"v_and_b32 v{t1}, 0xffff0000, v{d}")
            A(f"v_lshlrev_b32 v{t2}, 16, v{hres+2*r+cp}")
            A(f"v_and_b32 v{t3}, 0xffff0000, v{hres+2*r+cp}")
            A(f"v_add_f32 v{t0}, v{t0}, v{t2}")
            A(f"v_add_f32 v{t1}, v{t1}, v{t3}")
            A(f"v_cvt_pk_bf16_f32 v{d}, v{t0}, v{t1}")
    A(f"buffer_store_dwordx4 {vr(o,4)}, v{vo}, s[24:27], s46 offen")
    A(f"buffer_store_dwordx4 {vr(o+4,4)}, v{vo}, s[24:27], s46 offen offset:16")
    A.label("LE_end")
    A("s_endpgm")
    return name, A.finalize(), R.hi, (256, 256, 49152), 240
```

```python
import sys, math
sys.path.insert(0, "work")
from asmlib import Asm, fhex

NAME = "sequential_preLN__spectral_gfnet__glu_gated_geglu__prompt"
WS_BYTES = 268435456
MB = 1 << 20
OFF_U = 0
OFF_V = 2 * MB
OFF_H = 4 * MB
OFF_LN = 6 * MB
OFF_HH = 8 * MB
W_BYTES = 2048 * 257 * 2
WG_BYTES = 512 * 1376 * 2


class RA:
    def __init__(self, start, kind="v"):
        self.n = start
        self.kind = kind
        self.hi = start

    def get(self, cnt=1, align=1):
        self.n = (self.n + align - 1) // align * align
        r = self.n
        self.n += cnt
        self.hi = max(self.hi, self.n)
        return r


def vr(a, n=1):
    return "v%d" % a if n == 1 else "v[%d:%d]" % (a, a + n - 1)


def sr(a, n=1):
    return "s%d" % a if n == 1 else "s[%d:%d]" % (a, a + n - 1)


def srd(A, d, base, nbytes, add=0):
    if add:
        A(f"s_add_u32 s{d}, s{base}, {add:#x}")
        A(f"s_addc_u32 s{d+1}, s{base+1}, 0")
    else:
        A(f"s_mov_b32 s{d}, s{base}")
        A(f"s_mov_b32 s{d+1}, s{base+1}")
    A(f"s_mov_b32 s{d+2}, {nbytes:#x}")
    A(f"s_mov_b32 s{d+3}, 0x20000")


def wave_reduce(A, v, sdst):
    A(f"v_add_f32_dpp v{v}, v{v}, v{v} quad_perm:[1,0,3,2] row_mask:0xf bank_mask:0xf")
    A(f"v_add_f32_dpp v{v}, v{v}, v{v} quad_perm:[2,3,0,1] row_mask:0xf bank_mask:0xf")
    A(f"v_add_f32_dpp v{v}, v{v}, v{v} row_half_mirror row_mask:0xf bank_mask:0xf")
    A(f"v_add_f32_dpp v{v}, v{v}, v{v} row_mirror row_mask:0xf bank_mask:0xf")
    A(f"v_add_f32_dpp v{v}, v{v}, v{v} row_bcast:15 row_mask:0xa bank_mask:0xf")
    A(f"v_add_f32_dpp v{v}, v{v}, v{v} row_bcast:31 row_mask:0xc bank_mask:0xf")
    A(f"v_readlane_b32 s{sdst}, v{v}, 63")


def layernorm8(A, xf, t0, t1, t2, stmp, outp):
    A(f"v_add_f32 v{t0}, v{xf}, v{xf+1}")
    A(f"v_add_f32 v{t1}, v{xf+2}, v{xf+3}")
    A(f"v_add_f32 v{t2}, v{xf+4}, v{xf+5}")
    A(f"v_add_f32 v{t0}, v{t0}, v{t1}")
    A(f"v_add_f32 v{t1}, v{xf+6}, v{xf+7}")
    A(f"v_add_f32 v{t2}, v{t2}, v{t1}")
    A(f"v_add_f32 v{t0}, v{t0}, v{t2}")
    wave_reduce(A, t0, stmp)
    A(f"v_mov_b32 v{t1}, {fhex(1.0/512)}")
    A(f"v_mul_f32 v{t1}, s{stmp}, v{t1}")
    A(f"v_sub_f32 v{t2}, v{xf}, v{t1}")
    A(f"v_mul_f32 v{t0}, v{t2}, v{t2}")
    for i in range(1, 8):
        A(f"v_sub_f32 v{t2}, v{xf+i}, v{t1}")
        A(f"v_fmac_f32 v{t0}, v{t2}, v{t2}")
    A(f"v_cvt_pk_bf16_f32 v{t1}, v{t1}, v{t1}")
    A(f"v_lshlrev_b32 v{t1}, 16, v{t1}")
    wave_reduce(A, t0, stmp)
    for i in range(8):
        A(f"v_sub_f32 v{xf+i}, v{xf+i}, v{t1}")
    A(f"v_mov_b32 v{t0}, {fhex(1.0/512)}")
    A(f"v_mul_f32 v{t0}, s{stmp}, v{t0}")
    A(f"v_cvt_pk_bf16_f32 v{t0}, v{t0}, v{t0}")
    A(f"v_lshlrev_b32 v{t0}, 16, v{t0}")
    A(f"v_add_f32 v{t0}, {fhex(1e-5)}, v{t0}")
    A(f"v_cvt_pk_bf16_f32 v{t0}, v{t0}, v{t0}")
    A(f"v_lshlrev_b32 v{t0}, 16, v{t0}")
    A(f"v_sqrt_f32 v{t0}, v{t0}")
    for i in range(4):
        A(f"v_cvt_pk_bf16_f32 v{outp+i}, v{xf+2*i}, v{xf+2*i+1}")
    A(f"v_cvt_pk_bf16_f32 v{t0}, v{t0}, v{t0}")
    A(f"v_lshlrev_b32 v{t0}, 16, v{t0}")
    A(f"v_rcp_f32 v{t0}, v{t0}")
    for i in range(4):
        A(f"v_lshlrev_b32 v{xf+2*i}, 16, v{outp+i}")
        A(f"v_and_b32 v{xf+2*i+1}, 0xffff0000, v{outp+i}")
    for i in range(8):
        A(f"v_mul_f32 v{xf+i}, v{xf+i}, v{t0}")
    for i in range(4):
        A(f"v_cvt_pk_bf16_f32 v{outp+i}, v{xf+2*i}, v{xf+2*i+1}")


def kernel_header(A, name):
    A.raw(".text")
    A.raw(f".globl {name}")
    A.raw(".p2align 8")
    A.raw(f".type {name},@function")
    A.label(name)


def kernel_desc(name, vgprs, sgprs=102, agprs=0):
    acc = (vgprs + 3) // 4 * 4
    nfv = acc + agprs if agprs else vgprs
    return f"""
.section .rodata,"a"
.p2align 6
.amdhsa_kernel {name}
  .amdhsa_next_free_vgpr {nfv}
  .amdhsa_next_free_sgpr {sgprs}
  .amdhsa_accum_offset {acc}
  .amdhsa_group_segment_fixed_size 0
  .amdhsa_kernarg_size 80
  .amdhsa_user_sgpr_count 2
  .amdhsa_user_sgpr_kernarg_segment_ptr 1
  .amdhsa_system_sgpr_workgroup_id_x 1
.end_amdhsa_kernel
"""


ZROW = 272


def gen_A():
    A = Asm()
    name = "ka_kernel"
    kernel_header(A, name)
    R = RA(1)
    lane, g, j, w = R.get(), R.get(), R.get(), R.get()
    t0, t1, t2, t3 = R.get(), R.get(), R.get(), R.get()
    xr = R.get(4, 4)
    xf = R.get(8, 4)
    Bc = [R.get(4, 4), R.get(4, 4)]
    Bs = [R.get(4, 4), R.get(4, 4)]
    twc = R.get(8)
    tws = R.get(8)
    A2 = R.get(4, 4)
    A2n = R.get(4, 4)
    R8 = R.get(2, 2)
    za = R.get(4, 4)
    Dre = [R.get(4, 4), R.get(4, 4)]
    Dim = [R.get(4, 4), R.get(4, 4)]
    P = [R.get(4, 4), R.get(4, 4)]
    Z = [R.get(4, 4), R.get(4, 4)]
    Zn = R.get(4, 4)
    ang = R.get(8)
    gf, jf = R.get(), R.get()
    A("s_cmp_ge_u32 s2, 256")
    A("s_cbranch_scc1 LA_end")
    A("s_load_dwordx2 s[4:5], s[0:1], 0")
    A("s_load_dwordx2 s[6:7], s[0:1], 72")
    A(f"v_and_b32 v{lane}, 63, v0")
    A(f"v_lshrrev_b32 v{w}, 6, v0")
    A(f"v_lshrrev_b32 v{g}, 4, v{lane}")
    A(f"v_and_b32 v{j}, 15, v{lane}")
    A(f"v_lshlrev_b32 v{t0}, 18, v{w}")
    A(f"v_lshl_add_u32 v{t0}, v{lane}, 4, v{t0}")
    A("s_lshl_b32 s16, s2, 10")
    A("s_waitcnt lgkmcnt(0)")
    srd(A, 8, 4, 2 * MB)
    srd(A, 12, 6, 2 * MB, OFF_U)
    A(f"buffer_load_dwordx4 {vr(xr,4)}, v{t0}, s[8:11], s16 offen")
    A(f"v_cvt_f32_u32 v{gf}, v{g}")
    A(f"v_cvt_f32_u32 v{jf}, v{j}")
    A(f"v_mul_f32 v{gf}, 4.0, v{gf}")
    A(f"v_mul_f32 v{t1}, {fhex(1/32)}, v{jf}")
    for e in range(8):
        a_add = e if e < 4 else 12 + e
        A(f"v_add_f32 v{t2}, {fhex(float(a_add))}, v{gf}")
        A(f"v_mul_f32 v{ang+e}, v{t2}, v{t1}")
    for e in range(8):
        A(f"v_cos_f32 v{twc+e}, v{ang+e}")
        A(f"v_sin_f32 v{tws+e}, v{ang+e}")
    for q in range(4):
        A(f"v_cvt_pk_bf16_f32 v{Bc[0]+q}, v{twc+2*q}, v{twc+2*q+1}")
        A(f"v_cvt_pk_bf16_f32 v{Bs[0]+q}, -v{tws+2*q}, -v{tws+2*q+1}")
    for q in range(4):
        A(f"v_xor_b32 v{Bc[1]+q}, 0x80000000, v{Bc[0]+q}")
        A(f"v_xor_b32 v{Bs[1]+q}, 0x80000000, v{Bs[0]+q}")
    A(f"v_lshrrev_b32 v{t2}, 1, v{j}")
    A(f"v_cvt_f32_u32 v{t2}, v{t2}")
    A(f"v_and_b32 v{t3}, 1, v{j}")
    A(f"v_cvt_f32_u32 v{t3}, v{t3}")
    A(f"v_mul_f32 v{t3}, {fhex(0.25)}, v{t3}")
    A(f"v_mul_f32 v{t1}, {fhex(1/16)}, v{t2}")
    for q in range(4):
        A(f"v_add_f32 v{ang+q}, {fhex(float(q))}, v{gf}")
        A(f"v_fma_f32 v{ang+q}, v{ang+q}, v{t1}, v{t3}")
    A(f"v_cvt_f32_u32 v{t0}, s2")
    A(f"v_mul_f32 v{t1}, {fhex(1/2048)}, v{t2}")
    A(f"v_fmamk_f32 v{t0}, v{gf}, {fhex(128.0)}, v{t0}")
    A(f"v_fma_f32 v{ang+4}, v{t0}, v{t1}, v{t3}")
    A(f"v_add_f32 v{t0}, {fhex(256.0)}, v{t0}")
    A(f"v_fma_f32 v{ang+5}, v{t0}, v{t1}, v{t3}")
    for q in range(6):
        A(f"v_cos_f32 v{twc+q}, v{ang+q}")
        A(f"v_sin_f32 v{tws+q}, v{ang+q}")
    for q in range(4):
        A(f"v_cvt_pk_bf16_f32 v{A2+q}, v{twc+q}, v{tws+q}")
    for p in range(2):
        A(f"v_cvt_pk_bf16_f32 v{R8+p}, v{twc+4+p}, v{tws+4+p}")
    for q in range(4):
        A(f"v_mov_b32 v{A2n+q}, {0x3F80 if q % 2 == 0 else 0xBF80:#x}")
    for t in range(2):
        A(f"v_add_f32 v{t1}, {fhex(16.0*t)}, v{jf}")
        A(f"v_mul_f32 v{t1}, {fhex(1/512)}, v{t1}")
        for r in range(4):
            A(f"v_add_f32 v{t2}, {fhex(float(r))}, v{gf}")
            A(f"v_mul_f32 v{ang+4*t+r}, v{t2}, v{t1}")
    for e in range(8):
        A(f"v_cos_f32 v{twc+e}, v{ang+e}")
        A(f"v_sin_f32 v{tws+e}, v{ang+e}")
    lz, lzr, lw, lr, so = ang, ang + 1, ang + 2, ang + 3, ang + 4
    ZL = 8192
    A(f"v_lshlrev_b32 v{lz}, 4, v0")
    A(f"v_lshlrev_b32 v{lzr}, 10, v{w}")
    A(f"v_lshl_add_u32 v{lzr}, v{lane}, 3, v{lzr}")
    A(f"v_mul_u32_u24 v{lw}, {ZROW}, v{w}")
    A(f"v_lshl_add_u32 v{lw}, v{g}, 6, v{lw}")
    A(f"v_add_lshl_u32 v{lw}, v{lw}, v{j}, 2")
    A(f"v_mul_u32_u24 v{lr}, {2*ZROW}, v{g}")
    A(f"v_lshl_add_u32 v{lr}, v{w}, 5, v{lr}")
    A(f"v_lshl_add_u32 v{lr}, v{j}, 1, v{lr}")
    A(f"v_lshlrev_b32 v{lr}, 2, v{lr}")
    A(f"v_lshlrev_b32 v{so}, 11, v{g}")
    A(f"v_lshl_add_u32 v{so}, v{w}, 7, v{so}")
    A(f"v_lshl_add_u32 v{so}, v{j}, 3, v{so}")
    A("s_lshl_b32 s16, s2, 13")
    A("s_waitcnt vmcnt(0)")
    for i in range(4):
        A(f"v_lshlrev_b32 v{xf+2*i}, 16, v{xr+i}")
        A(f"v_and_b32 v{xf+2*i+1}, 0xffff0000, v{xr+i}")
    layernorm8(A, xf, t0, t1, t2, 17, xr)
    A(f"ds_write_b128 v{lz}, {vr(xr,4)}")
    A("s_waitcnt lgkmcnt(0)")
    A(f"ds_read_b64_tr_b16 {vr(za,2)}, v{lzr}")
    A(f"ds_read_b64_tr_b16 {vr(za+2,2)}, v{lzr} offset:512")
    A("s_waitcnt lgkmcnt(0)")
    for t in range(2):
        A(f"v_mfma_f32_16x16x32_bf16 {vr(Dre[t],4)}, {vr(za,4)}, {vr(Bc[t],4)}, 0")
        A(f"v_mfma_f32_16x16x32_bf16 {vr(Dim[t],4)}, {vr(za,4)}, {vr(Bs[t],4)}, 0")
    for t in range(2):
        for r in range(4):
            c, s = twc + 4 * t + r, tws + 4 * t + r
            re, im = Dre[t] + r, Dim[t] + r
            A(f"v_mul_f32 v{t0}, v{re}, v{c}")
            A(f"v_mul_f32 v{t1}, v{im}, v{c}")
            A(f"v_fmac_f32 v{t0}, v{im}, v{s}")
            A(f"v_fma_f32 v{t1}, -v{re}, v{s}, v{t1}")
            A(f"v_cvt_pk_bf16_f32 v{P[t]+r}, v{t0}, v{t1}")
        A(f"v_mfma_f32_16x16x32_bf16 {vr(Z[t],4)}, {vr(A2,4)}, {vr(P[t],4)}, 0")
        if t == 0:
            A(f"v_mfma_f32_16x16x32_bf16 {vr(Zn,4)}, {vr(A2n,4)}, {vr(P[0],4)}, 0")
    A(f"v_cmp_eq_u32 vcc, 0, v{lane}")
    A(f"v_cndmask_b32 v{Z[0]}, v{Z[0]}, v{Zn}, vcc")
    for t in range(2):
        for p in range(2):
            A(f"v_cvt_pk_bf16_f32 v{P[t]+p}, v{Z[t]+2*p}, v{Z[t]+2*p+1}")
    for t in range(2):
        for p in range(2):
            A(f"ds_write_b32 v{lw}, v{P[t]+p} offset:{ZL + (16*t+32*p)*4}")
    A("s_waitcnt lgkmcnt(0)")
    A("s_barrier")
    A(f"ds_read_b64 {vr(za,2)}, v{lr} offset:{ZL}")
    A(f"ds_read_b64 {vr(za+2,2)}, v{lr} offset:{ZL + ZROW*4}")
    A("s_waitcnt lgkmcnt(0)")
    A(f"v_swap_b32 v{za+1}, v{za+2}")
    for u in range(2):
        A(f"v_mfma_f32_16x16x16_bf16 {vr(Z[u],4)}, {vr(R8,2)}, {vr(za+2*u,2)}, 0")
    for p in range(2):
        for u in range(2):
            A(f"v_cvt_pk_bf16_f32 v{P[0]+2*p+u}, v{Z[u]+2*p}, v{Z[u]+2*p+1}")
    for p in range(2):
        A(f"buffer_store_dwordx2 {vr(P[0]+2*p,2)}, v{so}, s[12:15], s16 offen offset:{1024*p}")
    A.label("LA_end")
    A("s_endpgm")
    return name, A.finalize(), R.hi, (256, 512, 8192 + 8 * ZROW * 4)


def gen_B():
    A = Asm()
    name = "kb_kernel"
    kernel_header(A, name)
    R = RA(1)
    lane, g, j = R.get(), R.get(), R.get()
    t0, t1, t2, t3 = R.get(), R.get(), R.get(), R.get()
    uo, wo = R.get(), R.get()
    In = R.get(16, 4)
    Wr = R.get(12, 2)
    Wi = R.get(12, 2)
    Wn = R.get(8)
    Fre, Fim, Gre, Gim = R.get(4, 4), R.get(4, 4), R.get(4, 4), R.get(4, 4)
    twc, tws = R.get(4), R.get(4)
    Dre = R.get(16, 4)
    Dim = R.get(16, 4)
    Out = R.get(16, 4)
    ang = R.get(4)
    gf, jf = R.get(), R.get()
    A("s_cmp_ge_u32 s2, 256")
    A("s_cbranch_scc1 LB_end")
    A("s_load_dwordx4 s[4:7], s[0:1], 8")
    A("s_load_dwordx2 s[8:9], s[0:1], 72")
    A(f"v_and_b32 v{lane}, 63, v0")
    A(f"v_lshrrev_b32 v{t0}, 6, v0")
    A(f"v_lshrrev_b32 v{g}, 4, v{lane}")
    A(f"v_and_b32 v{j}, 15, v{lane}")
    A(f"v_readfirstlane_b32 s30, v{t0}")
    A("s_and_b32 s31, s2, 7")
    A("s_lshr_b32 s32, s2, 3")
    A("s_lshl_b32 s32, s32, 1")
    A("s_add_u32 s32, s32, s30")
    A(f"v_lshl_add_u32 v{uo}, v{g}, 6, v{j}")
    A(f"v_lshlrev_b32 v{uo}, 13, v{uo}")
    A("s_lshl_b32 s33, s31, 10")
    A("s_lshl_b32 s34, s32, 4")
    A("s_add_u32 s33, s33, s34")
    A("s_add_u32 s34, s33, 0x20000")
    A("s_add_u32 s35, s33, 0x40000")
    A("s_add_u32 s36, s33, 0x60000")
    A(f"v_lshl_add_u32 v{wo}, v{g}, 6, v{j}")
    A(f"v_mul_u32_u24 v{wo}, {514*8}, v{wo}")
    A("s_mul_i32 s37, s31, 514")
    A("s_lshl_b32 s38, s32, 3")
    A("s_add_u32 s42, s37, 512")
    A("s_add_u32 s37, s37, s38")
    A("s_and_b32 s41, s37, 2")
    A("s_lshl_b32 s41, s41, 3")
    A("s_and_b32 s37, s37, 0xfffffffc")
    for r in range(1, 4):
        A(f"s_add_u32 s{37+r}, s37, {514*128*r}")
    A("s_waitcnt lgkmcnt(0)")
    srd(A, 12, 8, 2 * MB, OFF_U)
    srd(A, 16, 4, W_BYTES)
    srd(A, 20, 6, W_BYTES)
    srd(A, 24, 8, 2 * MB, OFF_V)
    for q in range(4):
        A(f"buffer_load_dwordx4 {vr(In+4*q,4)}, v{uo}, s[12:15], s{33+q} offen")
    for r in range(4):
        A(f"buffer_load_dwordx3 {vr(Dre+4*r,3)}, v{wo}, s[16:19], s{37+r} offen")
        A(f"buffer_load_dwordx3 {vr(Dim+4*r,3)}, v{wo}, s[20:23], s{37+r} offen")
    A("s_cmp_lg_u32 s32, 0")
    A("s_cbranch_scc1 LB_nonyq")
    for r in range(4):
        A(f"buffer_load_ushort v{Wn+r}, v{wo}, s[16:19], s42 offen")
        A(f"buffer_load_ushort v{Wn+4+r}, v{wo}, s[20:23], s42 offen")
        if r < 3:
            A(f"s_add_u32 s42, s42, {514*128}")
    A.label("LB_nonyq")
    A(f"v_cvt_f32_u32 v{gf}, v{g}")
    A(f"v_cvt_f32_u32 v{jf}, v{j}")
    A(f"v_mul_f32 v{gf}, 4.0, v{gf}")
    A(f"v_mul_f32 v{t1}, {fhex(1/16)}, v{jf}")
    for q in range(4):
        A(f"v_add_f32 v{t2}, {fhex(float(q))}, v{gf}")
        A(f"v_mul_f32 v{ang+q}, v{t2}, v{t1}")
    for q in range(4):
        A(f"v_cos_f32 v{twc+q}, v{ang+q}")
        A(f"v_sin_f32 v{tws+q}, v{ang+q}")
    for q in range(4):
        A(f"v_cvt_pk_bf16_f32 v{Fre+q}, v{twc+q}, v{tws+q}")
        A(f"v_cvt_pk_bf16_f32 v{Fim+q}, -v{tws+q}, v{twc+q}")
        A(f"v_cvt_pk_bf16_f32 v{Gre+q}, v{twc+q}, -v{tws+q}")
        A(f"v_cvt_pk_bf16_f32 v{Gim+q}, v{tws+q}, v{twc+q}")
    for q in range(4):
        A(f"v_mul_f32 v{ang+q}, {fhex(1/16)}, v{ang+q}")
    for q in range(4):
        A(f"v_cos_f32 v{twc+q}, v{ang+q}")
        A(f"v_sin_f32 v{tws+q}, v{ang+q}")
    A("s_waitcnt vmcnt(0)")
    for r in range(4):
        for (dst, src) in ((Wr, Dre), (Wi, Dim)):
            A(f"v_alignbit_b32 v{dst+2*r}, v{src+4*r+1}, v{src+4*r}, s41")
            A(f"v_alignbit_b32 v{dst+2*r+1}, v{src+4*r+2}, v{src+4*r+1}, s41")
    A("s_cmp_lg_u32 s32, 0")
    A("s_cbranch_scc1 LB_nonyq2")
    A("s_mov_b32 s43, 0xffff0000")
    for r in range(4):
        A(f"v_and_or_b32 v{Wr+2*r}, v{Wr+2*r}, s43, v{Wn+r}")
        A(f"v_and_or_b32 v{Wi+2*r}, v{Wi+2*r}, s43, v{Wn+4+r}")
    A.label("LB_nonyq2")
    for a in range(4):
        for b in range(a + 1, 4):
            A(f"v_swap_b32 v{In+4*a+b}, v{In+4*b+a}")

    def cmul_pack(dst, re, im, c, s, conj):
        A(f"v_mul_f32 v{t0}, v{re}, v{c}")
        A(f"v_mul_f32 v{t1}, v{im}, v{c}")
        if conj:
            A(f"v_fmac_f32 v{t0}, v{im}, v{s}")
            A(f"v_fma_f32 v{t1}, -v{re}, v{s}, v{t1}")
        else:
            A(f"v_fma_f32 v{t0}, -v{im}, v{s}, v{t0}")
            A(f"v_fmac_f32 v{t1}, v{re}, v{s}")
        A(f"v_cvt_pk_bf16_f32 v{dst}, v{t0}, v{t1}")

    mf = "v_mfma_f32_16x16x32_bf16"
    for kk in range(4):
        A(f"{mf} {vr(Dre+4*kk,4)}, {vr(In+4*kk,4)}, {vr(Fre,4)}, 0")
        A(f"{mf} {vr(Dim+4*kk,4)}, {vr(In+4*kk,4)}, {vr(Fim,4)}, 0")
    for kk in range(4):
        for r in range(4):
            cmul_pack(In + 4 * kk + r, Dre + 4 * kk + r, Dim + 4 * kk + r, twc + r, tws + r, True)
        A(f"{mf} {vr(Dre+4*kk,4)}, {vr(Fre,4)}, {vr(In+4*kk,4)}, 0")
        A(f"{mf} {vr(Dim+4*kk,4)}, {vr(Fim,4)}, {vr(In+4*kk,4)}, 0")
    for kk in range(4):
        for r in range(4):
            for (dst, src) in ((t2, Wr), (t3, Wi)):
                if kk % 2 == 0:
                    A(f"v_lshlrev_b32 v{dst}, 16, v{src+2*r+kk//2}")
                else:
                    A(f"v_and_b32 v{dst}, 0xffff0000, v{src+2*r+kk//2}")
            cmul_pack(In + 4 * kk + r, Dre + 4 * kk + r, Dim + 4 * kk + r, t2, t3, False)
        A(f"{mf} {vr(Dre+4*kk,4)}, {vr(In+4*kk,4)}, {vr(Gre,4)}, 0")
        A(f"{mf} {vr(Dim+4*kk,4)}, {vr(In+4*kk,4)}, {vr(Gim,4)}, 0")
    for kk in range(4):
        for r in range(4):
            cmul_pack(In + 4 * kk + r, Dre + 4 * kk + r, Dim + 4 * kk + r, twc + r, tws + r, False)
        A(f"{mf} {vr(Dre+4*kk,4)}, {vr(Gre,4)}, {vr(In+4*kk,4)}, 0")
        A(f"{mf} {vr(Dim+4*kk,4)}, {vr(Gim,4)}, {vr(In+4*kk,4)}, 0")
    for kk in range(4):
        for r in range(4):
            A(f"v_cvt_pk_bf16_f32 v{Out+4*r+kk}, v{Dre+4*kk+r}, v{Dim+4*kk+r}")
    for q in range(4):
        A(f"buffer_store_dwordx4 {vr(Out+4*q,4)}, v{uo}, s[24:27], s{33+q} offen")
    A.label("LB_end")
    A("s_endpgm")
    return name, A.finalize(), R.hi, (256, 128, 0)


def gen_C():
    A = Asm()
    name = "kc_kernel"
    kernel_header(A, name)
    R = RA(1)
    lane, g, j, w = R.get(), R.get(), R.get(), R.get()
    t0, t1, t2, t3 = R.get(), R.get(), R.get(), R.get()
    L = R.get(4, 4)
    xr = R.get(4, 4)
    xf = R.get(8, 4)
    R8 = R.get(2, 2)
    B1re, B1im = R.get(2, 2), R.get(2, 2)
    B2 = [[R.get(4, 4), R.get(4, 4)], [R.get(4, 4), R.get(4, 4)]]
    twc, tws = R.get(8), R.get(8)
    Dre = [R.get(4, 4), R.get(4, 4)]
    Dim = [R.get(4, 4), R.get(4, 4)]
    P = [R.get(4, 4), R.get(4, 4)]
    Y = [R.get(4, 4), R.get(4, 4)]
    ang = R.get(8)
    gf, jf = R.get(), R.get()
    xo = R.get()
    A("s_cmp_ge_u32 s2, 256")
    A("s_cbranch_scc1 LC_end")
    A("s_load_dwordx2 s[4:5], s[0:1], 0")
    A("s_load_dwordx2 s[6:7], s[0:1], 72")
    A(f"v_and_b32 v{lane}, 63, v0")
    A(f"v_lshrrev_b32 v{w}, 6, v0")
    A(f"v_lshrrev_b32 v{g}, 4, v{lane}")
    A(f"v_and_b32 v{j}, 15, v{lane}")
    A(f"v_lshlrev_b32 v{t0}, 11, v{g}")
    A(f"v_lshl_add_u32 v{t0}, v{w}, 7, v{t0}")
    A(f"v_lshl_add_u32 v{t0}, v{j}, 3, v{t0}")
    A("s_lshl_b32 s16, s2, 13")
    A(f"v_lshlrev_b32 v{xo}, 18, v{w}")
    A(f"v_lshl_add_u32 v{xo}, v{j}, 5, v{xo}")
    A(f"v_lshl_add_u32 v{xo}, v{g}, 3, v{xo}")
    A("s_lshl_b32 s18, s2, 10")
    A("s_waitcnt lgkmcnt(0)")
    srd(A, 8, 4, 2 * MB)
    srd(A, 12, 6, 2 * MB, OFF_V)
    srd(A, 20, 6, 2 * MB, OFF_H)
    srd(A, 24, 6, 2 * MB, OFF_LN)
    for p in range(2):
        A(f"buffer_load_dwordx2 {vr(L+2*p,2)}, v{t0}, s[12:15], s16 offen offset:{1024*p}")
    for u in range(2):
        A(f"buffer_load_dwordx2 {vr(xr+2*u,2)}, v{xo}, s[8:11], s18 offen offset:{512*u}")
    A(f"v_cvt_f32_u32 v{gf}, v{g}")
    A(f"v_cvt_f32_u32 v{jf}, v{j}")
    A(f"v_lshrrev_b32 v{t2}, 1, v{j}")
    A(f"v_cvt_f32_u32 v{t2}, v{t2}")
    A(f"v_and_b32 v{t3}, 1, v{j}")
    A(f"v_cvt_f32_u32 v{t3}, v{t3}")
    A(f"v_mul_f32 v{t3}, {fhex(-0.25)}, v{t3}")
    A(f"v_cvt_f32_u32 v{t0}, s2")
    A(f"v_fmamk_f32 v{t0}, v{t2}, {fhex(256.0)}, v{t0}")
    A(f"v_mul_f32 v{t0}, {fhex(1/2048)}, v{t0}")
    A(f"v_add_f32 v{t1}, v{gf}, v{gf}")
    A(f"v_fma_f32 v{ang}, v{t1}, v{t0}, v{t3}")
    A(f"v_add_f32 v{ang+1}, v{ang}, v{t0}")
    A(f"v_mul_f32 v{t0}, {fhex(1/16)}, v{jf}")
    A(f"v_mul_f32 v{ang+2}, v{t1}, v{t0}")
    A(f"v_add_f32 v{ang+3}, v{ang+2}, v{t0}")
    A(f"v_mul_f32 v{gf}, 4.0, v{gf}")
    A(f"v_mul_f32 v{t0}, {fhex(1/32)}, v{jf}")
    for r in range(4):
        A(f"v_add_f32 v{t2}, {fhex(float(r))}, v{gf}")
        A(f"v_mul_f32 v{ang+4+r}, v{t2}, v{t0}")
    for e in range(8):
        A(f"v_cos_f32 v{twc+e}, v{ang+e}")
        A(f"v_sin_f32 v{tws+e}, v{ang+e}")
    for p in range(2):
        A(f"v_cvt_pk_bf16_f32 v{R8+p}, v{twc+p}, -v{tws+p}")
        A(f"v_cvt_pk_bf16_f32 v{B1re+p}, v{twc+2+p}, -v{tws+2+p}")
        A(f"v_cvt_pk_bf16_f32 v{B1im+p}, v{tws+2+p}, v{twc+2+p}")
    for r in range(4):
        A(f"v_cvt_pk_bf16_f32 v{B2[0][0]+r}, v{twc+4+r}, -v{tws+4+r}")
    A(f"v_and_b32 v{t3}, 1, v{j}")
    A(f"v_mul_u32_u24 v{t3}, 0x8000, v{t3}")
    A(f"v_lshl_or_b32 v{t3}, v{t3}, 16, v{t3}")
    for r in range(4):
        A(f"v_xor_b32 v{B2[1][0]+r}, v{t3}, v{B2[0][0]+r}")
    for t in range(2):
        for r in range(4):
            if r % 2:
                A(f"v_xor_b32 v{B2[t][1]+r}, 0x80008000, v{B2[t][0]+r}")
            else:
                A(f"v_mov_b32 v{B2[t][1]+r}, v{B2[t][0]+r}")
    A(f"v_mul_f32 v{t0}, {fhex(1/512)}, v{jf}")
    for t in range(2):
        for r in range(4):
            A(f"v_add_f32 v{t2}, {fhex(float(16*t+r))}, v{gf}")
            A(f"v_mul_f32 v{ang+4*t+r}, v{t2}, v{t0}")
    for e in range(8):
        A(f"v_cos_f32 v{twc+e}, v{ang+e}")
        A(f"v_sin_f32 v{tws+e}, v{ang+e}")
    for e in range(8):
        A(f"v_mul_f32 v{twc+e}, {fhex(2.0**-19)}, v{twc+e}")
        A(f"v_mul_f32 v{tws+e}, {fhex(2.0**-19)}, v{tws+e}")
    lw, lr = ang, ang + 1
    A(f"v_mul_u32_u24 v{lw}, {2*ZROW}, v{g}")
    A(f"v_lshl_add_u32 v{lw}, v{w}, 5, v{lw}")
    A(f"v_lshl_add_u32 v{lw}, v{j}, 1, v{lw}")
    A(f"v_lshlrev_b32 v{lw}, 2, v{lw}")
    A(f"v_mul_u32_u24 v{lr}, {ZROW}, v{w}")
    A(f"v_lshl_add_u32 v{lr}, v{g}, 6, v{lr}")
    A(f"v_add_lshl_u32 v{lr}, v{lr}, v{j}, 2")
    A("s_waitcnt vmcnt(2)")
    A(f"v_swap_b32 v{L+1}, v{L+2}")
    for u in range(2):
        A(f"v_mfma_f32_16x16x16_bf16 {vr(Y[u],4)}, {vr(R8,2)}, {vr(L+2*u,2)}, 0")
    for p in range(2):
        for u in range(2):
            A(f"v_cvt_pk_bf16_f32 v{P[0]+2*p+u}, v{Y[u]+2*p}, v{Y[u]+2*p+1}")
    for p in range(2):
        A(f"ds_write_b64 v{lw}, {vr(P[0]+2*p,2)} offset:{ZROW*4*p}")
    A("s_waitcnt lgkmcnt(0)")
    A("s_barrier")
    for t in range(2):
        A(f"ds_read2_b32 {vr(L+2*t,2)}, v{lr} offset0:{16*t} offset1:{16*t+32}")
    A("s_waitcnt lgkmcnt(0)")
    A(f"v_readlane_b32 s17, v{L}, 0")
    A(f"v_cmp_ne_u32 vcc, 0, v{lane}")
    A(f"v_cndmask_b32 v{L}, 0, v{L}, vcc")
    A("s_lshl_b32 s17, s17, 16")
    for t in range(2):
        A(f"v_mfma_f32_16x16x16_bf16 {vr(Dre[t],4)}, {vr(L+2*t,2)}, {vr(B1re,2)}, 0")
        A(f"v_mfma_f32_16x16x16_bf16 {vr(Dim[t],4)}, {vr(L+2*t,2)}, {vr(B1im,2)}, 0")
    A(f"v_mov_b32 v{t0}, {fhex(2.0**-20)}")
    A(f"v_mul_f32 v{t0}, s17, v{t0}")
    for u in range(2):
        for r in range(4):
            if r % 2:
                A(f"v_sub_f32 v{Y[u]+r}, 0, v{t0}")
            else:
                A(f"v_mov_b32 v{Y[u]+r}, v{t0}")
    for t in range(2):
        for r in range(4):
            c, s = twc + 4 * t + r, tws + 4 * t + r
            re, im = Dre[t] + r, Dim[t] + r
            A(f"v_mul_f32 v{t0}, v{re}, v{c}")
            A(f"v_mul_f32 v{t1}, v{im}, v{c}")
            A(f"v_fma_f32 v{t0}, -v{im}, v{s}, v{t0}")
            A(f"v_fmac_f32 v{t1}, v{re}, v{s}")
            A(f"v_cvt_pk_bf16_f32 v{P[t]+r}, v{t0}, v{t1}")
        for u in range(2):
            A(f"v_mfma_f32_16x16x32_bf16 {vr(Y[u],4)}, {vr(P[t],4)}, {vr(B2[t][u],4)}, {vr(Y[u],4)}")
    A("s_waitcnt vmcnt(0)")
    for i in range(4):
        A(f"v_lshlrev_b32 v{xf+2*i}, 16, v{xr+i}")
        A(f"v_and_b32 v{xf+2*i+1}, 0xffff0000, v{xr+i}")
    for u in range(2):
        for p in range(2):
            A(f"v_cvt_pk_bf16_f32 v{P[0]+2*u+p}, v{Y[u]+2*p}, v{Y[u]+2*p+1}")
    for i in range(4):
        A(f"v_lshlrev_b32 v{t0}, 16, v{P[0]+i}")
        A(f"v_and_b32 v{t1}, 0xffff0000, v{P[0]+i}")
        A(f"v_add_f32 v{xf+2*i}, v{xf+2*i}, v{t0}")
        A(f"v_add_f32 v{xf+2*i+1}, v{xf+2*i+1}, v{t1}")
        A(f"v_cvt_pk_bf16_f32 v{xr+i}, v{xf+2*i}, v{xf+2*i+1}")
    for u in range(2):
        A(f"buffer_store_dwordx2 {vr(xr+2*u,2)}, v{xo}, s[20:23], s18 offen offset:{512*u}")
    for i in range(4):
        A(f"v_lshlrev_b32 v{xf+2*i}, 16, v{xr+i}")
        A(f"v_and_b32 v{xf+2*i+1}, 0xffff0000, v{xr+i}")
    layernorm8(A, xf, t0, t1, t2, 17, P[1])
    A(f"v_lshrrev_b32 v{t0}, 2, v{j}")
    A(f"v_lshlrev_b32 v{t0}, 14, v{t0}")
    A(f"v_bfe_u32 v{t1}, v{j}, 1, 1")
    A(f"v_lshl_add_u32 v{t0}, v{t1}, 10, v{t0}")
    A(f"v_and_b32 v{t1}, 1, v{j}")
    A(f"v_lshl_add_u32 v{t0}, v{t1}, 9, v{t0}")
    A(f"v_lshrrev_b32 v{t1}, 1, v{g}")
    A(f"v_lshl_add_u32 v{t0}, v{t1}, 8, v{t0}")
    A(f"v_and_b32 v{t1}, 1, v{g}")
    A(f"v_lshl_add_u32 v{t0}, v{t1}, 3, v{t0}")
    A(f"v_lshl_add_u32 v{t0}, v{w}, 4, v{t0}")
    A("s_lshr_b32 s28, s2, 4")
    A("s_lshl_b32 s28, s28, 17")
    A("s_bfe_u32 s29, s2, 0x30001")
    A("s_lshl_b32 s29, s29, 11")
    A("s_add_u32 s28, s28, s29")
    A("s_and_b32 s29, s2, 1")
    A("s_lshl_b32 s29, s29, 7")
    A("s_add_u32 s28, s28, s29")
    A("s_add_u32 s29, s28, 0x10000")
    for u in range(2):
        A(f"buffer_store_dwordx2 {vr(P[1]+2*u,2)}, v{t0}, s[24:27], s{28+u} offen")
    A.label("LC_end")
    A("s_endpgm")
    return name, A.finalize(), R.hi, (256, 512, 8 * ZROW * 4)


HEADER = """; Pre-LN GFNet spectral filter + residual, pre-LN GEGLU FFN + residual (S=2048, D=512, F=1376).
"""


def build(kernels, launches=None):
    out = HEADER
    if launches is None:
        launches = [k[0] for k in kernels]
    kd = {k[0]: k for k in kernels}
    for n in launches:
        name, body, nv, (gx, bx, lds) = kd[n][:4]
        out += f"; @launch kernel={name} grid=({gx},1,1) block=({bx},1,1) lds={lds}\n"
    out += '.amdgcn_target "amdgcn-amd-amdhsa--gfx950"\n'
    for k in kernels:
        out += k[1]
    for k in kernels:
        ag = k[4] if len(k) > 4 else 0
        out += kernel_desc(k[0], k[2], agprs=ag)
    return out


if __name__ == "__main__":
    ks = [gen_A(), gen_B(), gen_C()]
    try:
        from gen_ffn import gen_D, gen_E
        ks += [gen_D(), gen_E()]
    except ImportError:
        pass
    path = sys.argv[1] if len(sys.argv) > 1 else f"cdna_kernels/{NAME}.s"
    open(path, "w").write(build(ks))
    for k in ks:
        print(k[0], "vgprs", k[2], k[3], "lines", k[1].count("\n"))
```

```python
from gen import *
from gen_ffn import *
def gen_Z(g=256,b=64):
    A = Asm(); kernel_header(A, "kz_kernel"); A("s_endpgm")
    return "kz_kernel", A.finalize(), 8, (g, b, 0)
ks=[gen_A(),gen_B(),gen_C(),gen_D(),gen_E(),gen_Z()]
base=["ka_kernel","kb_kernel","kc_kernel","kd_kernel","ke_kernel"]
open("v_base.s","w").write(build(ks[:5]))
open("v_e5.s","w").write(build(ks, base+["kz_kernel"]*5))
open("v_e10.s","w").write(build(ks, base+["kz_kernel"]*10))
open("v_2x.s","w").write(build(ks[:5], base+base))
```

```python
import sys, math
sys.path.insert(0, "work")
from asmlib import Asm, fhex

NAME = "sequential_preLN__spectral_gfnet__glu_gated_geglu__prompt"
WS_BYTES = 268435456
MB = 1 << 20
OFF_U = 0
OFF_V = 2 * MB
OFF_H = 4 * MB
OFF_LN = 6 * MB
OFF_HH = 8 * MB
W_BYTES = 2048 * 257 * 2
WG_BYTES = 512 * 1376 * 2


class RA:
    def __init__(self, start, kind="v"):
        self.n = start
        self.kind = kind
        self.hi = start

    def get(self, cnt=1, align=1):
        self.n = (self.n + align - 1) // align * align
        r = self.n
        self.n += cnt
        self.hi = max(self.hi, self.n)
        return r


def vr(a, n=1):
    return "v%d" % a if n == 1 else "v[%d:%d]" % (a, a + n - 1)


def sr(a, n=1):
    return "s%d" % a if n == 1 else "s[%d:%d]" % (a, a + n - 1)


def srd(A, d, base, nbytes, add=0):
    if add:
        A(f"s_add_u32 s{d}, s{base}, {add:#x}")
        A(f"s_addc_u32 s{d+1}, s{base+1}, 0")
    else:
        A(f"s_mov_b32 s{d}, s{base}")
        A(f"s_mov_b32 s{d+1}, s{base+1}")
    A(f"s_mov_b32 s{d+2}, {nbytes:#x}")
    A(f"s_mov_b32 s{d+3}, 0x20000")


def wave_reduce(A, v, sdst):
    A(f"v_add_f32_dpp v{v}, v{v}, v{v} quad_perm:[1,0,3,2] row_mask:0xf bank_mask:0xf")
    A(f"v_add_f32_dpp v{v}, v{v}, v{v} quad_perm:[2,3,0,1] row_mask:0xf bank_mask:0xf")
    A(f"v_add_f32_dpp v{v}, v{v}, v{v} row_half_mirror row_mask:0xf bank_mask:0xf")
    A(f"v_add_f32_dpp v{v}, v{v}, v{v} row_mirror row_mask:0xf bank_mask:0xf")
    A(f"v_add_f32_dpp v{v}, v{v}, v{v} row_bcast:15 row_mask:0xa bank_mask:0xf")
    A(f"v_add_f32_dpp v{v}, v{v}, v{v} row_bcast:31 row_mask:0xc bank_mask:0xf")
    A(f"v_readlane_b32 s{sdst}, v{v}, 63")


def layernorm8(A, xf, t0, t1, t2, stmp, outp):
    A(f"v_add_f32 v{t0}, v{xf}, v{xf+1}")
    A(f"v_add_f32 v{t1}, v{xf+2}, v{xf+3}")
    A(f"v_add_f32 v{t2}, v{xf+4}, v{xf+5}")
    A(f"v_add_f32 v{t0}, v{t0}, v{t1}")
    A(f"v_add_f32 v{t1}, v{xf+6}, v{xf+7}")
    A(f"v_add_f32 v{t2}, v{t2}, v{t1}")
    A(f"v_add_f32 v{t0}, v{t0}, v{t2}")
    wave_reduce(A, t0, stmp)
    A(f"v_mov_b32 v{t1}, {fhex(1.0/512)}")
    A(f"v_mul_f32 v{t1}, s{stmp}, v{t1}")
    A(f"v_sub_f32 v{t2}, v{xf}, v{t1}")
    A(f"v_mul_f32 v{t0}, v{t2}, v{t2}")
    for i in range(1, 8):
        A(f"v_sub_f32 v{t2}, v{xf+i}, v{t1}")
        A(f"v_fmac_f32 v{t0}, v{t2}, v{t2}")
    A(f"v_cvt_pk_bf16_f32 v{t1}, v{t1}, v{t1}")
    A(f"v_lshlrev_b32 v{t1}, 16, v{t1}")
    wave_reduce(A, t0, stmp)
    for i in range(8):
        A(f"v_sub_f32 v{xf+i}, v{xf+i}, v{t1}")
    A(f"v_mov_b32 v{t0}, {fhex(1.0/512)}")
    A(f"v_mul_f32 v{t0}, s{stmp}, v{t0}")
    A(f"v_cvt_pk_bf16_f32 v{t0}, v{t0}, v{t0}")
    A(f"v_lshlrev_b32 v{t0}, 16, v{t0}")
    A(f"v_add_f32 v{t0}, {fhex(1e-5)}, v{t0}")
    A(f"v_cvt_pk_bf16_f32 v{t0}, v{t0}, v{t0}")
    A(f"v_lshlrev_b32 v{t0}, 16, v{t0}")
    A(f"v_sqrt_f32 v{t0}, v{t0}")
    for i in range(4):
        A(f"v_cvt_pk_bf16_f32 v{outp+i}, v{xf+2*i}, v{xf+2*i+1}")
    A(f"v_cvt_pk_bf16_f32 v{t0}, v{t0}, v{t0}")
    A(f"v_lshlrev_b32 v{t0}, 16, v{t0}")
    A(f"v_rcp_f32 v{t0}, v{t0}")
    for i in range(4):
        A(f"v_lshlrev_b32 v{xf+2*i}, 16, v{outp+i}")
        A(f"v_and_b32 v{xf+2*i+1}, 0xffff0000, v{outp+i}")
    for i in range(8):
        A(f"v_mul_f32 v{xf+i}, v{xf+i}, v{t0}")
    for i in range(4):
        A(f"v_cvt_pk_bf16_f32 v{outp+i}, v{xf+2*i}, v{xf+2*i+1}")


def kernel_header(A, name):
    A.raw(".text")
    A.raw(f".globl {name}")
    A.raw(".p2align 8")
    A.raw(f".type {name},@function")
    A.label(name)


import os
STAMPS = os.environ.get("STAMPS", "0") == "1"
OFF_DBG = 32 * MB
SB = 64


def stamp(A, i):
    if STAMPS:
        A(f"s_memrealtime s[{SB+2*i}:{SB+2*i+1}]")


def stamp_clk(A, i):
    if STAMPS:
        A(f"s_memtime s[{SB+2*i}:{SB+2*i+1}]")


def stamp_flush(A, kidx, n, wsp, vt0, vt1):
    if not STAMPS:
        return
    A("s_waitcnt vmcnt(0) lgkmcnt(0)")
    A(f"s_memrealtime s[{SB+2*n}:{SB+2*n+1}]")
    A(f"s_getreg_b32 s{SB+2*n+2}, hwreg(HW_REG_XCC_ID)")
    A("s_waitcnt lgkmcnt(0)")
    srd(A, 96, wsp, 16 * MB, OFF_DBG)
    A(f"v_lshrrev_b32 v{vt0}, 6, v0")
    A(f"v_lshlrev_b32 v{vt0}, 6, v{vt0}")
    A(f"s_lshl_b32 s100, s2, 9")
    A(f"s_add_u32 s100, s100, {kidx * 256 * 512}")
    A(f"v_and_b32 v{vt1}, 63, v0")
    A(f"v_cmp_eq_u32 vcc, 0, v{vt1}")
    A("s_and_saveexec_b64 s[94:95], vcc")
    for i in range(n + 2):
        A(f"v_mov_b32 v{vt1}, s{SB+2*i}")
        A(f"buffer_store_dword v{vt1}, v{vt0}, s[96:99], s100 offen offset:{4*i}")
    A("s_waitcnt vmcnt(0)")


def kernel_desc(name, vgprs, sgprs=102, agprs=0):
    acc = (vgprs + 3) // 4 * 4
    nfv = acc + agprs if agprs else vgprs
    return f"""
.section .rodata,"a"
.p2align 6
.amdhsa_kernel {name}
  .amdhsa_next_free_vgpr {nfv}
  .amdhsa_next_free_sgpr {sgprs}
  .amdhsa_accum_offset {acc}
  .amdhsa_group_segment_fixed_size 0
  .amdhsa_kernarg_size 80
  .amdhsa_user_sgpr_count 2
  .amdhsa_user_sgpr_kernarg_segment_ptr 1
  .amdhsa_system_sgpr_workgroup_id_x 1
.end_amdhsa_kernel
"""


ZROW = 272


def gen_A():
    A = Asm()
    name = "ka_kernel"
    kernel_header(A, name)
    R = RA(1)
    lane, g, j, w = R.get(), R.get(), R.get(), R.get()
    t0, t1, t2, t3 = R.get(), R.get(), R.get(), R.get()
    xr = R.get(4, 4)
    xf = R.get(8, 4)
    Bc = [R.get(4, 4), R.get(4, 4)]
    Bs = [R.get(4, 4), R.get(4, 4)]
    twc = R.get(8)
    tws = R.get(8)
    A2 = R.get(4, 4)
    A2n = R.get(4, 4)
    R8 = R.get(2, 2)
    za = R.get(4, 4)
    Dre = [R.get(4, 4), R.get(4, 4)]
    Dim = [R.get(4, 4), R.get(4, 4)]
    P = [R.get(4, 4), R.get(4, 4)]
    Z = [R.get(4, 4), R.get(4, 4)]
    Zn = R.get(4, 4)
    ang = R.get(8)
    gf, jf = R.get(), R.get()
    A("s_cmp_ge_u32 s2, 256")
    A("s_cbranch_scc1 LA_end")
    stamp(A, 0)
    A("s_load_dwordx2 s[4:5], s[0:1], 0")
    A("s_load_dwordx2 s[6:7], s[0:1], 72")
    A(f"v_and_b32 v{lane}, 63, v0")
    A(f"v_lshrrev_b32 v{w}, 6, v0")
    A(f"v_lshrrev_b32 v{g}, 4, v{lane}")
    A(f"v_and_b32 v{j}, 15, v{lane}")
    A(f"v_lshlrev_b32 v{t0}, 18, v{w}")
    A(f"v_lshl_add_u32 v{t0}, v{lane}, 4, v{t0}")
    A("s_lshl_b32 s16, s2, 10")
    A("s_waitcnt lgkmcnt(0)")
    srd(A, 8, 4, 2 * MB)
    srd(A, 12, 6, 2 * MB, OFF_U)
    A(f"buffer_load_dwordx4 {vr(xr,4)}, v{t0}, s[8:11], s16 offen")
    A(f"v_cvt_f32_u32 v{gf}, v{g}")
    A(f"v_cvt_f32_u32 v{jf}, v{j}")
    A(f"v_mul_f32 v{gf}, 4.0, v{gf}")
    A(f"v_mul_f32 v{t1}, {fhex(1/32)}, v{jf}")
    for e in range(8):
        a_add = e if e < 4 else 12 + e
        A(f"v_add_f32 v{t2}, {fhex(float(a_add))}, v{gf}")
        A(f"v_mul_f32 v{ang+e}, v{t2}, v{t1}")
    for e in range(8):
        A(f"v_cos_f32 v{twc+e}, v{ang+e}")
        A(f"v_sin_f32 v{tws+e}, v{ang+e}")
    for q in range(4):
        A(f"v_cvt_pk_bf16_f32 v{Bc[0]+q}, v{twc+2*q}, v{twc+2*q+1}")
        A(f"v_cvt_pk_bf16_f32 v{Bs[0]+q}, -v{tws+2*q}, -v{tws+2*q+1}")
    for q in range(4):
        A(f"v_xor_b32 v{Bc[1]+q}, 0x80000000, v{Bc[0]+q}")
        A(f"v_xor_b32 v{Bs[1]+q}, 0x80000000, v{Bs[0]+q}")
    A(f"v_lshrrev_b32 v{t2}, 1, v{j}")
    A(f"v_cvt_f32_u32 v{t2}, v{t2}")
    A(f"v_and_b32 v{t3}, 1, v{j}")
    A(f"v_cvt_f32_u32 v{t3}, v{t3}")
    A(f"v_mul_f32 v{t3}, {fhex(0.25)}, v{t3}")
    A(f"v_mul_f32 v{t1}, {fhex(1/16)}, v{t2}")
    for q in range(4):
        A(f"v_add_f32 v{ang+q}, {fhex(float(q))}, v{gf}")
        A(f"v_fma_f32 v{ang+q}, v{ang+q}, v{t1}, v{t3}")
    A(f"v_cvt_f32_u32 v{t0}, s2")
    A(f"v_mul_f32 v{t1}, {fhex(1/2048)}, v{t2}")
    A(f"v_fmamk_f32 v{t0}, v{gf}, {fhex(128.0)}, v{t0}")
    A(f"v_fma_f32 v{ang+4}, v{t0}, v{t1}, v{t3}")
    A(f"v_add_f32 v{t0}, {fhex(256.0)}, v{t0}")
    A(f"v_fma_f32 v{ang+5}, v{t0}, v{t1}, v{t3}")
    for q in range(6):
        A(f"v_cos_f32 v{twc+q}, v{ang+q}")
        A(f"v_sin_f32 v{tws+q}, v{ang+q}")
    for q in range(4):
        A(f"v_cvt_pk_bf16_f32 v{A2+q}, v{twc+q}, v{tws+q}")
    for p in range(2):
        A(f"v_cvt_pk_bf16_f32 v{R8+p}, v{twc+4+p}, v{tws+4+p}")
    for q in range(4):
        A(f"v_mov_b32 v{A2n+q}, {0x3F80 if q % 2 == 0 else 0xBF80:#x}")
    for t in range(2):
        A(f"v_add_f32 v{t1}, {fhex(16.0*t)}, v{jf}")
        A(f"v_mul_f32 v{t1}, {fhex(1/512)}, v{t1}")
        for r in range(4):
            A(f"v_add_f32 v{t2}, {fhex(float(r))}, v{gf}")
            A(f"v_mul_f32 v{ang+4*t+r}, v{t2}, v{t1}")
    for e in range(8):
        A(f"v_cos_f32 v{twc+e}, v{ang+e}")
        A(f"v_sin_f32 v{tws+e}, v{ang+e}")
    lz, lzr, lw, lr, so = ang, ang + 1, ang + 2, ang + 3, ang + 4
    ZL = 8192
    A(f"v_lshlrev_b32 v{lz}, 4, v0")
    A(f"v_lshlrev_b32 v{lzr}, 10, v{w}")
    A(f"v_lshl_add_u32 v{lzr}, v{lane}, 3, v{lzr}")
    A(f"v_mul_u32_u24 v{lw}, {ZROW}, v{w}")
    A(f"v_lshl_add_u32 v{lw}, v{g}, 6, v{lw}")
    A(f"v_add_lshl_u32 v{lw}, v{lw}, v{j}, 2")
    A(f"v_mul_u32_u24 v{lr}, {2*ZROW}, v{g}")
    A(f"v_lshl_add_u32 v{lr}, v{w}, 5, v{lr}")
    A(f"v_lshl_add_u32 v{lr}, v{j}, 1, v{lr}")
    A(f"v_lshlrev_b32 v{lr}, 2, v{lr}")
    A(f"v_lshlrev_b32 v{so}, 11, v{g}")
    A(f"v_lshl_add_u32 v{so}, v{w}, 7, v{so}")
    A(f"v_lshl_add_u32 v{so}, v{j}, 3, v{so}")
    A("s_lshl_b32 s16, s2, 13")
    stamp(A, 1)
    A("s_waitcnt vmcnt(0)")
    stamp(A, 2)
    for i in range(4):
        A(f"v_lshlrev_b32 v{xf+2*i}, 16, v{xr+i}")
        A(f"v_and_b32 v{xf+2*i+1}, 0xffff0000, v{xr+i}")
    layernorm8(A, xf, t0, t1, t2, 17, xr)
    A(f"ds_write_b128 v{lz}, {vr(xr,4)}")
    A("s_waitcnt lgkmcnt(0)")
    A(f"ds_read_b64_tr_b16 {vr(za,2)}, v{lzr}")
    A(f"ds_read_b64_tr_b16 {vr(za+2,2)}, v{lzr} offset:512")
    A("s_waitcnt lgkmcnt(0)")
    for t in range(2):
        A(f"v_mfma_f32_16x16x32_bf16 {vr(Dre[t],4)}, {vr(za,4)}, {vr(Bc[t],4)}, 0")
        A(f"v_mfma_f32_16x16x32_bf16 {vr(Dim[t],4)}, {vr(za,4)}, {vr(Bs[t],4)}, 0")
    for t in range(2):
        for r in range(4):
            c, s = twc + 4 * t + r, tws + 4 * t + r
            re, im = Dre[t] + r, Dim[t] + r
            A(f"v_mul_f32 v{t0}, v{re}, v{c}")
            A(f"v_mul_f32 v{t1}, v{im}, v{c}")
            A(f"v_fmac_f32 v{t0}, v{im}, v{s}")
            A(f"v_fma_f32 v{t1}, -v{re}, v{s}, v{t1}")
            A(f"v_cvt_pk_bf16_f32 v{P[t]+r}, v{t0}, v{t1}")
        A(f"v_mfma_f32_16x16x32_bf16 {vr(Z[t],4)}, {vr(A2,4)}, {vr(P[t],4)}, 0")
        if t == 0:
            A(f"v_mfma_f32_16x16x32_bf16 {vr(Zn,4)}, {vr(A2n,4)}, {vr(P[0],4)}, 0")
    A(f"v_cmp_eq_u32 vcc, 0, v{lane}")
    A(f"v_cndmask_b32 v{Z[0]}, v{Z[0]}, v{Zn}, vcc")
    for t in range(2):
        for p in range(2):
            A(f"v_cvt_pk_bf16_f32 v{P[t]+p}, v{Z[t]+2*p}, v{Z[t]+2*p+1}")
    for t in range(2):
        for p in range(2):
            A(f"ds_write_b32 v{lw}, v{P[t]+p} offset:{ZL + (16*t+32*p)*4}")
    A("s_waitcnt lgkmcnt(0)")
    A("s_barrier")
    A(f"ds_read_b64 {vr(za,2)}, v{lr} offset:{ZL}")
    A(f"ds_read_b64 {vr(za+2,2)}, v{lr} offset:{ZL + ZROW*4}")
    A("s_waitcnt lgkmcnt(0)")
    A(f"v_swap_b32 v{za+1}, v{za+2}")
    for u in range(2):
        A(f"v_mfma_f32_16x16x16_bf16 {vr(Z[u],4)}, {vr(R8,2)}, {vr(za+2*u,2)}, 0")
    for p in range(2):
        for u in range(2):
            A(f"v_cvt_pk_bf16_f32 v{P[0]+2*p+u}, v{Z[u]+2*p}, v{Z[u]+2*p+1}")
    for p in range(2):
        A(f"buffer_store_dwordx2 {vr(P[0]+2*p,2)}, v{so}, s[12:15], s16 offen offset:{1024*p}")
    stamp(A, 3)
    stamp_flush(A, 0, 4, 6, t0, t1)
    A.label("LA_end")
    A("s_endpgm")
    return name, A.finalize(), R.hi, (256, 512, 8192 + 8 * ZROW * 4)


def gen_B():
    A = Asm()
    name = "kb_kernel"
    kernel_header(A, name)
    R = RA(1)
    lane, g, j = R.get(), R.get(), R.get()
    t0, t1, t2, t3 = R.get(), R.get(), R.get(), R.get()
    uo, wo = R.get(), R.get()
    In = R.get(16, 4)
    Wr = R.get(12, 2)
    Wi = R.get(12, 2)
    Wn = R.get(8)
    Fre, Fim, Gre, Gim = R.get(4, 4), R.get(4, 4), R.get(4, 4), R.get(4, 4)
    twc, tws = R.get(4), R.get(4)
    Dre = R.get(16, 4)
    Dim = R.get(16, 4)
    Out = R.get(16, 4)
    ang = R.get(4)
    gf, jf = R.get(), R.get()
    A("s_cmp_ge_u32 s2, 256")
    A("s_cbranch_scc1 LB_end")
    stamp(A, 0)
    A("s_load_dwordx4 s[4:7], s[0:1], 8")
    A("s_load_dwordx2 s[8:9], s[0:1], 72")
    A(f"v_and_b32 v{lane}, 63, v0")
    A(f"v_lshrrev_b32 v{t0}, 6, v0")
    A(f"v_lshrrev_b32 v{g}, 4, v{lane}")
    A(f"v_and_b32 v{j}, 15, v{lane}")
    A(f"v_readfirstlane_b32 s30, v{t0}")
    A("s_and_b32 s31, s2, 7")
    A("s_lshr_b32 s32, s2, 3")
    A("s_lshl_b32 s32, s32, 1")
    A("s_add_u32 s32, s32, s30")
    A(f"v_lshl_add_u32 v{uo}, v{g}, 6, v{j}")
    A(f"v_lshlrev_b32 v{uo}, 13, v{uo}")
    A("s_lshl_b32 s33, s31, 10")
    A("s_lshl_b32 s34, s32, 4")
    A("s_add_u32 s33, s33, s34")
    A("s_add_u32 s34, s33, 0x20000")
    A("s_add_u32 s35, s33, 0x40000")
    A("s_add_u32 s36, s33, 0x60000")
    A(f"v_lshl_add_u32 v{wo}, v{g}, 6, v{j}")
    A(f"v_mul_u32_u24 v{wo}, {514*8}, v{wo}")
    A("s_mul_i32 s37, s31, 514")
    A("s_lshl_b32 s38, s32, 3")
    A("s_add_u32 s42, s37, 512")
    A("s_add_u32 s37, s37, s38")
    A("s_and_b32 s41, s37, 2")
    A("s_lshl_b32 s41, s41, 3")
    A("s_and_b32 s37, s37, 0xfffffffc")
    for r in range(1, 4):
        A(f"s_add_u32 s{37+r}, s37, {514*128*r}")
    A("s_waitcnt lgkmcnt(0)")
    srd(A, 12, 8, 2 * MB, OFF_U)
    srd(A, 16, 4, W_BYTES)
    srd(A, 20, 6, W_BYTES)
    srd(A, 24, 8, 2 * MB, OFF_V)
    for q in range(4):
        A(f"buffer_load_dwordx4 {vr(In+4*q,4)}, v{uo}, s[12:15], s{33+q} offen")
    for r in range(4):
        A(f"buffer_load_dwordx3 {vr(Dre+4*r,3)}, v{wo}, s[16:19], s{37+r} offen")
        A(f"buffer_load_dwordx3 {vr(Dim+4*r,3)}, v{wo}, s[20:23], s{37+r} offen")
    A("s_cmp_lg_u32 s32, 0")
    A("s_cbranch_scc1 LB_nonyq")
    for r in range(4):
        A(f"buffer_load_ushort v{Wn+r}, v{wo}, s[16:19], s42 offen")
        A(f"buffer_load_ushort v{Wn+4+r}, v{wo}, s[20:23], s42 offen")
        if r < 3:
            A(f"s_add_u32 s42, s42, {514*128}")
    A.label("LB_nonyq")
    A(f"v_cvt_f32_u32 v{gf}, v{g}")
    A(f"v_cvt_f32_u32 v{jf}, v{j}")
    A(f"v_mul_f32 v{gf}, 4.0, v{gf}")
    A(f"v_mul_f32 v{t1}, {fhex(1/16)}, v{jf}")
    for q in range(4):
        A(f"v_add_f32 v{t2}, {fhex(float(q))}, v{gf}")
        A(f"v_mul_f32 v{ang+q}, v{t2}, v{t1}")
    for q in range(4):
        A(f"v_cos_f32 v{twc+q}, v{ang+q}")
        A(f"v_sin_f32 v{tws+q}, v{ang+q}")
    for q in range(4):
        A(f"v_cvt_pk_bf16_f32 v{Fre+q}, v{twc+q}, v{tws+q}")
        A(f"v_cvt_pk_bf16_f32 v{Fim+q}, -v{tws+q}, v{twc+q}")
        A(f"v_cvt_pk_bf16_f32 v{Gre+q}, v{twc+q}, -v{tws+q}")
        A(f"v_cvt_pk_bf16_f32 v{Gim+q}, v{tws+q}, v{twc+q}")
    for q in range(4):
        A(f"v_mul_f32 v{ang+q}, {fhex(1/16)}, v{ang+q}")
    for q in range(4):
        A(f"v_cos_f32 v{twc+q}, v{ang+q}")
        A(f"v_sin_f32 v{tws+q}, v{ang+q}")
    stamp(A, 1)
    A("s_waitcnt vmcnt(0)")
    stamp(A, 2)
    for r in range(4):
        for (dst, src) in ((Wr, Dre), (Wi, Dim)):
            A(f"v_alignbit_b32 v{dst+2*r}, v{src+4*r+1}, v{src+4*r}, s41")
            A(f"v_alignbit_b32 v{dst+2*r+1}, v{src+4*r+2}, v{src+4*r+1}, s41")
    A("s_cmp_lg_u32 s32, 0")
    A("s_cbranch_scc1 LB_nonyq2")
    A("s_mov_b32 s43, 0xffff0000")
    for r in range(4):
        A(f"v_and_or_b32 v{Wr+2*r}, v{Wr+2*r}, s43, v{Wn+r}")
        A(f"v_and_or_b32 v{Wi+2*r}, v{Wi+2*r}, s43, v{Wn+4+r}")
    A.label("LB_nonyq2")
    for a in range(4):
        for b in range(a + 1, 4):
            A(f"v_swap_b32 v{In+4*a+b}, v{In+4*b+a}")

    def cmul_pack(dst, re, im, c, s, conj):
        A(f"v_mul_f32 v{t0}, v{re}, v{c}")
        A(f"v_mul_f32 v{t1}, v{im}, v{c}")
        if conj:
            A(f"v_fmac_f32 v{t0}, v{im}, v{s}")
            A(f"v_fma_f32 v{t1}, -v{re}, v{s}, v{t1}")
        else:
            A(f"v_fma_f32 v{t0}, -v{im}, v{s}, v{t0}")
            A(f"v_fmac_f32 v{t1}, v{re}, v{s}")
        A(f"v_cvt_pk_bf16_f32 v{dst}, v{t0}, v{t1}")

    mf = "v_mfma_f32_16x16x32_bf16"
    for kk in range(4):
        A(f"{mf} {vr(Dre+4*kk,4)}, {vr(In+4*kk,4)}, {vr(Fre,4)}, 0")
        A(f"{mf} {vr(Dim+4*kk,4)}, {vr(In+4*kk,4)}, {vr(Fim,4)}, 0")
    for kk in range(4):
        for r in range(4):
            cmul_pack(In + 4 * kk + r, Dre + 4 * kk + r, Dim + 4 * kk + r, twc + r, tws + r, True)
        A(f"{mf} {vr(Dre+4*kk,4)}, {vr(Fre,4)}, {vr(In+4*kk,4)}, 0")
        A(f"{mf} {vr(Dim+4*kk,4)}, {vr(Fim,4)}, {vr(In+4*kk,4)}, 0")
    for kk in range(4):
        for r in range(4):
            for (dst, src) in ((t2, Wr), (t3, Wi)):
                if kk % 2 == 0:
                    A(f"v_lshlrev_b32 v{dst}, 16, v{src+2*r+kk//2}")
                else:
                    A(f"v_and_b32 v{dst}, 0xffff0000, v{src+2*r+kk//2}")
            cmul_pack(In + 4 * kk + r, Dre + 4 * kk + r, Dim + 4 * kk + r, t2, t3, False)
        A(f"{mf} {vr(Dre+4*kk,4)}, {vr(In+4*kk,4)}, {vr(Gre,4)}, 0")
        A(f"{mf} {vr(Dim+4*kk,4)}, {vr(In+4*kk,4)}, {vr(Gim,4)}, 0")
    for kk in range(4):
        for r in range(4):
            cmul_pack(In + 4 * kk + r, Dre + 4 * kk + r, Dim + 4 * kk + r, twc + r, tws + r, False)
        A(f"{mf} {vr(Dre+4*kk,4)}, {vr(Gre,4)}, {vr(In+4*kk,4)}, 0")
        A(f"{mf} {vr(Dim+4*kk,4)}, {vr(Gim,4)}, {vr(In+4*kk,4)}, 0")
    for kk in range(4):
        for r in range(4):
            A(f"v_cvt_pk_bf16_f32 v{Out+4*r+kk}, v{Dre+4*kk+r}, v{Dim+4*kk+r}")
    for q in range(4):
        A(f"buffer_store_dwordx4 {vr(Out+4*q,4)}, v{uo}, s[24:27], s{33+q} offen")
    stamp(A, 3)
    stamp_flush(A, 1, 4, 8, t0, t1)
    A.label("LB_end")
    A("s_endpgm")
    return name, A.finalize(), R.hi, (256, 128, 0)


def gen_C():
    A = Asm()
    name = "kc_kernel"
    kernel_header(A, name)
    R = RA(1)
    lane, g, j, w = R.get(), R.get(), R.get(), R.get()
    t0, t1, t2, t3 = R.get(), R.get(), R.get(), R.get()
    L = R.get(4, 4)
    xr = R.get(4, 4)
    xf = R.get(8, 4)
    R8 = R.get(2, 2)
    B1re, B1im = R.get(2, 2), R.get(2, 2)
    B2 = [[R.get(4, 4), R.get(4, 4)], [R.get(4, 4), R.get(4, 4)]]
    twc, tws = R.get(8), R.get(8)
    Dre = [R.get(4, 4), R.get(4, 4)]
    Dim = [R.get(4, 4), R.get(4, 4)]
    P = [R.get(4, 4), R.get(4, 4)]
    Y = [R.get(4, 4), R.get(4, 4)]
    ang = R.get(8)
    gf, jf = R.get(), R.get()
    xo = R.get()
    A("s_cmp_ge_u32 s2, 256")
    A("s_cbranch_scc1 LC_end")
    stamp(A, 0)
    A("s_load_dwordx2 s[4:5], s[0:1], 0")
    A("s_load_dwordx2 s[6:7], s[0:1], 72")
    A(f"v_and_b32 v{lane}, 63, v0")
    A(f"v_lshrrev_b32 v{w}, 6, v0")
    A(f"v_lshrrev_b32 v{g}, 4, v{lane}")
    A(f"v_and_b32 v{j}, 15, v{lane}")
    A(f"v_lshlrev_b32 v{t0}, 11, v{g}")
    A(f"v_lshl_add_u32 v{t0}, v{w}, 7, v{t0}")
    A(f"v_lshl_add_u32 v{t0}, v{j}, 3, v{t0}")
    A("s_lshl_b32 s16, s2, 13")
    A(f"v_lshlrev_b32 v{xo}, 18, v{w}")
    A(f"v_lshl_add_u32 v{xo}, v{j}, 5, v{xo}")
    A(f"v_lshl_add_u32 v{xo}, v{g}, 3, v{xo}")
    A("s_lshl_b32 s18, s2, 10")
    A("s_waitcnt lgkmcnt(0)")
    srd(A, 8, 4, 2 * MB)
    srd(A, 12, 6, 2 * MB, OFF_V)
    srd(A, 20, 6, 2 * MB, OFF_H)
    srd(A, 24, 6, 2 * MB, OFF_LN)
    for p in range(2):
        A(f"buffer_load_dwordx2 {vr(L+2*p,2)}, v{t0}, s[12:15], s16 offen offset:{1024*p}")
    for u in range(2):
        A(f"buffer_load_dwordx2 {vr(xr+2*u,2)}, v{xo}, s[8:11], s18 offen offset:{512*u}")
    A(f"v_cvt_f32_u32 v{gf}, v{g}")
    A(f"v_cvt_f32_u32 v{jf}, v{j}")
    A(f"v_lshrrev_b32 v{t2}, 1, v{j}")
    A(f"v_cvt_f32_u32 v{t2}, v{t2}")
    A(f"v_and_b32 v{t3}, 1, v{j}")
    A(f"v_cvt_f32_u32 v{t3}, v{t3}")
    A(f"v_mul_f32 v{t3}, {fhex(-0.25)}, v{t3}")
    A(f"v_cvt_f32_u32 v{t0}, s2")
    A(f"v_fmamk_f32 v{t0}, v{t2}, {fhex(256.0)}, v{t0}")
    A(f"v_mul_f32 v{t0}, {fhex(1/2048)}, v{t0}")
    A(f"v_add_f32 v{t1}, v{gf}, v{gf}")
    A(f"v_fma_f32 v{ang}, v{t1}, v{t0}, v{t3}")
    A(f"v_add_f32 v{ang+1}, v{ang}, v{t0}")
    A(f"v_mul_f32 v{t0}, {fhex(1/16)}, v{jf}")
    A(f"v_mul_f32 v{ang+2}, v{t1}, v{t0}")
    A(f"v_add_f32 v{ang+3}, v{ang+2}, v{t0}")
    A(f"v_mul_f32 v{gf}, 4.0, v{gf}")
    A(f"v_mul_f32 v{t0}, {fhex(1/32)}, v{jf}")
    for r in range(4):
        A(f"v_add_f32 v{t2}, {fhex(float(r))}, v{gf}")
        A(f"v_mul_f32 v{ang+4+r}, v{t2}, v{t0}")
    for e in range(8):
        A(f"v_cos_f32 v{twc+e}, v{ang+e}")
        A(f"v_sin_f32 v{tws+e}, v{ang+e}")
    for p in range(2):
        A(f"v_cvt_pk_bf16_f32 v{R8+p}, v{twc+p}, -v{tws+p}")
        A(f"v_cvt_pk_bf16_f32 v{B1re+p}, v{twc+2+p}, -v{tws+2+p}")
        A(f"v_cvt_pk_bf16_f32 v{B1im+p}, v{tws+2+p}, v{twc+2+p}")
    for r in range(4):
        A(f"v_cvt_pk_bf16_f32 v{B2[0][0]+r}, v{twc+4+r}, -v{tws+4+r}")
    A(f"v_and_b32 v{t3}, 1, v{j}")
    A(f"v_mul_u32_u24 v{t3}, 0x8000, v{t3}")
    A(f"v_lshl_or_b32 v{t3}, v{t3}, 16, v{t3}")
    for r in range(4):
        A(f"v_xor_b32 v{B2[1][0]+r}, v{t3}, v{B2[0][0]+r}")
    for t in range(2):
        for r in range(4):
            if r % 2:
                A(f"v_xor_b32 v{B2[t][1]+r}, 0x80008000, v{B2[t][0]+r}")
            else:
                A(f"v_mov_b32 v{B2[t][1]+r}, v{B2[t][0]+r}")
    A(f"v_mul_f32 v{t0}, {fhex(1/512)}, v{jf}")
    for t in range(2):
        for r in range(4):
            A(f"v_add_f32 v{t2}, {fhex(float(16*t+r))}, v{gf}")
            A(f"v_mul_f32 v{ang+4*t+r}, v{t2}, v{t0}")
    for e in range(8):
        A(f"v_cos_f32 v{twc+e}, v{ang+e}")
        A(f"v_sin_f32 v{tws+e}, v{ang+e}")
    for e in range(8):
        A(f"v_mul_f32 v{twc+e}, {fhex(2.0**-19)}, v{twc+e}")
        A(f"v_mul_f32 v{tws+e}, {fhex(2.0**-19)}, v{tws+e}")
    lw, lr = ang, ang + 1
    A(f"v_mul_u32_u24 v{lw}, {2*ZROW}, v{g}")
    A(f"v_lshl_add_u32 v{lw}, v{w}, 5, v{lw}")
    A(f"v_lshl_add_u32 v{lw}, v{j}, 1, v{lw}")
    A(f"v_lshlrev_b32 v{lw}, 2, v{lw}")
    A(f"v_mul_u32_u24 v{lr}, {ZROW}, v{w}")
    A(f"v_lshl_add_u32 v{lr}, v{g}, 6, v{lr}")
    A(f"v_add_lshl_u32 v{lr}, v{lr}, v{j}, 2")
    stamp(A, 1)
    A("s_waitcnt vmcnt(2)")
    stamp(A, 2)
    A(f"v_swap_b32 v{L+1}, v{L+2}")
    for u in range(2):
        A(f"v_mfma_f32_16x16x16_bf16 {vr(Y[u],4)}, {vr(R8,2)}, {vr(L+2*u,2)}, 0")
    for p in range(2):
        for u in range(2):
            A(f"v_cvt_pk_bf16_f32 v{P[0]+2*p+u}, v{Y[u]+2*p}, v{Y[u]+2*p+1}")
    for p in range(2):
        A(f"ds_write_b64 v{lw}, {vr(P[0]+2*p,2)} offset:{ZROW*4*p}")
    A("s_waitcnt lgkmcnt(0)")
    A("s_barrier")
    for t in range(2):
        A(f"ds_read2_b32 {vr(L+2*t,2)}, v{lr} offset0:{16*t} offset1:{16*t+32}")
    A("s_waitcnt lgkmcnt(0)")
    A(f"v_readlane_b32 s17, v{L}, 0")
    A(f"v_cmp_ne_u32 vcc, 0, v{lane}")
    A(f"v_cndmask_b32 v{L}, 0, v{L}, vcc")
    A("s_lshl_b32 s17, s17, 16")
    for t in range(2):
        A(f"v_mfma_f32_16x16x16_bf16 {vr(Dre[t],4)}, {vr(L+2*t,2)}, {vr(B1re,2)}, 0")
        A(f"v_mfma_f32_16x16x16_bf16 {vr(Dim[t],4)}, {vr(L+2*t,2)}, {vr(B1im,2)}, 0")
    A(f"v_mov_b32 v{t0}, {fhex(2.0**-20)}")
    A(f"v_mul_f32 v{t0}, s17, v{t0}")
    for u in range(2):
        for r in range(4):
            if r % 2:
                A(f"v_sub_f32 v{Y[u]+r}, 0, v{t0}")
            else:
                A(f"v_mov_b32 v{Y[u]+r}, v{t0}")
    for t in range(2):
        for r in range(4):
            c, s = twc + 4 * t + r, tws + 4 * t + r
            re, im = Dre[t] + r, Dim[t] + r
            A(f"v_mul_f32 v{t0}, v{re}, v{c}")
            A(f"v_mul_f32 v{t1}, v{im}, v{c}")
            A(f"v_fma_f32 v{t0}, -v{im}, v{s}, v{t0}")
            A(f"v_fmac_f32 v{t1}, v{re}, v{s}")
            A(f"v_cvt_pk_bf16_f32 v{P[t]+r}, v{t0}, v{t1}")
        for u in range(2):
            A(f"v_mfma_f32_16x16x32_bf16 {vr(Y[u],4)}, {vr(P[t],4)}, {vr(B2[t][u],4)}, {vr(Y[u],4)}")
    A("s_waitcnt vmcnt(0)")
    for i in range(4):
        A(f"v_lshlrev_b32 v{xf+2*i}, 16, v{xr+i}")
        A(f"v_and_b32 v{xf+2*i+1}, 0xffff0000, v{xr+i}")
    for u in range(2):
        for p in range(2):
            A(f"v_cvt_pk_bf16_f32 v{P[0]+2*u+p}, v{Y[u]+2*p}, v{Y[u]+2*p+1}")
    for i in range(4):
        A(f"v_lshlrev_b32 v{t0}, 16, v{P[0]+i}")
        A(f"v_and_b32 v{t1}, 0xffff0000, v{P[0]+i}")
        A(f"v_add_f32 v{xf+2*i}, v{xf+2*i}, v{t0}")
        A(f"v_add_f32 v{xf+2*i+1}, v{xf+2*i+1}, v{t1}")
        A(f"v_cvt_pk_bf16_f32 v{xr+i}, v{xf+2*i}, v{xf+2*i+1}")
    for u in range(2):
        A(f"buffer_store_dwordx2 {vr(xr+2*u,2)}, v{xo}, s[20:23], s18 offen offset:{512*u}")
    for i in range(4):
        A(f"v_lshlrev_b32 v{xf+2*i}, 16, v{xr+i}")
        A(f"v_and_b32 v{xf+2*i+1}, 0xffff0000, v{xr+i}")
    layernorm8(A, xf, t0, t1, t2, 17, P[1])
    A(f"v_lshrrev_b32 v{t0}, 2, v{j}")
    A(f"v_lshlrev_b32 v{t0}, 14, v{t0}")
    A(f"v_bfe_u32 v{t1}, v{j}, 1, 1")
    A(f"v_lshl_add_u32 v{t0}, v{t1}, 10, v{t0}")
    A(f"v_and_b32 v{t1}, 1, v{j}")
    A(f"v_lshl_add_u32 v{t0}, v{t1}, 9, v{t0}")
    A(f"v_lshrrev_b32 v{t1}, 1, v{g}")
    A(f"v_lshl_add_u32 v{t0}, v{t1}, 8, v{t0}")
    A(f"v_and_b32 v{t1}, 1, v{g}")
    A(f"v_lshl_add_u32 v{t0}, v{t1}, 3, v{t0}")
    A(f"v_lshl_add_u32 v{t0}, v{w}, 4, v{t0}")
    A("s_lshr_b32 s28, s2, 4")
    A("s_lshl_b32 s28, s28, 17")
    A("s_bfe_u32 s29, s2, 0x30001")
    A("s_lshl_b32 s29, s29, 11")
    A("s_add_u32 s28, s28, s29")
    A("s_and_b32 s29, s2, 1")
    A("s_lshl_b32 s29, s29, 7")
    A("s_add_u32 s28, s28, s29")
    A("s_add_u32 s29, s28, 0x10000")
    for u in range(2):
        A(f"buffer_store_dwordx2 {vr(P[1]+2*u,2)}, v{t0}, s[24:27], s{28+u} offen")
    stamp(A, 3)
    stamp_flush(A, 2, 4, 6, t0, t1)
    A.label("LC_end")
    A("s_endpgm")
    return name, A.finalize(), R.hi, (256, 512, 8 * ZROW * 4)


HEADER = """; Pre-LN GFNet spectral filter + residual, pre-LN GEGLU FFN + residual (S=2048, D=512, F=1376).
"""


def build(kernels, launches=None):
    out = HEADER
    if launches is None:
        launches = [k[0] for k in kernels]
    kd = {k[0]: k for k in kernels}
    for n in launches:
        name, body, nv, (gx, bx, lds) = kd[n][:4]
        out += f"; @launch kernel={name} grid=({gx},1,1) block=({bx},1,1) lds={lds}\n"
    out += '.amdgcn_target "amdgcn-amd-amdhsa--gfx950"\n'
    for k in kernels:
        out += k[1]
    for k in kernels:
        ag = k[4] if len(k) > 4 else 0
        out += kernel_desc(k[0], k[2], agprs=ag)
    return out


if __name__ == "__main__":
    ks = [gen_A(), gen_B(), gen_C()]
    try:
        from gen_ffn import gen_D, gen_E
        ks += [gen_D(), gen_E()]
    except ImportError:
        pass
    path = sys.argv[1] if len(sys.argv) > 1 else f"cdna_kernels/{NAME}.s"
    open(path, "w").write(build(ks))
    for k in ks:
        print(k[0], "vgprs", k[2], k[3], "lines", k[1].count("\n"))
```

```python
import sys, math
sys.path.insert(0, "work")
from asmlib import Asm, fhex
from gen import *

HH_BYTES = 128 * 43 * 1024
GC = math.sqrt(2.0 / math.pi)
LOG2E = math.log2(math.e)
K0 = -2.0 * GC * LOG2E
K1 = K0 * 0.044715


def ar(a, n=1):
    return "a%d" % a if n == 1 else "a[%d:%d]" % (a, a + n - 1)


def interleave(A, main, side, start=0, every=1):
    si = 0
    for i, m in enumerate(main):
        A(m)
        if i >= start and (i - start) % every == 0 and si < len(side):
            s = side[si]
            si += 1
            for x in (s if isinstance(s, list) else [s]):
                A(x)
    while si < len(side):
        s = side[si]
        si += 1
        for x in (s if isinstance(s, list) else [s]):
            A(x)


def gen_D():
    A = Asm()
    name = "kd_kernel"
    kernel_header(A, name)
    R = RA(1)
    lane, g, j = R.get(), R.get(), R.get()
    t0, t1, t2, t3 = R.get(), R.get(), R.get(), R.get()
    va, vw = R.get(), R.get()
    ra = R.get()
    rw = [R.get(3), R.get(3)]
    so = R.get()
    Fx = [R.get(16, 4), R.get(16, 4)]
    Fw = [R.get(24, 4), R.get(24, 4)]
    acc = R.get(96, 4)
    tmp = R.get(16, 4)
    WB = 65536
    A("s_cmp_ge_u32 s2, 256")
    A("s_cbranch_scc1 LD_end")
    A("s_and_b32 s30, s2, 7")
    A("s_lshr_b32 s31, s2, 3")
    A("s_and_b32 s32, s30, 1")
    A("s_lshl_b32 s32, s32, 3")
    A("s_and_b32 s33, s31, 7")
    A("s_add_u32 s32, s32, s33")
    A("s_lshr_b32 s33, s30, 1")
    A("s_lshl_b32 s33, s33, 2")
    A("s_lshr_b32 s34, s31, 3")
    A("s_add_u32 s33, s33, s34")
    A("s_cmp_ge_u32 s33, 15")
    A("s_cbranch_scc1 LD_end")
    stamp(A, 0)
    stamp_clk(A, 12)
    A("s_load_dwordx4 s[4:7], s[0:1], 32")
    A("s_load_dwordx2 s[8:9], s[0:1], 72")
    A(f"v_and_b32 v{lane}, 63, v0")
    A(f"v_lshrrev_b32 v{t0}, 6, v0")
    A(f"v_lshrrev_b32 v{g}, 4, v{lane}")
    A(f"v_and_b32 v{j}, 15, v{lane}")
    A(f"v_readfirstlane_b32 s35, v{t0}")
    A(f"v_lshlrev_b32 v{va}, 4, v{lane}")
    A(f"v_lshrrev_b32 v{t0}, 2, v{lane}")
    A(f"v_mul_u32_u24 v{vw}, 2752, v{t0}")
    A(f"v_lshrrev_b32 v{t1}, 4, v{lane}")
    A(f"v_and_b32 v{t1}, 2, v{t1}")
    A(f"v_and_b32 v{t2}, 3, v{lane}")
    A(f"v_xor_b32 v{t1}, v{t1}, v{t2}")
    A(f"v_lshl_add_u32 v{vw}, v{t1}, 4, v{vw}")
    A("s_lshl_b32 s36, s32, 17")
    A("s_lshl_b32 s37, s35, 12")
    A("s_add_u32 s36, s36, s37")
    A(f"s_mul_i32 s38, s35, {16*2752}")
    A("s_mul_i32 s39, s33, 192")
    A("s_add_u32 s38, s38, s39")
    A("s_lshl_b32 s40, s35, 10")
    A(f"s_add_u32 s40, s40, {WB}")
    A("s_waitcnt lgkmcnt(0)")
    srd(A, 12, 8, 2 * MB, OFF_LN)
    srd(A, 16, 4, WG_BYTES)
    srd(A, 20, 6, WG_BYTES)
    srd(A, 24, 8, HH_BYTES, OFF_HH)

    def dma(kc):
        st = kc % 4
        out = []
        out.append([f"s_add_u32 m0, s37, {st*16384}", f"s_add_u32 s41, s36, {kc*16384}",
                    f"buffer_load_dwordx4 v{va}, s[12:15], s41 offen lds"])
        for i in range(1, 4):
            out.append([f"buffer_load_dwordx4 v{va}, s[12:15], s41 offen offset:{1024*i} lds"])
        first = True
        for mat in range(2):
            for cp in range(3):
                x = []
                if first:
                    x.append(f"s_add_u32 s42, s38, {kc*64*2752}")
                    first = False
                x.append(f"s_add_u32 m0, s40, {st*24576 + mat*12288 + cp*4096 - cp*64}")
                x.append(f"buffer_load_dwordx4 v{vw}, s[{16+4*mat}:{19+4*mat}], s42 offen offset:{cp*64} lds")
                out.append(x)
        return out

    for kc in range(4):
        for x in dma(kc):
            for y in x:
                A(y)
    A("s_lshr_b32 s43, s35, 1")
    A("s_and_b32 s44, s35, 1")
    A("s_lshl_b32 s45, s43, 13")
    A(f"v_lshl_add_u32 v{ra}, v{lane}, 4, s45")
    A(f"v_lshrrev_b32 v{t0}, 1, v{g}")
    A(f"v_lshlrev_b32 v{t0}, 10, v{t0}")
    A(f"v_and_b32 v{t1}, 1, v{g}")
    A(f"v_mul_u32_u24 v{t1}, {512+32}, v{t1}")
    A(f"v_add_u32 v{t0}, v{t0}, v{t1}")
    A(f"v_lshrrev_b32 v{t1}, 2, v{j}")
    A(f"v_lshl_add_u32 v{t0}, v{t1}, 6, v{t0}")
    A(f"v_and_b32 v{t1}, 3, v{j}")
    A(f"v_lshl_add_u32 v{t0}, v{t1}, 3, v{t0}")
    A("s_mul_i32 s46, s44, 3")
    for c in range(3):
        A(f"s_add_u32 s47, s46, {c}")
        A("s_and_b32 s48, s47, 1")
        A("s_lshl_b32 s48, s48, 5")
        A("s_lshr_b32 s47, s47, 1")
        A("s_lshl_b32 s47, s47, 12")
        A(f"s_add_u32 s47, s47, {WB}")
        A(f"v_xor_b32 v{t1}, s48, v{t0}")
        A(f"v_add_u32 v{rw[0]+c}, s47, v{t1}")
        A(f"v_add_u32 v{rw[1]+c}, {2*24576}, v{rw[0]+c}")
    for i in range(96):
        A(f"v_mov_b32 v{acc+i}, 0")

    def reads(kc, ks, buf):
        st = kc % 4
        out = []
        wl = []
        for mat in range(2):
            for c in range(3):
                for e4 in range(2):
                    off = (st % 2) * 24576 + mat * 12288 + ks * 2048 + e4 * 256
                    wl.append(f"ds_read_b64_tr_b16 {vr(Fw[buf]+(mat*3+c)*4+2*e4,2)}, v{rw[st//2]+c} offset:{off}")
        xl = [f"ds_read_b128 {vr(Fx[buf]+4*m,4)}, v{ra} offset:{st*16384 + m*2048 + ks*1024}" for m in range(4)]
        return xl + wl

    def mfmas(buf):
        out = []
        for t in range(6):
            for m in range(4):
                a = acc + (t * 4 + m) * 4
                out.append(f"v_mfma_f32_16x16x32_bf16 {vr(a,4)}, {vr(Fw[buf]+4*t,4)}, {vr(Fx[buf]+4*m,4)}, {vr(a,4)}")
        return out

    stamp(A, 1)
    A("s_waitcnt vmcnt(30)")
    A("s_barrier")
    stamp(A, 2)
    for x in reads(0, 0, 0):
        A(x)
    for kc in range(8):
        A("s_waitcnt lgkmcnt(0)")
        interleave(A, mfmas(0), reads(kc, 1, 1))
        A("s_waitcnt lgkmcnt(0)")
        side = []
        if kc < 7:
            n = 10 * (min(kc + 3, 7) - (kc + 1))
            A(f"s_waitcnt vmcnt({n})")
            A("s_barrier")
            side = reads(kc + 1, 0, 0)
            if kc + 4 < 8:
                d = dma(kc + 4)
                side = side + d
        interleave(A, mfmas(1), side)
        stamp(A, 3 + kc)
    A(f"v_lshlrev_b32 v{so}, 4, v{lane}")
    A("s_lshl_b32 s47, s32, 3")
    A("s_lshl_b32 s48, s43, 2")
    A("s_add_u32 s47, s47, s48")
    A(f"s_mul_i32 s47, s47, {43*1024}")
    A("s_mul_i32 s48, s33, 6")
    A("s_add_u32 s48, s48, s46")
    A(f"s_mov_b32 s52, {fhex(K1)}")
    A(f"v_mov_b32 v{t3}, {fhex(K0)}")
    for c in range(3):
        A(f"s_add_u32 s49, s48, {c}")
        A("s_cmp_ge_u32 s49, 86")
        A("s_cbranch_scc1 LD_fin")
        A("s_and_b32 s50, s49, 1")
        A("s_lshl_b32 s50, s50, 3")
        A("s_lshr_b32 s49, s49, 1")
        A("s_lshl_b32 s49, s49, 10")
        A("s_add_u32 s49, s49, s50")
        A("s_add_u32 s49, s49, s47")
        for m in range(4):
            gA = acc + (c * 4 + m) * 4
            uA = acc + ((3 + c) * 4 + m) * 4
            q = tmp + (m % 2) * 8
            for r in range(4):
                A(f"v_mul_f32 v{q+r}, v{gA+r}, v{gA+r}")
            for r in range(4):
                A(f"v_fma_f32 v{q+r}, v{q+r}, s52, v{t3}")
            for r in range(4):
                A(f"v_mul_f32 v{q+r}, v{q+r}, v{gA+r}")
            for r in range(4):
                A(f"v_exp_f32 v{q+r}, v{q+r}")
            for r in range(4):
                A(f"v_mul_f32 v{uA+r}, v{uA+r}, v{gA+r}")
            for r in range(4):
                A(f"v_add_f32 v{q+r}, 1.0, v{q+r}")
            for r in range(4):
                A(f"v_rcp_f32 v{q+r}, v{q+r}")
            for r in range(4):
                A(f"v_mul_f32 v{q+r}, v{q+r}, v{uA+r}")
            A(f"v_cvt_pk_bf16_f32 v{q+4}, v{q}, v{q+1}")
            A(f"v_cvt_pk_bf16_f32 v{q+5}, v{q+2}, v{q+3}")
            A(f"buffer_store_dwordx2 {vr(q+4,2)}, v{so}, s[24:27], s49 offen")
            if m < 3:
                A(f"s_add_u32 s49, s49, {43*1024}")
    A.label("LD_fin")
    stamp(A, 11)
    stamp_clk(A, 13)
    stamp_flush(A, 3, 14, 8, t0, t1)
    A.label("LD_end")
    A("s_endpgm")
    return name, A.finalize(), R.hi, (256, 256, 163840)


def gen_E():
    A = Asm()
    name = "ke_kernel"
    kernel_header(A, name)
    R = RA(1)
    lane, g, j = R.get(), R.get(), R.get()
    t0, t1, t2, t3 = R.get(), R.get(), R.get(), R.get()
    vh, vw, vo, lw, lr = R.get(), R.get(), R.get(), R.get(), R.get()
    hres = R.get(8, 4)
    Wl = R.get(176, 4)
    Fw = [R.get(16, 4), R.get(16, 4)]
    ACC = 176
    A("s_cmp_ge_u32 s2, 256")
    A("s_cbranch_scc1 LE_end")
    stamp(A, 0)
    A("s_load_dwordx4 s[4:7], s[0:1], 48")
    A("s_load_dwordx2 s[8:9], s[0:1], 72")
    A(f"v_and_b32 v{lane}, 63, v0")
    A(f"v_lshrrev_b32 v{t0}, 6, v0")
    A(f"v_lshrrev_b32 v{g}, 4, v{lane}")
    A(f"v_and_b32 v{j}, 15, v{lane}")
    A(f"v_readfirstlane_b32 s35, v{t0}")
    A("s_and_b32 s30, s2, 7")
    A("s_lshl_b32 s30, s30, 2")
    A("s_lshr_b32 s31, s2, 3")
    A("s_and_b32 s31, s31, 3")
    A("s_add_u32 s30, s30, s31")
    A("s_lshr_b32 s31, s2, 5")
    A(f"v_lshlrev_b32 v{vh}, 4, v0")
    A(f"v_lshlrev_b32 v{vw}, 15, v{t0}")
    A(f"v_lshl_add_u32 v{vw}, v{g}, 12, v{vw}")
    A(f"v_lshl_add_u32 v{vw}, v{j}, 3, v{vw}")
    A("s_lshl_b32 s36, s31, 7")
    A("s_add_u32 s37, s36, 16384")
    for m in range(4):
        A(f"s_add_u32 s38, s35, {m}")
        A("s_and_b32 s38, s38, 3")
        A("s_lshl_b32 s39, s30, 2")
        A("s_add_u32 s38, s38, s39")
        A(f"s_mul_i32 s{40+m}, s38, {43*1024}")
    A("s_mov_b32 s44, 0x05040100")
    A("s_mov_b32 s45, 0x07060302")
    A("s_waitcnt lgkmcnt(0)")
    srd(A, 12, 8, HH_BYTES, OFF_HH)
    srd(A, 16, 4, WG_BYTES)
    srd(A, 20, 8, 2 * MB, OFF_H)
    srd(A, 24, 6, 2 * MB)

    def loads(i):
        out = []
        for e in range(8):
            out.append(f"buffer_load_dwordx2 {vr(Wl+16*i+2*e,2)}, v{vw}, s[16:19], s{36+e//4} offen offset:{1024*(e%4)}")
        for m in range(4):
            out.append(f"buffer_load_dwordx4 {ar(16*i+4*m,4)}, v{vh}, s[12:15], s{40+m} offen")
        out.append(f"v_add_u32 v{vw}, {4*32768}, v{vw}")
        out.append(f"v_add_u32 v{vh}, 4096, v{vh}")
        return out

    def perms(i, buf):
        out = []
        for c in range(4):
            for q in range(4):
                out.append(f"v_perm_b32 v{Fw[buf]+4*c+q}, v{Wl+16*i+2*(2*q+1)+c//2}, v{Wl+16*i+2*(2*q)+c//2}, s{44+c%2}")
        return out

    def mfmas(i, buf):
        out = []
        for c in range(4):
            for m in range(4):
                a = ACC + (m * 4 + c) * 4
                cc = "0" if i == 0 else ar(a, 4)
                out.append(f"v_mfma_f32_16x16x32_bf16 {ar(a,4)}, {vr(Fw[buf]+4*c,4)}, {ar(16*i+4*m,4)}, {cc}")
        return out

    DEPTH = 5
    for i in range(DEPTH):
        for x in loads(i):
            A(x)
    A(f"v_and_b32 v{t1}, 7, v{j}")
    A(f"v_lshlrev_b32 v{vo}, 18, v{t1}")
    A(f"v_lshrrev_b32 v{t1}, 3, v{j}")
    A(f"v_lshl_add_u32 v{vo}, v{t1}, 10, v{vo}")
    A(f"v_lshl_add_u32 v{vo}, v{g}, 5, v{vo}")
    A("s_lshl_b32 s46, s30, 3")
    A("s_lshl_b32 s47, s35, 1")
    A("s_add_u32 s46, s46, s47")
    A("s_lshl_b32 s46, s46, 10")
    A("s_add_u32 s46, s46, s36")
    for i in range(10):
        nxt = i + DEPTH
        issued = min(nxt, 10)
        A(f"s_waitcnt vmcnt({12*(issued-1-i)})")
        stamp(A, 1 + i)
        for x in perms(i, i % 2):
            A(x)
        side = loads(nxt) if nxt < 10 else []
        interleave(A, mfmas(i, i % 2), side)
        if nxt == 10:
            pass
    A(f"buffer_load_dwordx4 {vr(hres,4)}, v{vo}, s[20:23], s46 offen")
    A(f"buffer_load_dwordx4 {vr(hres+4,4)}, v{vo}, s[20:23], s46 offen offset:16")
    A("s_cmp_eq_u32 s35, 3")
    A("s_cbranch_scc1 LE_red")
    for x in loads(10):
        A(x)
    A("s_waitcnt vmcnt(0)")
    for x in perms(10, 0):
        A(x)
    for x in mfmas(10, 0):
        A(x)
    A.label("LE_red")
    stamp(A, 11)
    A(f"v_lshlrev_b32 v{lr}, 4, v{lane}")
    for m in range(1, 4):
        A(f"s_add_u32 s38, s35, {m}")
        A("s_and_b32 s38, s38, 3")
        A(f"s_mul_i32 s38, s38, {3*4096}")
        A(f"v_add_u32 v{lw}, s38, v{lr}")
        for c in range(4):
            A(f"ds_write_b128 v{lw}, {ar(ACC+(m*4+c)*4,4)} offset:{(m-1)*4096 + c*1024}")
    A(f"s_mul_i32 s38, s35, {3*4096}")
    A(f"v_add_u32 v{lr}, s38, v{lr}")
    A("s_waitcnt lgkmcnt(0)")
    A("s_barrier")
    red = Wl
    for m in range(3):
        for c in range(4):
            A(f"ds_read_b128 {vr(red+(m*4+c)*4,4)}, v{lr} offset:{m*4096 + c*1024}")
    own = Wl + 48
    for i in range(16):
        A(f"v_accvgpr_read_b32 v{own+i}, a{ACC+i}")
    for m in range(3):
        A(f"s_waitcnt lgkmcnt({4*(2-m)})")
        for i in range(16):
            A(f"v_add_f32 v{own+i}, v{own+i}, v{red+m*16+i}")
    A("s_waitcnt vmcnt(0)")
    o = Wl + 64
    for r in range(4):
        for cp in range(2):
            d = o + 2 * r + cp
            A(f"v_cvt_pk_bf16_f32 v{d}, v{own+(2*cp)*4+r}, v{own+(2*cp+1)*4+r}")
            A(f"v_lshlrev_b32 v{t0}, 16, v{d}")
            A(f"v_and_b32 v{t1}, 0xffff0000, v{d}")
            A(f"v_lshlrev_b32 v{t2}, 16, v{hres+2*r+cp}")
            A(f"v_and_b32 v{t3}, 0xffff0000, v{hres+2*r+cp}")
            A(f"v_add_f32 v{t0}, v{t0}, v{t2}")
            A(f"v_add_f32 v{t1}, v{t1}, v{t3}")
            A(f"v_cvt_pk_bf16_f32 v{d}, v{t0}, v{t1}")
    A(f"buffer_store_dwordx4 {vr(o,4)}, v{vo}, s[24:27], s46 offen")
    A(f"buffer_store_dwordx4 {vr(o+4,4)}, v{vo}, s[24:27], s46 offen offset:16")
    stamp(A, 12)
    stamp_flush(A, 4, 13, 8, t0, t1)
    A.label("LE_end")
    A("s_endpgm")
    return name, A.finalize(), R.hi, (256, 256, 49152), 240
```

```python
import sys, math, os
sys.path.insert(0, "work")
from asmlib import Asm, fhex
from gen import RA, vr, sr, srd, kernel_header, kernel_desc, stamp, stamp_clk, stamp_flush, NAME, MB, W_BYTES, WG_BYTES
from gen import OFF_U, OFF_V, OFF_H, OFF_LN, OFF_HH, STAMPS

OFF_CNT = 14 * MB
HH_BYTES = 128 * 43 * 1024
GC = math.sqrt(2.0 / math.pi)
LOG2E = math.log2(math.e)
K0 = -2.0 * GC * LOG2E
K1 = K0 * 0.044715
SPIN = 200000
MF32 = "v_mfma_f32_16x16x32_bf16"
MF16 = "v_mfma_f32_16x16x16_bf16"

WS, DBG, SX, SWR, SWI, SWG, SWU, SWD, SOUT = 4, 8, 36, 40, 44, 48, 52, 56, 60
sW, sX, sY, sLO = 12, 13, 14, 15
WB = 65536


def ar(a, n=1):
    return "a%d" % a if n == 1 else "a[%d:%d]" % (a, a + n - 1)


def S(d):
    return f"s[{d}:{d+3}]"


def emit(A, lst):
    for x in lst:
        if isinstance(x, list):
            emit(A, x)
        else:
            A(x)


def zipl(*ls):
    out = []
    n = max(len(l) for l in ls)
    for i in range(n):
        for l in ls:
            if i < len(l):
                out.append(l[i])
    return out


def interleave(A, main, side, start=0, every=1):
    si = 0
    for i, m in enumerate(main):
        A(m)
        if i >= start and (i - start) % every == 0 and si < len(side):
            emit(A, [side[si]])
            si += 1
    while si < len(side):
        emit(A, [side[si]])
        si += 1


def reduce_l(v, sdst):
    return [
        f"v_add_f32_dpp v{v}, v{v}, v{v} quad_perm:[1,0,3,2] row_mask:0xf bank_mask:0xf",
        f"v_add_f32_dpp v{v}, v{v}, v{v} quad_perm:[2,3,0,1] row_mask:0xf bank_mask:0xf",
        f"v_add_f32_dpp v{v}, v{v}, v{v} row_half_mirror row_mask:0xf bank_mask:0xf",
        f"v_add_f32_dpp v{v}, v{v}, v{v} row_mirror row_mask:0xf bank_mask:0xf",
        f"v_add_f32_dpp v{v}, v{v}, v{v} row_bcast:15 row_mask:0xa bank_mask:0xf",
        f"v_add_f32_dpp v{v}, v{v}, v{v} row_bcast:31 row_mask:0xc bank_mask:0xf",
        f"v_readlane_b32 s{sdst}, v{v}, 63",
    ]


def unpack_l(dst, src, n=4):
    o = []
    for i in range(n):
        o.append(f"v_lshlrev_b32 v{dst+2*i}, 16, v{src+i}")
        o.append(f"v_and_b32 v{dst+2*i+1}, 0xffff0000, v{src+i}")
    return o


def ln_l(xf, t, stmp, outp, c512):
    p2 = lambda a: vr(a, 2)
    o = []
    o.append(f"v_pk_add_f32 {p2(t)}, {p2(xf)}, {p2(xf+2)}")
    o.append(f"v_pk_add_f32 {p2(t+2)}, {p2(xf+4)}, {p2(xf+6)}")
    o.append(f"v_pk_add_f32 {p2(t)}, {p2(t)}, {p2(t+2)}")
    o.append(f"v_add_f32 v{t}, v{t}, v{t+1}")
    o += reduce_l(t, stmp)
    o.append(f"v_mul_f32 v{t+4}, s{stmp}, v{c512}")
    neg = "op_sel_hi:[1,0] neg_lo:[0,1] neg_hi:[0,1]"
    o.append(f"v_pk_add_f32 {p2(t+2)}, {p2(xf)}, {p2(t+4)} {neg}")
    o.append(f"v_pk_mul_f32 {p2(t)}, {p2(t+2)}, {p2(t+2)}")
    for i in range(1, 4):
        o.append(f"v_pk_add_f32 {p2(t+2)}, {p2(xf+2*i)}, {p2(t+4)} {neg}")
        o.append(f"v_pk_fma_f32 {p2(t)}, {p2(t+2)}, {p2(t+2)}, {p2(t)}")
    o.append(f"v_add_f32 v{t}, v{t}, v{t+1}")
    o.append(f"v_cvt_pk_bf16_f32 v{t+4}, v{t+4}, v{t+4}")
    o.append(f"v_lshlrev_b32 v{t+4}, 16, v{t+4}")
    red = reduce_l(t, stmp)
    side = [f"v_pk_add_f32 {p2(xf+2*i)}, {p2(xf+2*i)}, {p2(t+4)} {neg}" for i in range(4)]
    side += [f"v_cvt_pk_bf16_f32 v{outp+i}, v{xf+2*i}, v{xf+2*i+1}" for i in range(3)]
    o += zipl(red, side)
    o.append(f"v_cvt_pk_bf16_f32 v{outp+3}, v{xf+6}, v{xf+7}")
    ch = [f"v_mul_f32 v{t}, s{stmp}, v{c512}",
          f"v_cvt_pk_bf16_f32 v{t}, v{t}, v{t}",
          f"v_lshlrev_b32 v{t}, 16, v{t}",
          f"v_add_f32 v{t}, {fhex(1e-5)}, v{t}",
          f"v_cvt_pk_bf16_f32 v{t}, v{t}, v{t}",
          f"v_lshlrev_b32 v{t}, 16, v{t}",
          f"v_sqrt_f32 v{t}, v{t}",
          f"v_cvt_pk_bf16_f32 v{t}, v{t}, v{t}",
          f"v_lshlrev_b32 v{t}, 16, v{t}",
          f"v_rcp_f32 v{t}, v{t}"]
    o += zipl(ch, unpack_l(xf, outp))
    for i in range(4):
        o.append(f"v_pk_mul_f32 {p2(xf+2*i)}, {p2(xf+2*i)}, {p2(t)} op_sel_hi:[1,0]")
    for i in range(4):
        o.append(f"v_cvt_pk_bf16_f32 v{outp+i}, v{xf+2*i}, v{xf+2*i+1}")
    return o


def cmul4_l(dst, re, im, c, s, t, conj, dstride=1):
    p2 = lambda a: vr(a, 2)
    o = []
    for h in range(2):
        a = 2 * h
        o.append(f"v_pk_mul_f32 {p2(t)}, {p2(re+a)}, {p2(c+a)}")
        o.append(f"v_pk_mul_f32 {p2(t+2)}, {p2(im+a)}, {p2(c+a)}")
        n = "neg_lo:[1,0,0] neg_hi:[1,0,0]"
        if conj:
            o.append(f"v_pk_fma_f32 {p2(t)}, {p2(im+a)}, {p2(s+a)}, {p2(t)}")
            o.append(f"v_pk_fma_f32 {p2(t+2)}, {p2(re+a)}, {p2(s+a)}, {p2(t+2)} {n}")
        else:
            o.append(f"v_pk_fma_f32 {p2(t)}, {p2(im+a)}, {p2(s+a)}, {p2(t)} {n}")
            o.append(f"v_pk_fma_f32 {p2(t+2)}, {p2(re+a)}, {p2(s+a)}, {p2(t+2)}")
        o.append(f"v_cvt_pk_bf16_f32 v{dst+a*dstride}, v{t}, v{t+2}")
        o.append(f"v_cvt_pk_bf16_f32 v{dst+(a+1)*dstride}, v{t+1}, v{t+3}")
    return o


def poll_data(A, tag, loads, regs, n_after, after, vt, scnt):
    emit(A, loads)
    emit(A, after)
    A(f"s_waitcnt vmcnt({n_after})")

    def check():
        A(f"v_max3_u32 v{vt}, v{regs}, v{regs+1}, v{regs+2}")
        A(f"v_max3_u32 v{vt+1}, v{regs+3}, v{regs+4}, v{regs+5}")
        A(f"v_max3_u32 v{vt}, v{vt}, v{regs+6}, v{regs+7}")
        A(f"v_max_u32 v{vt}, v{vt}, v{vt+1}")
        A(f"v_cmp_eq_u32 vcc, -1, v{vt}")
    check()
    A(f"s_cbranch_vccz L{tag}_ok")
    A(f"s_mov_b32 s{scnt}, 0")
    A.label(f"L{tag}_r")
    A("s_mov_b64 exec, vcc")
    emit(A, loads)
    A("s_waitcnt vmcnt(0)")
    check()
    A(f"s_add_u32 s{scnt}, s{scnt}, 1")
    A(f"s_cmp_gt_u32 s{scnt}, {SPIN}")
    A(f"s_cbranch_scc1 L{tag}_x")
    A(f"s_cbranch_vccnz L{tag}_r")
    A.label(f"L{tag}_x")
    A("s_mov_b64 exec, -1")
    A.label(f"L{tag}_ok")


def gen_P():
    A = Asm()
    name = NAME + "_kernel"
    kernel_header(A, name)
    R = RA(1)
    lane, g, j, gf, jf, c512 = R.get(), R.get(), R.get(), R.get(), R.get(), R.get()
    t0, t1, t2, t3 = R.get(4, 2), None, None, None
    t1, t2, t3 = t0 + 1, t0 + 2, t0 + 3
    voU, voV, voC, vwd = R.get(), R.get(), R.get(), R.get()
    rwd = R.get(2)
    xC = R.get(8, 4)
    Wraw = R.get(16, 4)
    Wn = R.get(8, 4)
    b0 = R.get()
    va, vw, ra, so = R.get(), R.get(), R.get(), R.get()
    rw = [R.get(3), R.get(3)]
    base = R.n

    A("s_cmp_ge_u32 s2, 256")
    A("s_cbranch_scc1 L_end")
    stamp(A, 0)
    A("s_load_dwordx16 s[16:31], s[0:1], 0")
    A("s_load_dwordx4 s[32:35], s[0:1], 64")
    A(f"v_and_b32 v{lane}, 63, v0")
    A(f"v_lshrrev_b32 v{t0}, 6, v0")
    A(f"v_lshrrev_b32 v{g}, 4, v{lane}")
    A(f"v_and_b32 v{j}, 15, v{lane}")
    A(f"v_readfirstlane_b32 s{sW}, v{t0}")
    A(f"s_and_b32 s{sX}, s2, 7")
    A(f"s_lshr_b32 s{sY}, s2, 3")
    A(f"s_lshl_b32 s{sLO}, s{sX}, 5")
    A(f"s_add_u32 s{sLO}, s{sLO}, s{sY}")
    RA_ = RA(base)
    xr = [RA_.get(4, 4), RA_.get(4, 4)]
    xf = [RA_.get(8, 4), RA_.get(8, 4)]
    tl = [RA_.get(6, 2), RA_.get(6, 2)]
    Bc = [RA_.get(4, 4), RA_.get(4, 4)]
    Bs = [RA_.get(4, 4), RA_.get(4, 4)]
    twc, tws = RA_.get(8, 4), RA_.get(8, 4)
    A2, A2n = RA_.get(4, 4), RA_.get(4, 4)
    R8 = RA_.get(2, 2)
    za = [RA_.get(4, 4), RA_.get(4, 4)]
    Dre = [[RA_.get(4, 4), RA_.get(4, 4)] for _ in range(2)]
    Dim = [[RA_.get(4, 4), RA_.get(4, 4)] for _ in range(2)]
    P = [[RA_.get(4, 4), RA_.get(4, 4)] for _ in range(2)]
    Zn = [RA_.get(4, 4), RA_.get(4, 4)]
    ang = RA_.get(8, 4)
    ones = RA_.get(4, 4)
    vx, vtch, vwo, dummy = RA_.get(), RA_.get(), RA_.get(), RA_.get(4)
    lz, lzr, lw, lr = RA_.get(), RA_.get(), RA_.get(), RA_.get()
    A(f"v_lshlrev_b32 v{voU}, 11, v{g}")
    A(f"v_lshl_add_u32 v{voU}, v{t0}, 8, v{voU}")
    A(f"v_lshl_add_u32 v{voU}, v{j}, 4, v{voU}")
    A(f"v_lshlrev_b32 v{vx}, 19, v{t0}")
    A(f"v_lshl_add_u32 v{voC}, v{j}, 5, v{vx}")
    A(f"v_lshl_add_u32 v{voC}, v{g}, 3, v{voC}")
    A(f"v_lshl_add_u32 v{vx}, v{lane}, 4, v{vx}")
    A(f"v_lshlrev_b32 v{voV}, 4, v0")
    for i in range(4):
        A(f"v_mov_b32 v{ones+i}, -1")
    A("s_waitcnt lgkmcnt(0)")
    srd(A, WS, 34, 16 * MB)
    srd(A, SX, 16, 2 * MB)
    A(f"s_lshl_b32 s16, s{sLO}, 13")
    A(f"s_lshl_b32 s17, s{sLO}, 10")
    n = 0
    for p in range(2):
        A(f"buffer_store_dwordx4 {vr(ones,4)}, v{voU}, {S(WS)}, s16 offen offset:{1024*p} sc1")
    A(f"buffer_load_dwordx4 {vr(xr[0],4)}, v{vx}, {S(SX)}, s17 offen")
    A("s_add_u32 s16, s17, 0x40000")
    A(f"buffer_load_dwordx4 {vr(xr[1],4)}, v{vx}, {S(SX)}, s16 offen")
    nA = 0
    srd(A, DBG, 32, 256)
    srd(A, SWR, 18, W_BYTES)
    srd(A, SWI, 20, W_BYTES)
    srd(A, SWG, 24, WG_BYTES)
    srd(A, SWU, 26, WG_BYTES)
    srd(A, SWD, 28, WG_BYTES)
    srd(A, SOUT, 30, 2 * MB)
    A("s_lshl_b32 s18, s2, 13")
    A(f"s_add_u32 s18, s18, {OFF_V}")
    A(f"buffer_store_dwordx4 {vr(ones,4)}, v{voV}, {S(WS)}, s18 offen sc1")
    A("s_add_u32 s18, s18, 4096")
    A(f"buffer_store_dwordx4 {vr(ones,4)}, v{voV}, {S(WS)}, s18 offen sc1")
    nA += 2
    A(f"v_mov_b32 v{t1}, 0")
    A("s_lshl_b32 s18, s2, 7")
    A(f"s_add_u32 s18, s18, {OFF_CNT}")
    A("s_cmp_lt_u32 s2, 32")
    A(f"s_cselect_b32 s18, s18, {16*MB}")
    A(f"v_lshlrev_b32 v{t2}, 22, v0")
    A(f"buffer_store_dword v{t1}, v{t2}, {S(WS)}, s18 offen sc1")
    nA += 1
    nV = nA
    for p in range(2):
        for u in range(2):
            A(f"buffer_load_dwordx2 {vr(xC+4*p+2*u,2)}, v{voC}, {S(SX)}, s{17 if p == 0 else 16} offen offset:{512*u}")
    nA += 4
    A(f"v_lshlrev_b32 v{vtch}, 7, v0")
    A(f"s_mul_i32 s18, s{sY}, {43*1024}")
    A(f"buffer_load_dword v{dummy}, v{vtch}, {S(SWD)}, s18 offen")
    A("s_add_u32 s18, s18, 0x8000")
    A(f"buffer_load_dword v{dummy+1}, v{vtch}, {S(SWD)}, s18 offen")
    A(f"v_bfe_u32 v{t1}, v0, 3, 4")
    A(f"v_mul_u32_u24 v{t1}, 2752, v{t1}")
    A(f"v_and_b32 v{t2}, 7, v0")
    A(f"v_lshl_add_u32 v{t1}, v{t2}, 7, v{t1}")
    A(f"s_mul_i32 s18, s{sY}, {16*2752}")
    A(f"s_lshr_b32 s19, s{sX}, 1")
    A("s_mul_i32 s19, s19, 768")
    A("s_add_u32 s18, s18, s19")
    A(f"s_cmp_lt_u32 s{sW}, 2")
    A("s_cbranch_scc1 L_tg")
    A(f"buffer_load_dword v{dummy+2}, v{t1}, {S(SWU)}, s18 offen")
    A("s_branch L_tg2")
    A.label("L_tg")
    A(f"buffer_load_dword v{dummy+2}, v{t1}, {S(SWG)}, s18 offen")
    A.label("L_tg2")
    nA += 3
    A(f"v_lshl_add_u32 v{vwo}, v{g}, 6, v{j}")
    A(f"v_mul_u32_u24 v{vwo}, {514*8}, v{vwo}")
    A(f"s_mul_i32 s18, s{sX}, 514")
    A(f"s_lshl_b32 s19, s{sY}, 4")
    A(f"s_lshl_b32 s20, s{sW}, 2")
    A("s_add_u32 s19, s19, s20")
    A("s_add_u32 s21, s18, 512")
    A("s_add_u32 s18, s18, s19")
    A("s_and_b32 s18, s18, 0xfffffffc")
    for r in range(4):
        A(f"buffer_load_dwordx2 {vr(Wraw+4*r,2)}, v{vwo}, {S(SWR)}, s18 offen")
        A(f"buffer_load_dwordx2 {vr(Wraw+4*r+2,2)}, v{vwo}, {S(SWI)}, s18 offen")
        if r < 3:
            A(f"s_add_u32 s18, s18, {514*128}")
    nA += 8
    A("s_cmp_lg_u32 s19, 0")
    A("s_cbranch_scc1 L_nonyq")
    for r in range(4):
        A(f"buffer_load_ushort v{Wn+2*r}, v{vwo}, {S(SWR)}, s21 offen")
        A(f"buffer_load_ushort v{Wn+2*r+1}, v{vwo}, {S(SWI)}, s21 offen")
        if r < 3:
            A(f"s_add_u32 s21, s21, {514*128}")
    A.label("L_nonyq")
    A(f"v_lshrrev_b32 v{t1}, 3, v{lane}")
    A(f"v_lshlrev_b32 v{vwd}, 10, v{t1}")
    A(f"v_bfe_u32 v{t1}, v{lane}, 4, 1")
    A(f"v_and_b32 v{t2}, 7, v{lane}")
    A(f"v_xor_b32 v{t1}, v{t1}, v{t2}")
    A(f"v_lshl_add_u32 v{vwd}, v{t1}, 4, v{vwd}")
    sWD, sWDL = 22, 23
    A(f"s_lshr_b32 s{sWD}, s{sY}, 2")
    A(f"s_lshl_b32 s{sWD}, s{sWD}, 7")
    A(f"s_lshl_b32 s18, s{sW}, 15")
    A(f"s_add_u32 s{sWD}, s{sWD}, s18")
    A(f"s_mul_i32 s{sWDL}, s{sW}, 24576")
    A(f"s_add_u32 s{sWDL}, s{sWDL}, {WB}")

    def wd_dma(i0, i1):
        o = []
        for i in range(i0, i1):
            for nn in range(4):
                o.append([f"s_add_u32 m0, s{sWDL}, {(i-i0)*4096 + nn*1024}",
                          f"s_add_u32 s18, s{sWD}, {i*131072 + nn*8192}",
                          f"buffer_load_dwordx4 v{vwd}, {S(SWD)}, s18 offen lds"])
        return o

    def wd_tr(i0, i1):
        o = []
        for i in range(i0, i1):
            for c in range(4):
                for e4 in range(2):
                    o.append(f"ds_read_b64_tr_b16 {ar(16*i+4*c+2*e4,2)}, v{rwd+c//2} offset:{(i-i0)*4096 + e4*2048 + (c%2)*8}")
        return o

    emit(A, wd_dma(0, 6))
    nA += 24
    A(f"v_lshrrev_b32 v{t1}, 2, v{j}")
    A(f"v_lshl_add_u32 v{t1}, v{g}, 2, v{t1}")
    A(f"v_lshlrev_b32 v{t1}, 7, v{t1}")
    A(f"v_and_b32 v{t2}, 3, v{j}")
    A(f"v_lshlrev_b32 v{t2}, 1, v{t2}")
    A(f"v_lshrrev_b32 v{t3}, 3, v{j}")
    A(f"v_xor_b32 v{t2}, v{t2}, v{t3}")
    A(f"v_lshl_add_u32 v{t1}, v{t2}, 4, v{t1}")
    A(f"v_add_u32 v{rwd}, s{sWDL}, v{t1}")
    A(f"v_xor_b32 v{rwd+1}, 16, v{rwd}")
    A(f"s_waitcnt vmcnt({nA+2})")
    A("s_barrier")
    A(f"v_mov_b32 v{t1}, 1")
    A("s_and_b32 s18, s2, 3")
    A("s_lshl_b32 s18, s18, 6")
    A(f"v_lshlrev_b32 v{t2}, 8, v0")
    A(f"buffer_atomic_add v{t1}, v{t2}, {S(DBG)}, s18 offen sc1")
    nA += 1
    A(f"v_mov_b32 v{c512}, {fhex(1.0/512)}")
    A(f"v_cvt_f32_u32 v{gf}, v{g}")
    A(f"v_cvt_f32_u32 v{jf}, v{j}")
    A(f"v_mul_f32 v{gf}, 4.0, v{gf}")
    A(f"v_mul_f32 v{t1}, {fhex(1/32)}, v{jf}")
    for e in range(8):
        a_add = e if e < 4 else 12 + e
        A(f"v_add_f32 v{t2}, {fhex(float(a_add))}, v{gf}")
        A(f"v_mul_f32 v{ang+e}, v{t2}, v{t1}")
    for e in range(8):
        A(f"v_cos_f32 v{twc+e}, v{ang+e}")
        A(f"v_sin_f32 v{tws+e}, v{ang+e}")
    for q in range(4):
        A(f"v_cvt_pk_bf16_f32 v{Bc[0]+q}, v{twc+2*q}, v{twc+2*q+1}")
        A(f"v_cvt_pk_bf16_f32 v{Bs[0]+q}, -v{tws+2*q}, -v{tws+2*q+1}")
    for q in range(4):
        A(f"v_xor_b32 v{Bc[1]+q}, 0x80000000, v{Bc[0]+q}")
        A(f"v_xor_b32 v{Bs[1]+q}, 0x80000000, v{Bs[0]+q}")
    A(f"v_lshrrev_b32 v{t2}, 1, v{j}")
    A(f"v_cvt_f32_u32 v{t2}, v{t2}")
    A(f"v_and_b32 v{t3}, 1, v{j}")
    A(f"v_cvt_f32_u32 v{t3}, v{t3}")
    A(f"v_mul_f32 v{t3}, {fhex(0.25)}, v{t3}")
    A(f"v_mul_f32 v{t1}, {fhex(1/16)}, v{t2}")
    for q in range(4):
        A(f"v_add_f32 v{ang+q}, {fhex(float(q))}, v{gf}")
        A(f"v_fma_f32 v{ang+q}, v{ang+q}, v{t1}, v{t3}")
    A(f"v_cvt_f32_u32 v{t0}, s{sLO}")
    A(f"v_mul_f32 v{t1}, {fhex(1/2048)}, v{t2}")
    A(f"v_fmamk_f32 v{t0}, v{gf}, {fhex(128.0)}, v{t0}")
    A(f"v_fma_f32 v{ang+4}, v{t0}, v{t1}, v{t3}")
    A(f"v_add_f32 v{t0}, {fhex(256.0)}, v{t0}")
    A(f"v_fma_f32 v{ang+5}, v{t0}, v{t1}, v{t3}")
    for q in range(6):
        A(f"v_cos_f32 v{twc+q}, v{ang+q}")
        A(f"v_sin_f32 v{tws+q}, v{ang+q}")
    for q in range(4):
        A(f"v_cvt_pk_bf16_f32 v{A2+q}, v{twc+q}, v{tws+q}")
    for p in range(2):
        A(f"v_cvt_pk_bf16_f32 v{R8+p}, v{twc+4+p}, v{tws+4+p}")
    for q in range(4):
        A(f"v_mov_b32 v{A2n+q}, {0x3F80 if q % 2 == 0 else 0xBF80:#x}")
    for t in range(2):
        A(f"v_add_f32 v{t1}, {fhex(16.0*t)}, v{jf}")
        A(f"v_mul_f32 v{t1}, {fhex(1/512)}, v{t1}")
        for r in range(4):
            A(f"v_add_f32 v{t2}, {fhex(float(r))}, v{gf}")
            A(f"v_mul_f32 v{ang+4*t+r}, v{t2}, v{t1}")
    for e in range(8):
        A(f"v_cos_f32 v{twc+e}, v{ang+e}")
        A(f"v_sin_f32 v{tws+e}, v{ang+e}")
    ZL = 8192
    A(f"s_lshl_b32 s18, s{sW}, 11")
    A(f"v_lshl_add_u32 v{lz}, v{lane}, 4, s18")
    A(f"v_lshl_add_u32 v{lzr}, v{lane}, 3, s18")
    A(f"v_lshlrev_b32 v{lw}, 8, v{g}")
    A(f"v_lshl_add_u32 v{lw}, v{j}, 2, v{lw}")
    A(f"s_add_u32 s18, s18, {ZL}")
    A(f"v_add_u32 v{lw}, s18, v{lw}")
    A(f"v_add_u32 v{lr}, 1024, v{lw}")
    A(f"s_waitcnt vmcnt({nA})")
    stamp(A, 3)

    def rowA(p):
        o = unpack_l(xf[p], xr[p])
        o += ln_l(xf[p], tl[p], 24 + p, xr[p], c512)
        o.append(f"ds_write_b128 v{lz}, {vr(xr[p],4)} offset:{1024*p}")
        return o
    emit(A, zipl(rowA(0), rowA(1)))
    A("s_waitcnt lgkmcnt(0)")
    for p in range(2):
        A(f"ds_read_b64_tr_b16 {vr(za[p],2)}, v{lzr} offset:{1024*p}")
        A(f"ds_read_b64_tr_b16 {vr(za[p]+2,2)}, v{lzr} offset:{1024*p+512}")
    for p in range(2):
        A(f"s_waitcnt lgkmcnt({2*(1-p)})")
        for t in range(2):
            A(f"{MF32} {vr(Dre[p][t],4)}, {vr(za[p],4)}, {vr(Bc[t],4)}, 0")
            A(f"{MF32} {vr(Dim[p][t],4)}, {vr(za[p],4)}, {vr(Bs[t],4)}, 0")
    A(f"v_cmp_eq_u32 vcc, 0, v{lane}")
    for p in range(2):
        for t in range(2):
            emit(A, cmul4_l(P[p][t], Dre[p][t], Dim[p][t], twc + 4 * t, tws + 4 * t, tl[t], True))
            A(f"{MF32} {vr(Dre[p][t],4)}, {vr(A2,4)}, {vr(P[p][t],4)}, 0")
            if t == 0:
                A(f"{MF32} {vr(Zn[p],4)}, {vr(A2n,4)}, {vr(P[p][0],4)}, 0")
    for p in range(2):
        A(f"v_cndmask_b32 v{Dre[p][0]}, v{Dre[p][0]}, v{Zn[p]}, vcc")
        for t in range(2):
            for q in range(2):
                A(f"v_cvt_pk_bf16_f32 v{P[p][t]+q}, v{Dre[p][t]+2*q}, v{Dre[p][t]+2*q+1}")
            A(f"ds_write2_b32 v{lw if p == 0 else lr}, v{P[p][t]}, v{P[p][t]+1} offset0:{16*t} offset1:{16*t+32}")
    A(f"s_waitcnt vmcnt({nA-nV}) lgkmcnt(0)")
    A("s_barrier")
    L8 = xf[0]
    A(f"ds_read_b128 {vr(L8,4)}, v{voU} offset:{ZL}")
    A(f"ds_read_b128 {vr(L8+4,4)}, v{voU} offset:{ZL+1024}")
    A(f"s_lshl_b32 s16, s{sLO}, 13")
    A("s_waitcnt lgkmcnt(0)")
    A(f"v_swap_b32 v{L8+1}, v{L8+4}")
    A(f"v_swap_b32 v{L8+3}, v{L8+6}")
    upos = [0, 4, 2, 6]
    Y4 = [Dre[0][0], Dre[0][1], Dre[1][0], Dre[1][1]]
    for u in range(4):
        A(f"{MF16} {vr(Y4[u],4)}, {vr(R8,2)}, {vr(L8+upos[u],2)}, 0")
    O8 = xf[1]
    for u in range(4):
        for p in range(2):
            A(f"v_cvt_pk_bf16_f32 v{O8+4*p+u}, v{Y4[u]+2*p}, v{Y4[u]+2*p+1}")
    for i in range(8):
        A(f"v_min_u32 v{O8+i}, -2, v{O8+i}")
    for p in range(2):
        A(f"buffer_store_dwordx4 {vr(O8+4*p,4)}, v{voU}, {S(WS)}, s16 offen offset:{1024*p} sc1")
    stamp(A, 4)
    A(f"v_and_b32 v{t1}, 3, v{lane}")
    A(f"v_lshlrev_b32 v{t1}, 6, v{t1}")
    A(f"buffer_load_dword v{b0}, v{t1}, {S(DBG)}, 0 offen sc1")

    RB = RA(base)
    In = RB.get(8, 4)
    Fre, Fim, Gre, Gim = RB.get(4, 4), RB.get(4, 4), RB.get(4, 4), RB.get(4, 4)
    twc, tws = RB.get(4, 4), RB.get(4, 4)
    Wre, Wim = RB.get(8, 4), RB.get(8, 4)
    Dre, Dim = RB.get(8, 4), RB.get(8, 4)
    tb = [RB.get(4, 2), RB.get(4, 2)]
    ang = RB.get(4)
    Ld = RB.get(8, 4)
    vul, lbw, lbr = RB.get(), RB.get(), RB.get()
    A("s_waitcnt vmcnt(3)")
    emit(A, wd_tr(0, 6)[:14])
    A(f"v_mul_f32 v{t1}, {fhex(1/16)}, v{jf}")
    for q in range(4):
        A(f"v_add_f32 v{t2}, {fhex(float(q))}, v{gf}")
        A(f"v_mul_f32 v{ang+q}, v{t2}, v{t1}")
    for q in range(4):
        A(f"v_cos_f32 v{twc+q}, v{ang+q}")
        A(f"v_sin_f32 v{tws+q}, v{ang+q}")
    emit(A, wd_tr(0, 6)[14:28])
    for q in range(4):
        A(f"v_cvt_pk_bf16_f32 v{Fre+q}, v{twc+q}, v{tws+q}")
        A(f"v_cvt_pk_bf16_f32 v{Fim+q}, -v{tws+q}, v{twc+q}")
        A(f"v_cvt_pk_bf16_f32 v{Gre+q}, v{twc+q}, -v{tws+q}")
        A(f"v_cvt_pk_bf16_f32 v{Gim+q}, v{tws+q}, v{twc+q}")
    emit(A, wd_tr(0, 6)[28:40])
    for q in range(4):
        A(f"v_mul_f32 v{ang+q}, {fhex(1/16)}, v{ang+q}")
    for q in range(4):
        A(f"v_cos_f32 v{twc+q}, v{ang+q}")
        A(f"v_sin_f32 v{tws+q}, v{ang+q}")
    emit(A, wd_tr(0, 6)[40:])
    A(f"s_and_b32 s18, s{sX}, 1")
    A("s_lshl_b32 s18, s18, 4")
    for r in range(4):
        for a in range(2):
            A(f"v_alignbit_b32 v{Wraw+4*r+2*a}, v{Wraw+4*r+2*a+1}, v{Wraw+4*r+2*a}, s18")
    A(f"s_or_b32 s18, s{sY}, s{sW}")
    A("s_cmp_lg_u32 s18, 0")
    A("s_cbranch_scc1 L_nonyq2")
    A("s_mov_b32 s18, 0xffff0000")
    for r in range(4):
        for a in range(2):
            A(f"v_and_or_b32 v{Wraw+4*r+2*a}, v{Wraw+4*r+2*a}, s18, v{Wn+2*r+a}")
    A.label("L_nonyq2")
    for r in range(4):
        for a, d in ((0, Wre), (1, Wim)):
            A(f"v_lshlrev_b32 v{d+r}, 16, v{Wraw+4*r+2*a}")
            A(f"v_and_b32 v{d+4+r}, 0xffff0000, v{Wraw+4*r+2*a}")
    A(f"v_lshrrev_b32 v{t1}, 1, v0")
    A(f"v_and_b32 v{t2}, 1, v0")
    A(f"v_lshlrev_b32 v{vul}, 13, v{t1}")
    A(f"v_lshl_add_u32 v{vul}, v{t2}, 4, v{vul}")
    A(f"s_lshl_b32 s16, s{sX}, 10")
    A(f"s_lshl_b32 s17, s{sY}, 5")
    A("s_add_u32 s16, s16, s17")
    A("s_add_u32 s17, s16, 0x100000")
    BL = 16384
    A(f"v_lshrrev_b32 v{t3}, 6, v{t1}")
    A(f"v_lshl_add_u32 v{t1}, v{t3}, 4, v{t1}")
    A(f"v_lshlrev_b32 v{lbw}, 3, v{t1}")
    A(f"v_mul_u32_u24 v{t2}, 5120, v{t2}")
    A(f"v_add_u32 v{lbw}, v{lbw}, v{t2}")
    A(f"v_add_u32 v{lbw}, {BL}, v{lbw}")
    A(f"v_mul_u32_u24 v{lbr}, 640, v{g}")
    A(f"v_lshl_add_u32 v{lbr}, v{j}, 3, v{lbr}")
    A(f"s_mul_i32 s18, s{sW}, 2560")
    A(f"s_add_u32 s18, s18, {BL}")
    A(f"v_add_u32 v{lbr}, s18, v{lbr}")
    stamp(A, 5)
    A("s_waitcnt vmcnt(0) lgkmcnt(0)")
    A(f"v_cmp_ne_u32 vcc, 64, v{b0}")
    A("s_cbranch_vccz L_b0ok")
    A("s_mov_b32 s19, 0")
    A(f"v_and_b32 v{t1}, 3, v{lane}")
    A(f"v_lshlrev_b32 v{t1}, 6, v{t1}")
    A.label("L_b0r")
    A(f"buffer_load_dword v{b0}, v{t1}, {S(DBG)}, 0 offen sc1")
    A("s_waitcnt vmcnt(0)")
    A(f"v_cmp_ne_u32 vcc, 64, v{b0}")
    A("s_add_u32 s19, s19, 1")
    A(f"s_cmp_gt_u32 s19, {SPIN}")
    A("s_cbranch_scc1 L_b0ok")
    A("s_cbranch_vccnz L_b0r")
    A.label("L_b0ok")
    stamp(A, 6)
    loads = [f"buffer_load_dwordx4 {vr(Ld+4*i,4)}, v{vul}, {S(WS)}, s{16+i} offen sc1" for i in range(2)]
    poll_data(A, "pu", loads, Ld, 20, wd_dma(6, 11), t0, 19)
    stamp(A, 7)
    A(f"ds_write2st64_b64 v{lbw}, {vr(Ld,2)}, {vr(Ld+2,2)} offset0:0 offset1:5")
    A(f"v_add_u32 v{t1}, 1280, v{lbw}")
    A(f"ds_write2st64_b64 v{t1}, {vr(Ld+4,2)}, {vr(Ld+6,2)} offset0:0 offset1:5")
    A("s_waitcnt lgkmcnt(0)")
    A("s_barrier")
    for kk in range(2):
        for h in range(2):
            A(f"ds_read2_b32 {vr(In+4*kk+2*h,2)}, v{lbr} offset0:{kk+64*h} offset1:{kk+64*h+32}")
    for kk in range(2):
        A(f"s_waitcnt lgkmcnt({2*(1-kk)})")
        A(f"{MF32} {vr(Dre+4*kk,4)}, {vr(In+4*kk,4)}, {vr(Fre,4)}, 0")
        A(f"{MF32} {vr(Dim+4*kk,4)}, {vr(In+4*kk,4)}, {vr(Fim,4)}, 0")
    for kk in range(2):
        emit(A, cmul4_l(In + 4 * kk, Dre + 4 * kk, Dim + 4 * kk, twc, tws, tb[kk], True))
        A(f"{MF32} {vr(Dre+4*kk,4)}, {vr(Fre,4)}, {vr(In+4*kk,4)}, 0")
        A(f"{MF32} {vr(Dim+4*kk,4)}, {vr(Fim,4)}, {vr(In+4*kk,4)}, 0")
    for kk in range(2):
        emit(A, cmul4_l(In + 4 * kk, Dre + 4 * kk, Dim + 4 * kk, Wre + 4 * kk, Wim + 4 * kk, tb[kk], False))
        A(f"{MF32} {vr(Dre+4*kk,4)}, {vr(In+4*kk,4)}, {vr(Gre,4)}, 0")
        A(f"{MF32} {vr(Dim+4*kk,4)}, {vr(In+4*kk,4)}, {vr(Gim,4)}, 0")
    for kk in range(2):
        emit(A, cmul4_l(In + 4 * kk, Dre + 4 * kk, Dim + 4 * kk, twc, tws, tb[kk], False))
        A(f"{MF32} {vr(Dre+4*kk,4)}, {vr(Gre,4)}, {vr(In+4*kk,4)}, 0")
        A(f"{MF32} {vr(Dim+4*kk,4)}, {vr(Gim,4)}, {vr(In+4*kk,4)}, 0")
    for kk in range(2):
        for r in range(4):
            A(f"v_cvt_pk_bf16_f32 v{Ld+2*r+kk}, v{Dre+4*kk+r}, v{Dim+4*kk+r}")
    for i in range(8):
        A(f"v_min_u32 v{Ld+i}, -2, v{Ld+i}")
    for r in range(4):
        A(f"ds_write_b64 v{lbr}, {vr(Ld+2*r,2)} offset:{128*r}")
    A("s_waitcnt lgkmcnt(0)")
    A("s_barrier")
    A(f"ds_read2st64_b64 {vr(Ld,4)}, v{lbw} offset0:0 offset1:5")
    A(f"ds_read2st64_b64 {vr(Ld+4,4)}, v{t1} offset0:0 offset1:5")
    A("s_lshl_b32 s16, s2, 13")
    A(f"s_add_u32 s16, s16, {OFF_V}")
    A("s_add_u32 s17, s16, 4096")
    for i in range(2):
        A(f"s_waitcnt lgkmcnt({1-i})")
        A(f"buffer_store_dwordx4 {vr(Ld+4*i,4)}, v{voV}, {S(WS)}, s{16+i} offen sc1")
    stamp(A, 8)

    RC = RA(base)
    B2 = [[RC.get(4, 4), RC.get(4, 4)], [RC.get(4, 4), RC.get(4, 4)]]
    twc, tws = RC.get(8, 4), RC.get(8, 4)
    ang = RC.get(8, 4)
    P = [[RC.get(4, 4), RC.get(4, 4)] for _ in range(2)]
    L8 = RC.get(8, 4)
    xf = [RC.get(8, 4), RC.get(8, 4)]
    tl = [RC.get(6, 2), RC.get(6, 2)]
    R8 = RC.get(2, 2)
    B1re, B1im = RC.get(2, 2), RC.get(2, 2)
    Dre = [[RC.get(4, 4), RC.get(4, 4)] for _ in range(2)]
    Dim = [[RC.get(4, 4), RC.get(4, 4)] for _ in range(2)]
    Y = [[RC.get(4, 4), RC.get(4, 4)] for _ in range(2)]
    vvl, lcr, lnw, vln = RC.get(), RC.get(), RC.get(), RC.get()
    assert RC.hi <= 256 and RB.hi <= 256 and RA_.hi <= 256
    A("s_waitcnt vmcnt(2)")
    tr2 = wd_tr(6, 11)
    emit(A, tr2[:14])
    A(f"v_lshrrev_b32 v{t2}, 1, v{j}")
    A(f"v_cvt_f32_u32 v{t2}, v{t2}")
    A(f"v_and_b32 v{t3}, 1, v{j}")
    A(f"v_cvt_f32_u32 v{t3}, v{t3}")
    A(f"v_mul_f32 v{t3}, {fhex(-0.25)}, v{t3}")
    A(f"v_cvt_f32_u32 v{t0}, s{sLO}")
    A(f"v_fmamk_f32 v{t0}, v{t2}, {fhex(256.0)}, v{t0}")
    A(f"v_mul_f32 v{t0}, {fhex(1/2048)}, v{t0}")
    A(f"v_mul_f32 v{t1}, 0.5, v{gf}")
    A(f"v_fma_f32 v{ang}, v{t1}, v{t0}, v{t3}")
    A(f"v_add_f32 v{ang+1}, v{ang}, v{t0}")
    A(f"v_mul_f32 v{t0}, {fhex(1/16)}, v{jf}")
    A(f"v_mul_f32 v{ang+2}, v{t1}, v{t0}")
    A(f"v_add_f32 v{ang+3}, v{ang+2}, v{t0}")
    A(f"v_mul_f32 v{t0}, {fhex(1/32)}, v{jf}")
    for r in range(4):
        A(f"v_add_f32 v{t2}, {fhex(float(r))}, v{gf}")
        A(f"v_mul_f32 v{ang+4+r}, v{t2}, v{t0}")
    emit(A, tr2[14:28])
    for e in range(8):
        A(f"v_cos_f32 v{twc+e}, v{ang+e}")
        A(f"v_sin_f32 v{tws+e}, v{ang+e}")
    emit(A, tr2[28:])
    A(f"v_lshlrev_b32 v{vvl}, 14, v{g}")
    A(f"v_lshrrev_b32 v{t1}, 1, v{j}")
    A(f"v_lshl_add_u32 v{vvl}, v{t1}, 16, v{vvl}")
    A(f"v_and_b32 v{t1}, 1, v{j}")
    A(f"v_lshl_add_u32 v{vvl}, v{t1}, 4, v{vvl}")
    A(f"s_lshl_b32 s16, s{sW}, 19")
    A(f"s_lshl_b32 s17, s{sLO}, 5")
    A("s_add_u32 s16, s16, s17")
    A(f"s_add_u32 s16, s16, {OFF_V}")
    A("s_add_u32 s17, s16, 8192")
    sRT, sFT, sAS, sWL, sWS_, sA = 22, 23, 26, 27, 28, 29
    A(f"s_and_b32 s{sRT}, s{sX}, 1")
    A(f"s_lshl_b32 s{sRT}, s{sRT}, 3")
    A(f"s_and_b32 s18, s{sY}, 7")
    A(f"s_add_u32 s{sRT}, s{sRT}, s18")
    A(f"s_lshr_b32 s{sFT}, s{sX}, 1")
    A(f"s_lshl_b32 s{sFT}, s{sFT}, 2")
    A(f"s_lshr_b32 s18, s{sY}, 3")
    A(f"s_add_u32 s{sFT}, s{sFT}, s18")
    A(f"v_lshlrev_b32 v{va}, 4, v{lane}")
    A(f"v_lshrrev_b32 v{t0}, 2, v{lane}")
    A(f"v_mul_u32_u24 v{vw}, 2752, v{t0}")
    A(f"v_and_b32 v{t1}, 2, v{g}")
    A(f"v_and_b32 v{t2}, 3, v{lane}")
    A(f"v_xor_b32 v{t1}, v{t1}, v{t2}")
    A(f"v_lshl_add_u32 v{vw}, v{t1}, 4, v{vw}")
    A(f"s_lshl_b32 s{sA}, s{sW}, 12")
    A(f"s_lshl_b32 s{sAS}, s{sRT}, 17")
    A(f"s_add_u32 s{sAS}, s{sAS}, s{sA}")
    A(f"s_add_u32 s{sAS}, s{sAS}, {OFF_LN}")
    A(f"s_mul_i32 s{sWS_}, s{sW}, {16*2752}")
    A(f"s_mul_i32 s18, s{sFT}, 192")
    A(f"s_add_u32 s{sWS_}, s{sWS_}, s18")
    A(f"s_lshl_b32 s{sWL}, s{sW}, 10")
    A(f"s_add_u32 s{sWL}, s{sWL}, {WB}")

    def dma_w(kc):
        st = kc % 4
        out = []
        first = True
        for mat in range(2):
            for cp in range(3):
                x = []
                if first:
                    x.append(f"s_add_u32 s30, s{sWS_}, {kc*64*2752}")
                    first = False
                x.append(f"s_add_u32 m0, s{sWL}, {st*24576 + mat*12288 + cp*4096 - cp*64}")
                x.append(f"buffer_load_dwordx4 v{vw}, {S(SWG if mat == 0 else SWU)}, s30 offen offset:{cp*64} lds")
                out.append(x)
        return out

    def dma_a(kc):
        st = kc % 4
        out = [[f"s_add_u32 m0, s{sA}, {st*16384}", f"s_add_u32 s31, s{sAS}, {kc*16384}",
                f"buffer_load_dwordx4 v{va}, {S(WS)}, s31 offen sc1 lds"]]
        for i in range(1, 4):
            out.append([f"buffer_load_dwordx4 v{va}, {S(WS)}, s31 offen offset:{1024*i} sc1 lds"])
        return out

    A("s_waitcnt lgkmcnt(0)")
    A("s_barrier")
    stamp(A, 9)
    loads = [f"buffer_load_dwordx4 {vr(L8+4*i,4)}, v{vvl}, {S(WS)}, s{16+i} offen sc1" for i in range(2)]
    rest = []
    for p in range(2):
        rest.append(f"v_cvt_pk_bf16_f32 v{R8+p}, v{twc+p}, -v{tws+p}")
        rest.append(f"v_cvt_pk_bf16_f32 v{B1re+p}, v{twc+2+p}, -v{tws+2+p}")
        rest.append(f"v_cvt_pk_bf16_f32 v{B1im+p}, v{tws+2+p}, v{twc+2+p}")
    for r in range(4):
        rest.append(f"v_cvt_pk_bf16_f32 v{B2[0][0]+r}, v{twc+4+r}, -v{tws+4+r}")
    rest.append(f"v_and_b32 v{t3}, 1, v{j}")
    rest.append(f"v_mul_u32_u24 v{t3}, 0x8000, v{t3}")
    rest.append(f"v_lshl_or_b32 v{t3}, v{t3}, 16, v{t3}")
    for r in range(4):
        rest.append(f"v_xor_b32 v{B2[1][0]+r}, v{t3}, v{B2[0][0]+r}")
    for t in range(2):
        for r in range(4):
            if r % 2:
                rest.append(f"v_xor_b32 v{B2[t][1]+r}, 0x80008000, v{B2[t][0]+r}")
            else:
                rest.append(f"v_mov_b32 v{B2[t][1]+r}, v{B2[t][0]+r}")
    rest.append(f"v_mul_f32 v{t0}, {fhex(1/512)}, v{jf}")
    for t in range(2):
        for r in range(4):
            rest.append(f"v_add_f32 v{t2}, {fhex(float(16*t+r))}, v{gf}")
            rest.append(f"v_mul_f32 v{ang+4*t+r}, v{t2}, v{t0}")
    for e in range(8):
        rest.append(f"v_cos_f32 v{twc+e}, v{ang+e}")
        rest.append(f"v_sin_f32 v{tws+e}, v{ang+e}")
    for e in range(8):
        rest.append(f"v_mul_f32 v{twc+e}, {fhex(2.0**-19)}, v{twc+e}")
        rest.append(f"v_mul_f32 v{tws+e}, {fhex(2.0**-19)}, v{tws+e}")
    rest.append(f"s_lshl_b32 s18, s{sW}, 11")
    rest.append(f"v_lshlrev_b32 v{lcr}, 8, v{g}")
    rest.append(f"v_lshl_add_u32 v{lcr}, v{j}, 2, v{lcr}")
    rest.append(f"v_add_u32 v{lcr}, s18, v{lcr}")
    LNL = 8192
    rest.append(f"v_lshlrev_b32 v{lnw}, 8, v{j}")
    rest.append(f"v_lshrrev_b32 v{t1}, 1, v{g}")
    rest.append(f"v_lshl_add_u32 v{lnw}, v{t1}, 7, v{lnw}")
    rest.append(f"v_and_b32 v{t1}, 1, v{g}")
    rest.append(f"v_lshl_add_u32 v{lnw}, v{t1}, 3, v{lnw}")
    rest.append(f"s_lshl_b32 s18, s{sW}, 5")
    rest.append(f"v_add_u32 v{lnw}, s18, v{lnw}")
    rest.append(f"v_lshrrev_b32 v{t1}, 6, v0")
    rest.append(f"v_lshlrev_b32 v{vln}, 14, v{t1}")
    rest.append(f"v_bfe_u32 v{t1}, v0, 3, 3")
    rest.append(f"v_lshl_add_u32 v{vln}, v{t1}, 8, v{vln}")
    rest.append(f"v_and_b32 v{t1}, 7, v0")
    rest.append(f"v_lshl_add_u32 v{vln}, v{t1}, 4, v{vln}")
    pre = []
    for kc in range(4):
        pre += dma_w(kc)
    poll_data(A, "pv", loads, L8, 24, pre + rest, t0, 19)
    stamp(A, 10)
    A(f"v_swap_b32 v{L8+1}, v{L8+4}")
    A(f"v_swap_b32 v{L8+3}, v{L8+6}")
    Y4 = [Dre[0][0], Dre[0][1], Dre[1][0], Dre[1][1]]
    for u in range(4):
        A(f"{MF16} {vr(Y4[u],4)}, {vr(R8,2)}, {vr(L8+upos[u],2)}, 0")
    O8 = xf[1]
    for u in range(4):
        for p in range(2):
            A(f"v_cvt_pk_bf16_f32 v{O8+4*p+u}, v{Y4[u]+2*p}, v{Y4[u]+2*p+1}")
    for p in range(2):
        A(f"ds_write_b128 v{voU}, {vr(O8+4*p,4)} offset:{1024*p}")
    A(f"v_add_u32 v{t1}, 1024, v{lcr}")
    A(f"v_cmp_ne_u32 vcc, 0, v{lane}")
    A("s_waitcnt lgkmcnt(0)")
    A("s_barrier")
    for p in range(2):
        for t in range(2):
            A(f"ds_read2_b32 {vr(L8+4*p+2*t,2)}, v{lcr if p == 0 else t1} offset0:{16*t} offset1:{16*t+32}")
    for p in range(2):
        emit(A, unpack_l(xf[p], xC + 4 * p))
    A(f"v_mov_b32 v{t2}, {fhex(2.0**-20)}")
    for p in range(2):
        A(f"s_waitcnt lgkmcnt({2*(1-p)})")
        A(f"v_readlane_b32 s{24+p}, v{L8+4*p}, 0")
        A(f"v_cndmask_b32 v{L8+4*p}, 0, v{L8+4*p}, vcc")
        A(f"s_lshl_b32 s{24+p}, s{24+p}, 16")
        for t in (1, 0):
            A(f"{MF16} {vr(Dre[p][t],4)}, {vr(L8+4*p+2*t,2)}, {vr(B1re,2)}, 0")
            A(f"{MF16} {vr(Dim[p][t],4)}, {vr(L8+4*p+2*t,2)}, {vr(B1im,2)}, 0")
    for p in range(2):
        A(f"v_mul_f32 v{Y[p][0]}, s{24+p}, v{t2}")
        A(f"v_sub_f32 v{Y[p][0]+1}, 0, v{Y[p][0]}")
        A(f"v_pk_mov_b32 {vr(Y[p][0]+2,2)}, {vr(Y[p][0],2)}, {vr(Y[p][0],2)} op_sel:[0,1]")
        A(f"v_pk_mov_b32 {vr(Y[p][1],2)}, {vr(Y[p][0],2)}, {vr(Y[p][0],2)} op_sel:[0,1]")
        A(f"v_pk_mov_b32 {vr(Y[p][1]+2,2)}, {vr(Y[p][0],2)}, {vr(Y[p][0],2)} op_sel:[0,1]")
    for p in range(2):
        for t in (1, 0):
            emit(A, cmul4_l(P[p][t], Dre[p][t], Dim[p][t], twc + 4 * t, tws + 4 * t, tl[t], False))
            for u in range(2):
                A(f"{MF32} {vr(Y[p][u],4)}, {vr(P[p][t],4)}, {vr(B2[t][u],4)}, {vr(Y[p][u],4)}")
    A(f"s_lshl_b32 s16, s{sLO}, 10")
    A(f"s_add_u32 s16, s16, {OFF_H}")
    A("s_add_u32 s17, s16, 0x40000")

    def rowC(p):
        o = []
        yb = P[p][0]
        yf = Dre[p][0]
        assert Dre[p][1] == Dre[p][0] + 4
        for u in range(2):
            for q in range(2):
                o.append(f"v_cvt_pk_bf16_f32 v{yb+2*u+q}, v{Y[p][u]+2*q}, v{Y[p][u]+2*q+1}")
        o += unpack_l(yf, yb)
        for i in range(4):
            o.append(f"v_pk_add_f32 {vr(xf[p]+2*i,2)}, {vr(xf[p]+2*i,2)}, {vr(yf+2*i,2)}")
        hb = P[p][1]
        for i in range(4):
            o.append(f"v_cvt_pk_bf16_f32 v{hb+i}, v{xf[p]+2*i}, v{xf[p]+2*i+1}")
        for u in range(2):
            o.append(f"buffer_store_dwordx2 {vr(hb+2*u,2)}, v{voC}, {S(WS)}, s{16+p} offen offset:{512*u} sc1")
        o += unpack_l(xf[p], hb)
        o += ln_l(xf[p], tl[p], 24 + p, yb, c512)
        for u in range(2):
            o.append(f"ds_write_b64 v{lnw}, {vr(yb+2*u,2)} offset:{LNL + 4096*u + 16*p}")
        return o
    emit(A, zipl(rowC(0), rowC(1)))
    A(f"s_lshr_b32 s16, s{sLO}, 4")
    A("s_lshl_b32 s16, s16, 17")
    A(f"s_bfe_u32 s17, s{sLO}, 0x30001")
    A("s_lshl_b32 s17, s17, 11")
    A("s_add_u32 s16, s16, s17")
    A(f"s_and_b32 s17, s{sLO}, 1")
    A("s_lshl_b32 s17, s17, 7")
    A("s_add_u32 s16, s16, s17")
    A(f"s_add_u32 s16, s16, {OFF_LN}")
    A("s_add_u32 s17, s16, 0x10000")
    A("s_waitcnt lgkmcnt(0)")
    A("s_barrier")
    for i in range(2):
        A(f"ds_read_b128 {vr(L8+4*i,4)}, v{voV} offset:{LNL + 4096*i}")
    for i in range(2):
        A(f"s_waitcnt lgkmcnt({1-i})")
        A(f"buffer_store_dwordx4 {vr(L8+4*i,4)}, v{vln}, {S(WS)}, s{16+i} offen sc1")
    stamp(A, 11)

    RD = RA(base)
    Fx = [RD.get(16, 4), RD.get(16, 4)]
    Fw = [RD.get(24, 4), RD.get(24, 4)]
    acc = RD.get(96, 4)
    tmp = Fx[0]
    assert RD.hi <= 256
    sMH, sH3 = 32, 33
    A(f"s_lshr_b32 s{sMH}, s{sW}, 1")
    A(f"s_and_b32 s18, s{sW}, 1")
    A(f"s_mul_i32 s{sH3}, s18, 3")
    A(f"s_lshl_b32 s18, s{sMH}, 13")
    A(f"v_lshl_add_u32 v{ra}, v{lane}, 4, s18")
    A(f"v_lshrrev_b32 v{t0}, 1, v{g}")
    A(f"v_lshlrev_b32 v{t0}, 10, v{t0}")
    A(f"v_and_b32 v{t1}, 1, v{g}")
    A(f"v_mul_u32_u24 v{t1}, {512+32}, v{t1}")
    A(f"v_add_u32 v{t0}, v{t0}, v{t1}")
    A(f"v_lshrrev_b32 v{t1}, 2, v{j}")
    A(f"v_lshl_add_u32 v{t0}, v{t1}, 6, v{t0}")
    A(f"v_and_b32 v{t1}, 3, v{j}")
    A(f"v_lshl_add_u32 v{t0}, v{t1}, 3, v{t0}")
    for c in range(3):
        A(f"s_add_u32 s18, s{sH3}, {c}")
        A("s_and_b32 s19, s18, 1")
        A("s_lshl_b32 s19, s19, 5")
        A("s_lshr_b32 s18, s18, 1")
        A("s_lshl_b32 s18, s18, 12")
        A(f"s_add_u32 s18, s18, {WB}")
        A(f"v_xor_b32 v{t1}, s19, v{t0}")
        A(f"v_add_u32 v{rw[0]+c}, s18, v{t1}")
        A(f"v_add_u32 v{rw[1]+c}, {2*24576}, v{rw[0]+c}")
    A("s_waitcnt vmcnt(0)")
    A("s_barrier")
    A(f"v_mov_b32 v{t1}, 1")
    A(f"s_lshr_b32 s18, s{sLO}, 4")
    A("s_lshl_b32 s18, s18, 7")
    A(f"s_add_u32 s18, s18, {OFF_CNT}")
    A(f"v_lshlrev_b32 v{t2}, 22, v0")
    A(f"buffer_atomic_add v{t1}, v{t2}, {S(WS)}, s18 offen sc1")
    A(f"s_cmp_ge_u32 s{sFT}, 15")
    A("s_cbranch_scc1 L_E")

    def flag_wait(tag, sidx, off, target):
        A(f"s_cmp_lg_u32 s{sW}, 0")
        A(f"s_cbranch_scc1 L{tag}_w")
        A(f"s_lshl_b32 s18, s{sidx}, 7")
        A(f"s_add_u32 s18, s18, {off}")
        A(f"v_mov_b32 v{t2}, 0")
        A("s_mov_b32 s19, 0")
        A("s_mov_b64 exec, 1")
        A.label(f"L{tag}_r")
        A(f"buffer_load_dword v{t1}, v{t2}, {S(WS)}, s18 offen sc1")
        A("s_waitcnt vmcnt(0)")
        A(f"v_cmp_ne_u32 vcc, {target}, v{t1}")
        A("s_add_u32 s19, s19, 1")
        A(f"s_cmp_gt_u32 s19, {SPIN}")
        A(f"s_cbranch_scc1 L{tag}_x")
        A(f"s_cbranch_vccnz L{tag}_r")
        A.label(f"L{tag}_x")
        A("s_mov_b64 exec, -1")
        A.label(f"L{tag}_w")
        A("s_barrier")

    flag_wait("f1", sRT, OFF_CNT, 16)
    stamp(A, 12)
    for kc in range(4):
        emit(A, dma_a(kc))

    def reads(kc, ks, buf):
        st = kc % 4
        wl = []
        for mat in range(2):
            for c in range(3):
                for e4 in range(2):
                    off = (st % 2) * 24576 + mat * 12288 + ks * 2048 + e4 * 256
                    wl.append(f"ds_read_b64_tr_b16 {vr(Fw[buf]+(mat*3+c)*4+2*e4,2)}, v{rw[st//2]+c} offset:{off}")
        xl = [f"ds_read_b128 {vr(Fx[buf]+4*m,4)}, v{ra} offset:{st*16384 + m*2048 + ks*1024}" for m in range(4)]
        return xl, wl

    def mfmas(buf, first=False):
        out = []
        for t in range(6):
            for m in range(4):
                a = acc + (t * 4 + m) * 4
                out.append(f"{MF32} {vr(a,4)}, {vr(Fw[buf]+4*t,4)}, {vr(Fx[buf]+4*m,4)}, {'0' if first else vr(a,4)}")
        return out

    xl, wl = reads(0, 0, 0)
    emit(A, wl)
    A("s_waitcnt vmcnt(12)")
    A("s_barrier")
    emit(A, xl)
    pend = [(1, 4), (2, 4), (3, 4)]
    for kc in range(8):
        A("s_waitcnt lgkmcnt(0)")
        xl, wl = reads(kc, 1, 1)
        interleave(A, mfmas(0, kc == 0), xl + wl)
        A("s_waitcnt lgkmcnt(0)")
        side = []
        if kc < 7:
            assert pend[0][0] == kc + 1
            pend.pop(0)
            A(f"s_waitcnt vmcnt({sum(x[1] for x in pend)})")
            A("s_barrier")
            xl, wl = reads(kc + 1, 0, 0)
            side = xl + wl
            if kc + 4 < 8:
                side = side + dma_a(kc + 4) + dma_w(kc + 4)
                pend.append((kc + 4, 10))
        interleave(A, mfmas(1), side)
    stamp(A, 13)
    A(f"v_lshlrev_b32 v{so}, 4, v{lane}")
    A(f"s_lshl_b32 s16, s{sRT}, 3")
    A(f"s_lshl_b32 s17, s{sMH}, 2")
    A("s_add_u32 s16, s16, s17")
    A(f"s_mul_i32 s16, s16, {43*1024}")
    A(f"s_add_u32 s16, s16, {OFF_HH}")
    A(f"s_mul_i32 s17, s{sFT}, 6")
    A(f"s_add_u32 s17, s17, s{sH3}")
    A(f"s_mov_b32 s20, {fhex(K1)}")
    A(f"v_mov_b32 v{t2}, {fhex(K0)}")
    p2 = lambda a: vr(a, 2)
    for c in range(3):
        A(f"s_add_u32 s18, s17, {c}")
        A("s_cmp_ge_u32 s18, 86")
        A("s_cbranch_scc1 L_Dfin")
        A("s_and_b32 s19, s18, 1")
        A("s_lshl_b32 s19, s19, 3")
        A("s_lshr_b32 s18, s18, 1")
        A("s_lshl_b32 s18, s18, 10")
        A("s_add_u32 s18, s18, s19")
        A("s_add_u32 s18, s18, s16")
        gA = acc + c * 16
        uA = acc + (3 + c) * 16
        q = tmp
        for i in range(8):
            A(f"v_pk_mul_f32 {p2(q+2*i)}, {p2(gA+2*i)}, {p2(gA+2*i)}")
        for i in range(8):
            A(f"v_pk_fma_f32 {p2(q+2*i)}, {p2(q+2*i)}, s[20:21], {p2(t2)} op_sel_hi:[1,0,0]")
        for i in range(8):
            A(f"v_pk_mul_f32 {p2(q+2*i)}, {p2(q+2*i)}, {p2(gA+2*i)}")
        for i in range(8):
            A(f"v_exp_f32 v{q+2*i}, v{q+2*i}")
            A(f"v_exp_f32 v{q+2*i+1}, v{q+2*i+1}")
            A(f"v_pk_mul_f32 {p2(uA+2*i)}, {p2(uA+2*i)}, {p2(gA+2*i)}")
        for i in range(8):
            A(f"v_pk_add_f32 {p2(q+2*i)}, {p2(q+2*i)}, 1.0 op_sel_hi:[1,0]")
        for i in range(16):
            A(f"v_rcp_f32 v{q+i}, v{q+i}")
        for i in range(8):
            A(f"v_pk_mul_f32 {p2(q+2*i)}, {p2(q+2*i)}, {p2(uA+2*i)}")
        for m in range(4):
            A(f"v_cvt_pk_bf16_f32 v{gA+2*m}, v{q+4*m}, v{q+4*m+1}")
            A(f"v_cvt_pk_bf16_f32 v{gA+2*m+1}, v{q+4*m+2}, v{q+4*m+3}")
            A(f"buffer_store_dwordx2 {vr(gA+2*m,2)}, v{so}, {S(WS)}, s18 offen sc1")
            if m < 3:
                A(f"s_add_u32 s18, s18, {43*1024}")
    A.label("L_Dfin")
    stamp(A, 14)
    A("s_waitcnt vmcnt(0)")
    A("s_barrier")
    A(f"v_mov_b32 v{t1}, 1")
    A(f"s_lshl_b32 s18, s{sRT}, 7")
    A(f"s_add_u32 s18, s18, {OFF_CNT + 2048}")
    A(f"v_lshlrev_b32 v{t2}, 22, v0")
    A(f"buffer_atomic_add v{t1}, v{t2}, {S(WS)}, s18 offen sc1")

    A.label("L_E")
    RE = RA(base)
    Hf = RE.get(176, 4)
    hres = RE.get(8, 4)
    vh, vo, lw, lr = RE.get(), RE.get(), RE.get(), RE.get()
    assert RE.hi <= 256
    ACC = 176
    sTM, sN0, sO = 22, 23, 28
    A(f"s_lshl_b32 s{sTM}, s{sX}, 2")
    A(f"s_and_b32 s18, s{sY}, 3")
    A(f"s_add_u32 s{sTM}, s{sTM}, s18")
    A(f"s_lshr_b32 s{sN0}, s{sY}, 2")
    A(f"s_lshl_b32 s{sN0}, s{sN0}, 7")
    A(f"v_lshlrev_b32 v{vh}, 4, v0")
    for m in range(4):
        A(f"s_add_u32 s18, s{sW}, {m}")
        A("s_and_b32 s18, s18, 3")
        A(f"s_lshl_b32 s19, s{sTM}, 2")
        A("s_add_u32 s18, s18, s19")
        A(f"s_mul_i32 s{24+m}, s18, {43*1024}")
        A(f"s_add_u32 s{24+m}, s{24+m}, {OFF_HH}")
    A(f"v_and_b32 v{t1}, 7, v{j}")
    A(f"v_lshlrev_b32 v{vo}, 18, v{t1}")
    A(f"v_lshrrev_b32 v{t1}, 3, v{j}")
    A(f"v_lshl_add_u32 v{vo}, v{t1}, 10, v{vo}")
    A(f"v_lshl_add_u32 v{vo}, v{g}, 5, v{vo}")
    A(f"s_lshl_b32 s{sO}, s{sTM}, 3")
    A(f"s_lshl_b32 s18, s{sW}, 1")
    A(f"s_add_u32 s{sO}, s{sO}, s18")
    A(f"s_lshl_b32 s{sO}, s{sO}, 10")
    A(f"s_add_u32 s{sO}, s{sO}, s{sN0}")
    A(f"s_add_u32 s29, s{sO}, {OFF_H}")
    A(f"s_lshr_b32 s30, s{sTM}, 1")
    flag_wait("f2", 30, OFF_CNT + 2048, 15)
    if STAMPS:
        A("s_memrealtime s[66:67]")
    for i in range(10):
        for m in range(4):
            A(f"buffer_load_dwordx4 {vr(Hf+16*i+4*m,4)}, v{vh}, {S(WS)}, s{24+m} offen sc1")
        A(f"v_add_u32 v{vh}, 4096, v{vh}")
    A(f"buffer_load_dwordx4 {vr(hres,4)}, v{vo}, {S(WS)}, s29 offen sc1")
    A(f"buffer_load_dwordx4 {vr(hres+4,4)}, v{vo}, {S(WS)}, s29 offen offset:16 sc1")
    A(f"s_cmp_eq_u32 s{sW}, 3")
    A(f"s_cselect_b32 s18, {16*MB}, 0")
    A(f"v_add_u32 v{vh}, s18, v{vh}")
    for m in range(4):
        A(f"buffer_load_dwordx4 {vr(Hf+160+4*m,4)}, v{vh}, {S(WS)}, s{24+m} offen sc1")
    for i in range(11):
        A(f"s_waitcnt vmcnt({4*(9-i)+6 if i < 10 else 0})")
        if i == 10:
            A(f"s_cmp_eq_u32 s{sW}, 3")
            A("s_cbranch_scc1 L_Ered")
        for c in range(4):
            for m in range(4):
                a = ACC + (m * 4 + c) * 4
                A(f"{MF32} {ar(a,4)}, {ar(16*i+4*c,4)}, {vr(Hf+16*i+4*m,4)}, {'0' if i == 0 else ar(a,4)}")
    A.label("L_Ered")
    if STAMPS:
        A("s_memrealtime s[68:69]")
    A(f"v_lshlrev_b32 v{lr}, 4, v{lane}")
    for m in range(1, 4):
        A(f"s_add_u32 s18, s{sW}, {m}")
        A("s_and_b32 s18, s18, 3")
        A(f"s_mul_i32 s18, s18, {3*4096}")
        A(f"v_add_u32 v{lw}, s18, v{lr}")
        for c in range(4):
            A(f"ds_write_b128 v{lw}, {ar(ACC+(m*4+c)*4,4)} offset:{(m-1)*4096 + c*1024}")
    A(f"s_mul_i32 s18, s{sW}, {3*4096}")
    A(f"v_add_u32 v{lr}, s18, v{lr}")
    own = Hf + 48
    hf = Hf + 64
    for i in range(16):
        A(f"v_accvgpr_read_b32 v{own+i}, a{ACC+i}")
    emit(A, unpack_l(hf, hres, 8))
    A("s_waitcnt lgkmcnt(0)")
    A("s_barrier")
    red = Hf
    for m in range(3):
        for c in range(4):
            A(f"ds_read_b128 {vr(red+(m*4+c)*4,4)}, v{lr} offset:{m*4096 + c*1024}")
    for m in range(3):
        A(f"s_waitcnt lgkmcnt({4*(2-m)})")
        for i in range(8):
            A(f"v_pk_add_f32 {p2(own+2*i)}, {p2(own+2*i)}, {p2(red+m*16+2*i)}")
    o = Hf + 80
    for i in range(8):
        A(f"v_cvt_pk_bf16_f32 v{o+i}, v{own+2*i}, v{own+2*i+1}")
    emit(A, unpack_l(own, o, 8))
    for i in range(8):
        A(f"v_pk_add_f32 {p2(own+2*i)}, {p2(own+2*i)}, {p2(hf+2*i)}")
    for i in range(8):
        A(f"v_cvt_pk_bf16_f32 v{o+i}, v{own+2*i}, v{own+2*i+1}")
    A(f"buffer_store_dwordx4 {vr(o,4)}, v{vo}, {S(SOUT)}, s{sO} offen")
    A(f"buffer_store_dwordx4 {vr(o+4,4)}, v{vo}, {S(SOUT)}, s{sO} offen offset:16")
    if STAMPS:
        A("s_load_dwordx2 s[34:35], s[0:1], 72")
        A("s_waitcnt lgkmcnt(0)")
        A("s_waitcnt vmcnt(0)")
        A("s_memrealtime s[94:95]")
        A("s_waitcnt lgkmcnt(0)")
        srd(A, 96, 34, 16 * MB, 32 * MB)
        A(f"v_and_b32 v{t0}, 0xc0, v0")
        A("s_lshl_b32 s100, s2, 9")
        A("s_mov_b64 exec, 1")
        for i in range(16):
            A(f"v_mov_b32 v{t1}, s{64+2*i}")
            A(f"buffer_store_dword v{t1}, v{t0}, s[96:99], s100 offen offset:{4*i}")
        A("s_waitcnt vmcnt(0)")
    A.label("L_end")
    A("s_endpgm")
    return name, A.finalize(), 256, (256, 256, 163840), 240


HEADER = """; Pre-LN GFNet spectral filter + residual, pre-LN GEGLU FFN + residual (S=2048, D=512, F=1376).
"""


def build_p(as_list=False):
    name, body, nv, (gx, bx, lds), ag = gen_P()
    out = HEADER
    if as_list:
        out += f"; @launch kernel={name} grid=({gx},1,1) block=({bx},1,1) lds={lds}\n"
    else:
        out += f"; @launch grid=({gx},1,1) block=({bx},1,1) lds={lds}\n"
    out += '.amdgcn_target "amdgcn-amd-amdhsa--gfx950"\n' + body + kernel_desc(name, nv, agprs=ag)
    return out


if __name__ == "__main__":
    path = sys.argv[1] if len(sys.argv) > 1 else f"cdna_kernels/{NAME}.s"
    s = build_p(as_list=len(sys.argv) > 2)
    open(path, "w").write(s)
    print("lines", s.count("\n"))
```

```python
import sys, math, os
sys.path.insert(0, "work")
from asmlib import Asm, fhex
from gen import RA, vr, srd, kernel_header, kernel_desc, NAME, MB, W_BYTES, WG_BYTES, STAMPS
from gen_p import emit, zipl, interleave, reduce_l, unpack_l, ln_l, cmul4_l, S, K0, K1, MF32, MF16, HEADER

OFF_U, OFF_V, OFF_H, OFF_LN, OFF_HH = 0, 2 * MB, 4 * MB, 6 * MB, 8 * MB
OFF_FL = 14 * MB
OFF_TAG = 14 * MB + 8192
TAG_STEP = 0x9E3779B9
sT = 3
HH_BYTES = 86 * 65536
SPIN = 200000
WS, DBG, SX, SWF, SWM, SWD, SOUT, SHH = 4, 8, 36, 40, 44, 48, 52, 56
sW, sX, sY, sLO = 12, 13, 14, 15
SLOT = 24576
SC = 5 * SLOT
p2 = lambda a: vr(a, 2)


class VM:
    def __init__(self, A):
        self.A = A
        self.q = []

    def issue(self, tag, ins):
        def walk(x):
            if isinstance(x, list):
                for y in x:
                    walk(y)
            elif x.startswith("buffer_"):
                self.q.append(tag)
        walk(ins)
        return ins

    def do(self, tag, ins):
        emit(self.A, [self.issue(tag, ins)])

    def count_after(self, tag):
        idx = max((i for i, t in enumerate(self.q) if t == tag), default=-1)
        return len(self.q) - 1 - idx, idx

    def wait(self, tag, extra=""):
        n, idx = self.count_after(tag)
        if idx < 0:
            if extra:
                self.A("s_waitcnt " + extra)
            return
        assert n <= 63, n
        self.A(f"s_waitcnt vmcnt({n}) {extra}".strip())
        self.q = self.q[idx + 1:]


STAMPSET = os.environ.get("STAMPSET", "start,xrdy,Adone,b0ld,b0ok,Urdy,Bdone,Vdrain,Vrdy,Cdone,Cdrain,Dmain,Depi,Edrain,Emain").split(",")
OPT = set(os.environ.get("OPT", "").split(","))


def stamp(A, name):
    if STAMPS and name in STAMPSET:
        i = STAMPSET.index(name)
        A(f"s_memrealtime s[{64+2*i}:{65+2*i}]")


def maxtree(regs, vt):
    n = len(regs)
    o = []
    if n == 4:
        o.append(f"v_max3_u32 v{vt}, v{regs[0]}, v{regs[1]}, v{regs[2]}")
        o.append(f"v_max_u32 v{vt}, v{vt}, v{regs[3]}")
    else:
        o.append(f"v_max3_u32 v{vt}, v{regs[0]}, v{regs[1]}, v{regs[2]}")
        o.append(f"v_max3_u32 v{vt+1}, v{regs[3]}, v{regs[4]}, v{regs[5]}")
        i = 6
        k = 0
        while i + 1 < n:
            o.append(f"v_max3_u32 v{vt+k}, v{vt+k}, v{regs[i]}, v{regs[i+1]}")
            i += 2
            k ^= 1
        assert i == n
        o.append(f"v_max_u32 v{vt}, v{vt}, v{vt+1}")
    o.append(f"v_cmp_eq_u32 vcc, -1, v{vt}")
    return o


class Retry:
    def __init__(self, A):
        self.A = A
        self.blocks = []

    def check(self, tag, regs, vt, reload):
        A = self.A
        emit(A, maxtree(regs, vt))
        A(f"s_cbranch_vccnz L{tag}_r")
        A.label(f"L{tag}_ok")
        self.blocks.append((tag, regs, vt, reload))

    def flush(self):
        A = self.A
        for tag, regs, vt, reload in self.blocks:
            A.label(f"L{tag}_r")
            A("s_mov_b32 s63, 0")
            A.label(f"L{tag}_r2")
            A("s_mov_b64 exec, vcc")
            emit(A, reload)
            A("s_waitcnt vmcnt(0)")
            emit(A, maxtree(regs, vt))
            A("s_add_u32 s63, s63, 1")
            A(f"s_cmp_gt_u32 s63, {SPIN}")
            A(f"s_cbranch_scc1 L{tag}_x")
            A(f"s_cbranch_vccnz L{tag}_r2")
            A.label(f"L{tag}_x")
            A("s_mov_b64 exec, -1")
            A(f"s_branch L{tag}_ok")


def rng(a, n):
    return list(range(a, a + n))


def gen_Q():
    A = Asm()
    V = VM(A)
    RT = Retry(A)
    name = NAME + "_kernel"
    kernel_header(A, name)
    R = RA(1)
    lane, g, j, gf, jf, c512, b0 = (R.get() for _ in range(7))
    t0 = R.get(4, 2)
    t1, t2, t3 = t0 + 1, t0 + 2, t0 + 3
    voV, vln, vw, vwd, l16 = (R.get() for _ in range(5))
    voHH = R.get()
    xC = R.get(4, 2)
    base = R.n

    A("s_cmp_ge_u32 s2, 256")
    A("s_cbranch_scc1 L_end")
    stamp(A, "start")
    A("s_load_dwordx16 s[16:31], s[0:1], 0")
    A("s_load_dwordx4 s[32:35], s[0:1], 64")
    RA_ = RA(base)
    xr = RA_.get(4, 4)
    xf = RA_.get(8, 4)
    tl = RA_.get(8, 2)
    Bc = [RA_.get(4, 4), RA_.get(4, 4)]
    Bs = [RA_.get(4, 4), RA_.get(4, 4)]
    twc, tws = RA_.get(8, 4), RA_.get(8, 4)
    A2, A2n = RA_.get(4, 4), RA_.get(4, 4)
    R8 = RA_.get(2, 2)
    za = RA_.get(4, 4)
    Dre = [RA_.get(4, 4), RA_.get(4, 4)]
    Dim = [RA_.get(4, 4), RA_.get(4, 4)]
    P = [RA_.get(4, 4), RA_.get(4, 4)]
    Zn = RA_.get(4, 4)
    ang = RA_.get(8, 4)
    vx, voC, voU, vwo = (RA_.get() for _ in range(4))
    lz, lzr, lw, lru = (RA_.get() for _ in range(4))
    ones = 248
    Wraw = 240
    A(f"v_and_b32 v{lane}, 63, v0")
    A(f"v_lshrrev_b32 v{t0}, 6, v0")
    A(f"v_lshrrev_b32 v{g}, 4, v{lane}")
    A(f"v_and_b32 v{j}, 15, v{lane}")
    A(f"v_readfirstlane_b32 s{sW}, v{t0}")
    A(f"s_and_b32 s{sX}, s2, 7")
    A(f"s_lshr_b32 s{sY}, s2, 3")
    A(f"s_lshl_b32 s{sLO}, s{sX}, 5")
    A(f"s_add_u32 s{sLO}, s{sLO}, s{sY}")
    A(f"v_lshlrev_b32 v{voV}, 4, v0")
    A(f"v_lshlrev_b32 v{l16}, 4, v{lane}")
    A(f"v_lshlrev_b32 v{vx}, 18, v{t0}")
    A(f"v_lshl_add_u32 v{voC}, v{j}, 5, v{vx}")
    A(f"v_lshl_add_u32 v{voC}, v{g}, 3, v{voC}")
    A(f"v_add_u32 v{vx}, v{l16}, v{vx}")
    for i in range(4):
        A(f"v_mov_b32 v{ones+i}, -1")
    A(f"v_and_b32 v{vwo}, 255, v0")
    A(f"v_mul_u32_u24 v{vwo}, {514*8}, v{vwo}")
    A(f"s_lshl_b32 s60, s{sLO}, 13")
    A(f"s_lshl_b32 s61, s{sLO}, 10")
    A(f"v_mov_b32 v{c512}, {fhex(1.0/512)}")
    A(f"v_cvt_f32_u32 v{gf}, v{g}")
    A(f"v_cvt_f32_u32 v{jf}, v{j}")
    A(f"v_mul_f32 v{gf}, 4.0, v{gf}")
    A(f"v_mul_f32 v{t1}, {fhex(1/32)}, v{jf}")
    for e in range(8):
        a_add = e if e < 4 else 12 + e
        A(f"v_add_f32 v{t2}, {fhex(float(a_add))}, v{gf}")
        A(f"v_mul_f32 v{ang+e}, v{t2}, v{t1}")
    for e in range(8):
        A(f"v_cos_f32 v{twc+e}, v{ang+e}")
        A(f"v_sin_f32 v{tws+e}, v{ang+e}")
    for q in range(4):
        A(f"v_cvt_pk_bf16_f32 v{Bc[0]+q}, v{twc+2*q}, v{twc+2*q+1}")
        A(f"v_cvt_pk_bf16_f32 v{Bs[0]+q}, -v{tws+2*q}, -v{tws+2*q+1}")
    for q in range(4):
        A(f"v_xor_b32 v{Bc[1]+q}, 0x80000000, v{Bc[0]+q}")
        A(f"v_xor_b32 v{Bs[1]+q}, 0x80000000, v{Bs[0]+q}")
    A("s_waitcnt lgkmcnt(0)")
    stamp(A, "karg")
    srd(A, WS, 34, 16 * MB)
    srd(A, SX, 16, 2 * MB)
    A(f"s_cmp_lg_u32 s{sW}, 7")
    A("s_cbranch_scc1 L_nouclr")
    for i in range(8):
        if i == 4:
            A("s_add_u32 s60, s60, 4096")
        A(f"buffer_store_dwordx4 {vr(ones,4)}, v{l16}, {S(WS)}, s60 offen offset:{1024*(i%4)} sc1")
    A.label("L_nouclr")
    V.q.append("uclr")
    V.do("x", f"buffer_load_dwordx4 {vr(xr,4)}, v{vx}, {S(SX)}, s61 offen")
    for u in range(2):
        V.do("xc", f"buffer_load_dwordx2 {vr(xC+2*u,2)}, v{voC}, {S(SX)}, s61 offen offset:{512*u}")
    A(f"s_add_u32 s62, s34, {OFF_TAG}")
    A("s_addc_u32 s63, s35, 0")
    A(f"s_load_dword s{sT}, s[62:63], 0")
    A(f"s_cmp_lt_u32 s{sW}, 4")
    A(f"s_cselect_b64 s[{SWF}:{SWF+1}], s[18:19], s[20:21]")
    A(f"s_cselect_b64 s[{SWM}:{SWM+1}], s[24:25], s[26:27]")
    A(f"s_mov_b32 s{SWF+2}, {W_BYTES:#x}")
    A(f"s_mov_b32 s{SWF+3}, 0x20000")
    A(f"s_mov_b32 s{SWM+2}, {WG_BYTES:#x}")
    A(f"s_mov_b32 s{SWM+3}, 0x20000")
    srd(A, SWD, 28, WG_BYTES)
    srd(A, SOUT, 30, 2 * MB)
    srd(A, SHH, 34, HH_BYTES, OFF_HH)
    sRT, sFT, sROT, sWSRC, sWDST, sLNB = 16, 17, 18, 19, 20, 21
    A(f"s_and_b32 s{sRT}, s{sX}, 1")
    A(f"s_lshl_b32 s{sRT}, s{sRT}, 3")
    A(f"s_and_b32 s60, s{sY}, 7")
    A(f"s_add_u32 s{sRT}, s{sRT}, s60")
    A(f"s_lshr_b32 s{sFT}, s{sX}, 1")
    A(f"s_lshl_b32 s{sFT}, s{sFT}, 2")
    A(f"s_lshr_b32 s61, s{sY}, 3")
    A(f"s_add_u32 s{sFT}, s{sFT}, s61")
    A("s_lshl_b32 s61, s61, 1")
    A(f"s_add_u32 s{sROT}, s60, s61")
    A(f"s_and_b32 s60, s{sW}, 3")
    A(f"s_mul_i32 s{sWSRC}, s60, {16*2752}")
    A(f"s_mul_i32 s61, s{sFT}, 192")
    A(f"s_add_u32 s{sWSRC}, s{sWSRC}, s61")
    A(f"s_lshl_b32 s{sWDST}, s60, 10")
    A(f"s_lshr_b32 s60, s{sW}, 2")
    A("s_mul_i32 s60, s60, 12288")
    A(f"s_add_u32 s{sWDST}, s{sWDST}, s60")
    A(f"v_lshrrev_b32 v{t0}, 2, v{lane}")
    A(f"v_mul_u32_u24 v{vw}, 2752, v{t0}")
    A(f"v_and_b32 v{t1}, 2, v{g}")
    A(f"v_and_b32 v{t2}, 3, v{lane}")
    A(f"v_xor_b32 v{t1}, v{t1}, v{t2}")
    A(f"v_lshl_add_u32 v{vw}, v{t1}, 4, v{vw}")
    A(f"v_lshrrev_b32 v{t0}, 3, v0")
    A(f"v_lshlrev_b32 v{vln}, 8, v{t0}")
    A(f"v_and_b32 v{t0}, 7, v0")
    A(f"v_lshl_add_u32 v{vln}, v{t0}, 4, v{vln}")
    A(f"s_lshr_b32 s{sLNB}, s{sLO}, 1")
    A(f"s_lshl_b32 s{sLNB}, s{sLNB}, 14")
    A(f"s_and_b32 s60, s{sLO}, 1")
    A("s_lshl_b32 s60, s60, 7")
    A(f"s_add_u32 s{sLNB}, s{sLNB}, s60")
    A(f"s_add_u32 s{sLNB}, s{sLNB}, {OFF_LN}")
    A(f"s_mul_i32 s60, s{sFT}, 6")
    A(f"s_and_b32 s61, s{sW}, 1")
    A("s_mul_i32 s61, s61, 3")
    A("s_add_u32 s60, s60, s61")
    A("s_lshl_b32 s60, s60, 16")
    A(f"s_lshl_b32 s61, s{sRT}, 2")
    A(f"s_lshr_b32 s62, s{sW}, 1")
    A("s_add_u32 s61, s61, s62")
    A("s_lshl_b32 s61, s61, 10")
    A("s_add_u32 s60, s60, s61")
    A(f"v_add_u32 v{voHH}, s60, v{l16}")

    def dma_w(p):
        slot = p if p < 6 else p - 6
        out = []
        for cp in range(3):
            x = []
            if cp == 0:
                x += [f"s_add_u32 s22, s{sROT}, {p}", "s_and_b32 s22, s22, 7", f"s_mul_i32 s22, s22, {64*2752}",
                      f"s_add_u32 s22, s22, s{sWSRC}"]
            x.append(f"s_add_u32 m0, s{sWDST}, {slot*SLOT + cp*4096 - cp*64}")
            x.append(f"buffer_load_dwordx4 v{vw}, {S(SWM)}, s22 offen offset:{cp*64} lds")
            out.append(x)
        return out

    A(f"v_lshrrev_b32 v{t2}, 1, v{j}")
    A(f"v_cvt_f32_u32 v{t2}, v{t2}")
    A(f"v_and_b32 v{t3}, 1, v{j}")
    A(f"v_cvt_f32_u32 v{t3}, v{t3}")
    A(f"v_mul_f32 v{t3}, {fhex(0.25)}, v{t3}")
    A(f"v_mul_f32 v{t1}, {fhex(1/16)}, v{t2}")
    for q in range(4):
        A(f"v_add_f32 v{ang+q}, {fhex(float(q))}, v{gf}")
        A(f"v_fma_f32 v{ang+q}, v{ang+q}, v{t1}, v{t3}")
    A(f"v_cvt_f32_u32 v{t0}, s{sLO}")
    A(f"v_mul_f32 v{t1}, {fhex(1/2048)}, v{t2}")
    A(f"v_fmamk_f32 v{t0}, v{gf}, {fhex(128.0)}, v{t0}")
    A(f"v_fma_f32 v{ang+4}, v{t0}, v{t1}, v{t3}")
    A(f"v_add_f32 v{t0}, {fhex(256.0)}, v{t0}")
    A(f"v_fma_f32 v{ang+5}, v{t0}, v{t1}, v{t3}")
    for q in range(6):
        A(f"v_cos_f32 v{twc+q}, v{ang+q}")
        A(f"v_sin_f32 v{tws+q}, v{ang+q}")
    for q in range(4):
        A(f"v_cvt_pk_bf16_f32 v{A2+q}, v{twc+q}, v{tws+q}")
    for p in range(2):
        A(f"v_cvt_pk_bf16_f32 v{R8+p}, v{twc+4+p}, v{tws+4+p}")
    for q in range(4):
        A(f"v_mov_b32 v{A2n+q}, {0x3F80 if q % 2 == 0 else 0xBF80:#x}")
    for t in range(2):
        A(f"v_add_f32 v{t1}, {fhex(16.0*t)}, v{jf}")
        A(f"v_mul_f32 v{t1}, {fhex(1/512)}, v{t1}")
        for r in range(4):
            A(f"v_add_f32 v{t2}, {fhex(float(r))}, v{gf}")
            A(f"v_mul_f32 v{ang+4*t+r}, v{t2}, v{t1}")
    for e in range(8):
        A(f"v_cos_f32 v{twc+e}, v{ang+e}")
        A(f"v_sin_f32 v{tws+e}, v{ang+e}")
    ZL = SC + 8192
    A(f"v_add_u32 v{lz}, {SC}, v{voV}")
    A(f"s_lshl_b32 s60, s{sW}, 10")
    A(f"s_add_u32 s60, s60, {SC}")
    A(f"v_lshl_add_u32 v{lzr}, v{lane}, 3, s60")
    A(f"v_lshlrev_b32 v{lw}, 8, v{g}")
    A(f"v_lshl_add_u32 v{lw}, v{j}, 2, v{lw}")
    A("s_add_u32 s60, s60, 8192")
    A(f"v_add_u32 v{lw}, s60, v{lw}")
    A(f"s_lshl_b32 s60, s{sW}, 8")
    A(f"v_lshlrev_b32 v{voU}, 11, v{g}")
    A(f"v_lshl_add_u32 v{voU}, v{j}, 4, v{voU}")
    A(f"v_add_u32 v{voU}, s60, v{voU}")
    A(f"v_add_u32 v{lru}, {ZL}, v{voU}")
    stamp(A, "const")
    A("s_waitcnt lgkmcnt(0)")
    A(f"s_add_u32 s{sT}, s{sT}, {TAG_STEP:#x}")
    A(f"s_cmp_lg_u32 s{sW}, 7")
    A("s_cbranch_scc1 L_noarr")
    V.wait("uclr")
    A(f"v_mov_b32 v{t1}, s{sT}")
    A("s_lshl_b32 s60, s2, 4")
    A(f"s_add_u32 s60, s60, {OFF_FL}")
    A(f"v_lshlrev_b32 v{t2}, 24, v{lane}")
    A(f"buffer_store_dword v{t1}, v{t2}, {S(WS)}, s60 offen sc1")
    A.label("L_noarr")
    A("s_barrier")
    stamp(A, "bar1")
    A("s_lshl_b32 s62, s2, 13")
    A(f"s_add_u32 s62, s62, {OFF_V}")
    V.do("vclr", f"buffer_store_dwordx4 {vr(ones,4)}, v{voV}, {S(WS)}, s62 offen sc1")
    if "noclr" not in OPT:
        V.do("lnclr", f"buffer_store_dwordx4 {vr(ones,4)}, v{vln}, {S(WS)}, s{sLNB} offen sc1")
        A(f"s_lshl_b32 s62, s{sLO}, 13")
        A(f"s_add_u32 s62, s62, {OFF_H}")
        V.do("hclr", f"buffer_store_dwordx4 {vr(ones,4)}, v{voV}, {S(WS)}, s62 offen sc1")
    A(f"s_mul_i32 s60, s{sX}, 514")
    A(f"s_lshl_b32 s61, s{sY}, 4")
    A("s_add_u32 s61, s61, s60")
    V.do("w", f"buffer_load_dwordx4 {vr(Wraw,4)}, v{vwo}, {S(SWF)}, s61 offen")
    A(f"s_cmp_lg_u32 s{sY}, 0")
    A("s_cbranch_scc1 L_nonyq")
    A(f"buffer_load_ushort v{Wraw+4}, v{vwo}, {S(SWF)}, s60 offen offset:512")
    A.label("L_nonyq")
    V.wait("x")
    stamp(A, "xrdy")
    main = unpack_l(xf, xr) + ln_l(xf, tl, 24, xr, c512)
    emit(A, main)
    stamp(A, "Aln")
    A(f"ds_write_b128 v{lz}, {vr(xr,4)}")
    A("s_waitcnt lgkmcnt(0)")
    A(f"ds_read_b64_tr_b16 {vr(za,2)}, v{lzr}")
    A(f"ds_read_b64_tr_b16 {vr(za+2,2)}, v{lzr} offset:512")
    A(f"v_cmp_eq_u32 vcc, 0, v{lane}")
    A("s_waitcnt lgkmcnt(0)")
    for t in range(2):
        A(f"{MF32} {vr(Dre[t],4)}, {vr(za,4)}, {vr(Bc[t],4)}, 0")
        A(f"{MF32} {vr(Dim[t],4)}, {vr(za,4)}, {vr(Bs[t],4)}, 0")
    for t in range(2):
        emit(A, cmul4_l(P[t], Dre[t], Dim[t], twc + 4 * t, tws + 4 * t, tl + 4 * t, True))
        A(f"{MF32} {vr(Dre[t],4)}, {vr(A2,4)}, {vr(P[t],4)}, 0")
        if t == 0:
            A(f"{MF32} {vr(Zn,4)}, {vr(A2n,4)}, {vr(P[0],4)}, 0")
    A(f"v_cndmask_b32 v{Dre[0]}, v{Dre[0]}, v{Zn}, vcc")
    for t in range(2):
        for q in range(2):
            A(f"v_cvt_pk_bf16_f32 v{P[t]+q}, v{Dre[t]+2*q}, v{Dre[t]+2*q+1}")
        A(f"ds_write2_b32 v{lw}, v{P[t]}, v{P[t]+1} offset0:{16*t} offset1:{16*t+32}")
    stamp(A, "Afft")
    V.wait("vclr", "lgkmcnt(0)")
    A("s_barrier")
    stamp(A, "Abar")
    A(f"s_cmp_ge_u32 s{sW}, 4")
    A("s_cbranch_scc1 L_Askip")
    L8 = xf
    A(f"ds_read_b128 {vr(L8,4)}, v{lru}")
    A(f"ds_read_b128 {vr(L8+4,4)}, v{lru} offset:1024")
    A(f"s_lshl_b32 s60, s{sLO}, 13")
    A("s_waitcnt lgkmcnt(0)")
    A(f"v_swap_b32 v{L8+1}, v{L8+4}")
    A(f"v_swap_b32 v{L8+3}, v{L8+6}")
    upos = [0, 4, 2, 6]
    Y4 = [Dre[0], Dre[1], Dim[0], Dim[1]]
    for u in range(4):
        A(f"{MF16} {vr(Y4[u],4)}, {vr(R8,2)}, {vr(L8+upos[u],2)}, 0")
    O8 = P[0]
    assert P[1] == P[0] + 4
    for p in range(2):
        for u in range(4):
            A(f"v_cvt_pk_bf16_f32 v{O8+4*p+u}, v{Y4[u]+2*p}, v{Y4[u]+2*p+1}")
        for u in range(4):
            A(f"v_min_u32 v{O8+4*p+u}, -2, v{O8+4*p+u}")
        A(f"buffer_store_dwordx4 {vr(O8+4*p,4)}, v{voU}, {S(WS)}, s60 offen offset:{1024*p} sc1")
    A("s_branch L_Adone")
    A.label("L_Askip")
    A(f"v_add_u32 v{t1}, {(OFF_FL - 4096) & 0xffffffff:#x}, v{voV}")
    A("s_mov_b32 s63, 0")
    A.label("L_b0r")
    A(f"buffer_load_dword v{b0}, v{t1}, {S(WS)}, 0 offen sc1")
    A("s_waitcnt vmcnt(0)")
    A(f"v_cmp_ne_u32 vcc, s{sT}, v{b0}")
    A("s_add_u32 s63, s63, 1")
    A(f"s_cmp_gt_u32 s63, {SPIN}")
    A("s_cbranch_scc1 L_Adone")
    A("s_cbranch_vccnz L_b0r")
    A.label("L_Adone")
    stamp(A, "Adone")

    RB = RA(base)
    In = RB.get(4, 4)
    Fre, Fim, Gre, Gim = RB.get(4, 4), RB.get(4, 4), RB.get(4, 4), RB.get(4, 4)
    twc, tws = RB.get(4, 4), RB.get(4, 4)
    Wre, Wim = RB.get(4, 4), RB.get(4, 4)
    Dre, Dim = RB.get(4, 4), RB.get(4, 4)
    tb = RB.get(4, 2)
    ang = RB.get(4)
    Ld = RB.get(4, 4)
    vul, lbw, lbr, lwr = (RB.get() for _ in range(4))
    WL = SC + 16384
    BL = SC + 32768
    A(f"v_mul_f32 v{t1}, {fhex(1/16)}, v{jf}")
    for q in range(4):
        A(f"v_add_f32 v{t2}, {fhex(float(q))}, v{gf}")
        A(f"v_mul_f32 v{ang+q}, v{t2}, v{t1}")
    for q in range(4):
        A(f"v_cos_f32 v{twc+q}, v{ang+q}")
        A(f"v_sin_f32 v{tws+q}, v{ang+q}")
    for q in range(4):
        A(f"v_cvt_pk_bf16_f32 v{Fre+q}, v{twc+q}, v{tws+q}")
        A(f"v_cvt_pk_bf16_f32 v{Fim+q}, -v{tws+q}, v{twc+q}")
        A(f"v_cvt_pk_bf16_f32 v{Gre+q}, v{twc+q}, -v{tws+q}")
        A(f"v_cvt_pk_bf16_f32 v{Gim+q}, v{tws+q}, v{twc+q}")
    for q in range(4):
        A(f"v_mul_f32 v{ang+q}, {fhex(1/16)}, v{ang+q}")
    for q in range(4):
        A(f"v_cos_f32 v{twc+q}, v{ang+q}")
        A(f"v_sin_f32 v{tws+q}, v{ang+q}")
    for i in range(4):
        A(f"v_mov_b32 v{Wre+i}, 0")
        A(f"v_mov_b32 v{Wim+i}, 0")
    A(f"v_lshrrev_b32 v{t1}, 1, v0")
    A(f"v_and_b32 v{t2}, 1, v0")
    A(f"v_lshlrev_b32 v{vul}, 13, v{t1}")
    A(f"v_lshl_add_u32 v{vul}, v{t2}, 4, v{vul}")
    A(f"s_lshl_b32 s23, s{sX}, 10")
    A(f"s_lshl_b32 s60, s{sY}, 5")
    A("s_add_u32 s23, s23, s60")
    A(f"v_and_b32 v{lbw}, 0xc0, v{t1}")
    A(f"v_and_b32 v{t3}, 15, v{t1}")
    A(f"v_lshl_add_u32 v{lbw}, v{t3}, 2, v{lbw}")
    A(f"v_bfe_u32 v{t3}, v{t1}, 4, 2")
    A(f"v_add_u32 v{lbw}, v{lbw}, v{t3}")
    A(f"v_lshl_add_u32 v{lbw}, v{t2}, 10, v{lbw}")
    A(f"v_lshlrev_b32 v{lbw}, 2, v{lbw}")
    A(f"v_add_u32 v{lbw}, {BL}, v{lbw}")
    A(f"v_add_u32 v{lbr}, {BL}, v{voV}")
    A(f"v_lshl_add_u32 v{lwr}, v{g}, 6, v{j}")
    A(f"v_lshlrev_b32 v{lwr}, 4, v{lwr}")
    A(f"s_lshl_b32 s60, s{sW}, 1")
    A(f"s_add_u32 s60, s60, {WL}")
    A(f"v_add_u32 v{lwr}, s60, v{lwr}")
    A(f"v_add_u32 v{t1}, {WL}, v{voV}")
    A("s_waitcnt vmcnt(0)")
    V.q = []
    A(f"s_cmp_lg_u32 s{sY}, 0")
    A("s_cbranch_scc1 L_nonyq2")
    A("s_mov_b32 s60, 0xffff0000")
    A(f"v_and_or_b32 v{Wraw}, v{Wraw}, s60, v{Wraw+4}")
    A.label("L_nonyq2")
    A(f"ds_write_b128 v{t1}, {vr(Wraw,4)}")
    stamp(A, "b0ld")
    A("s_waitcnt lgkmcnt(0)")
    A("s_barrier")
    stamp(A, "b0ok")
    ld = f"buffer_load_dwordx4 {vr(Ld,4)}, v{vul}, {S(WS)}, s23 offen sc1"
    V.do("u", ld)
    A("s_barrier")
    for c in range(3 if "noclr" not in OPT else 0):
        if c:
            A(f"v_add_u32 v{t2}, {65536*c}, v{voHH}")
        V.do("hhclr", f"buffer_store_dwordx4 {vr(ones,4)}, v{t2 if c else voHH}, {S(SHH)}, 0 offen sc1")
    if "now" not in OPT:
        V.do("w0", dma_w(0))
    for r in range(4):
        A(f"ds_read_u16_d16_hi v{Wre+r}, v{lwr} offset:{256*r}")
        A(f"ds_read_u16_d16_hi v{Wim+r}, v{lwr} offset:{4096+256*r}")
    stamp(A, "Upre")
    V.wait("u")
    stamp(A, "Ufirst")
    RT.check("pu", rng(Ld, 4), t0, [ld])
    stamp(A, "Urdy")
    A(f"ds_write2st64_b32 v{lbw}, v{Ld}, v{Ld+1} offset0:0 offset1:4")
    A(f"ds_write2st64_b32 v{lbw}, v{Ld+2}, v{Ld+3} offset0:8 offset1:12")
    A("s_waitcnt lgkmcnt(0)")
    A("s_barrier")
    A(f"ds_read_b128 {vr(In,4)}, v{lbr}")
    A(f"s_or_b32 s60, s2, s{sW}")
    A("s_cmp_lg_u32 s60, 0")
    A("s_cbranch_scc1 L_notag")
    A(f"v_mov_b32 v{t1}, s{sT}")
    A(f"v_lshlrev_b32 v{t2}, 24, v{lane}")
    A(f"s_mov_b32 s60, {OFF_TAG}")
    A(f"buffer_store_dword v{t1}, v{t2}, {S(WS)}, s60 offen sc1")
    A.label("L_notag")
    A("s_waitcnt lgkmcnt(0)")
    A(f"{MF32} {vr(Dre,4)}, {vr(In,4)}, {vr(Fre,4)}, 0")
    A(f"{MF32} {vr(Dim,4)}, {vr(In,4)}, {vr(Fim,4)}, 0")
    emit(A, cmul4_l(In, Dre, Dim, twc, tws, tb, True))
    A(f"{MF32} {vr(Dre,4)}, {vr(Fre,4)}, {vr(In,4)}, 0")
    A(f"{MF32} {vr(Dim,4)}, {vr(Fim,4)}, {vr(In,4)}, 0")
    emit(A, cmul4_l(In, Dre, Dim, Wre, Wim, tb, False))
    A(f"{MF32} {vr(Dre,4)}, {vr(In,4)}, {vr(Gre,4)}, 0")
    A(f"{MF32} {vr(Dim,4)}, {vr(In,4)}, {vr(Gim,4)}, 0")
    emit(A, cmul4_l(In, Dre, Dim, twc, tws, tb, False))
    A(f"{MF32} {vr(Dre,4)}, {vr(Gre,4)}, {vr(In,4)}, 0")
    A(f"{MF32} {vr(Dim,4)}, {vr(Gim,4)}, {vr(In,4)}, 0")
    for r in range(4):
        A(f"v_cvt_pk_bf16_f32 v{In+r}, v{Dre+r}, v{Dim+r}")
    for r in range(4):
        A(f"v_min_u32 v{In+r}, -2, v{In+r}")
    A(f"ds_write_b128 v{lbr}, {vr(In,4)}")
    stamp(A, "Bfft")
    V.wait("hhclr", "lgkmcnt(0)")
    A("s_barrier")
    A(f"ds_read2st64_b32 {vr(Ld,2)}, v{lbw} offset0:0 offset1:4")
    A(f"ds_read2st64_b32 {vr(Ld+2,2)}, v{lbw} offset0:8 offset1:12")
    A("s_lshl_b32 s60, s2, 13")
    A(f"s_add_u32 s60, s60, {OFF_V}")
    A("s_waitcnt lgkmcnt(0)")
    V.do("vst", f"buffer_store_dwordx4 {vr(Ld,4)}, v{voV}, {S(WS)}, s60 offen sc1")
    stamp(A, "Bdone")

    RC = RA(base)
    B2 = [[RC.get(4, 4), RC.get(4, 4)], [RC.get(4, 4), RC.get(4, 4)]]
    twc, tws = RC.get(8, 4), RC.get(8, 4)
    ang = RC.get(8, 4)
    P = [RC.get(4, 4), RC.get(4, 4)]
    RC.n = max(RC.n, RB.hi)
    L = RC.get(4, 4)
    xf = RC.get(8, 4)
    tl = RC.get(8, 2)
    R8 = RC.get(2, 2)
    B1re, B1im = RC.get(2, 2), RC.get(2, 2)
    Dre = [RC.get(4, 4), RC.get(4, 4)]
    Dim = [RC.get(4, 4), RC.get(4, 4)]
    Y = [RC.get(4, 4), RC.get(4, 4)]
    vvl, lcw, lcr, lnw, lhw, dummy = (RC.get() for _ in range(6))
    A(f"v_lshrrev_b32 v{t2}, 1, v{j}")
    A(f"v_cvt_f32_u32 v{t2}, v{t2}")
    A(f"v_and_b32 v{t3}, 1, v{j}")
    A(f"v_cvt_f32_u32 v{t3}, v{t3}")
    A(f"v_mul_f32 v{t3}, {fhex(-0.25)}, v{t3}")
    A(f"v_cvt_f32_u32 v{t0}, s{sLO}")
    A(f"v_fmamk_f32 v{t0}, v{t2}, {fhex(256.0)}, v{t0}")
    A(f"v_mul_f32 v{t0}, {fhex(1/2048)}, v{t0}")
    A(f"v_mul_f32 v{t1}, 0.5, v{gf}")
    A(f"v_fma_f32 v{ang}, v{t1}, v{t0}, v{t3}")
    A(f"v_add_f32 v{ang+1}, v{ang}, v{t0}")
    A(f"v_mul_f32 v{t0}, {fhex(1/16)}, v{jf}")
    A(f"v_mul_f32 v{ang+2}, v{t1}, v{t0}")
    A(f"v_add_f32 v{ang+3}, v{ang+2}, v{t0}")
    A(f"v_mul_f32 v{t0}, {fhex(1/32)}, v{jf}")
    for r in range(4):
        A(f"v_add_f32 v{t2}, {fhex(float(r))}, v{gf}")
        A(f"v_mul_f32 v{ang+4+r}, v{t2}, v{t0}")
    for e in range(8):
        A(f"v_cos_f32 v{twc+e}, v{ang+e}")
        A(f"v_sin_f32 v{tws+e}, v{ang+e}")
    A(f"v_lshlrev_b32 v{vvl}, 14, v{g}")
    A(f"v_lshrrev_b32 v{t1}, 2, v{j}")
    A(f"v_lshl_add_u32 v{vvl}, v{t1}, 16, v{vvl}")
    A(f"v_and_b32 v{t1}, 3, v{j}")
    A(f"v_lshl_add_u32 v{vvl}, v{t1}, 3, v{vvl}")
    A(f"s_lshl_b32 s23, s{sW}, 18")
    A(f"s_lshl_b32 s60, s{sLO}, 5")
    A("s_add_u32 s23, s23, s60")
    A(f"s_add_u32 s23, s23, {OFF_V}")
    A("s_add_u32 s25, s23, 8192")
    for p in range(2):
        A(f"v_cvt_pk_bf16_f32 v{R8+p}, v{twc+p}, -v{tws+p}")
        A(f"v_cvt_pk_bf16_f32 v{B1re+p}, v{twc+2+p}, -v{tws+2+p}")
        A(f"v_cvt_pk_bf16_f32 v{B1im+p}, v{tws+2+p}, v{twc+2+p}")
    for r in range(4):
        A(f"v_cvt_pk_bf16_f32 v{B2[0][0]+r}, v{twc+4+r}, -v{tws+4+r}")
    A(f"v_and_b32 v{t3}, 1, v{j}")
    A(f"v_mul_u32_u24 v{t3}, 0x8000, v{t3}")
    A(f"v_lshl_or_b32 v{t3}, v{t3}, 16, v{t3}")
    for r in range(4):
        A(f"v_xor_b32 v{B2[1][0]+r}, v{t3}, v{B2[0][0]+r}")
    for t in range(2):
        for r in range(4):
            if r % 2:
                A(f"v_xor_b32 v{B2[t][1]+r}, 0x80008000, v{B2[t][0]+r}")
            else:
                A(f"v_mov_b32 v{B2[t][1]+r}, v{B2[t][0]+r}")
    V.wait("vst")
    stamp(A, "Vdrain")
    lds_ = [f"buffer_load_dwordx2 {vr(L+2*p,2)}, v{vvl}, {S(WS)}, s{23+2*p} offen sc1" for p in range(2)]
    V.do("v", lds_)
    A("s_barrier")
    if "now" not in OPT:
        V.do("w1", dma_w(1))
        V.do("w2", dma_w(2))
        V.do("w3", dma_w(3))
        V.do("w4", dma_w(4))
    A(f"v_mul_f32 v{t0}, {fhex(1/512)}, v{jf}")
    for t in range(2):
        for r in range(4):
            A(f"v_add_f32 v{t2}, {fhex(float(16*t+r))}, v{gf}")
            A(f"v_mul_f32 v{ang+4*t+r}, v{t2}, v{t0}")
    for e in range(8):
        A(f"v_cos_f32 v{twc+e}, v{ang+e}")
        A(f"v_sin_f32 v{tws+e}, v{ang+e}")
    A(f"v_mov_b32 v{t2}, {fhex(2.0**-19)}")
    for e in range(4):
        A(f"v_pk_mul_f32 {p2(twc+2*e)}, {p2(twc+2*e)}, {p2(t2)} op_sel_hi:[1,0]")
        A(f"v_pk_mul_f32 {p2(tws+2*e)}, {p2(tws+2*e)}, {p2(t2)} op_sel_hi:[1,0]")
    LNL, HL = SC + 8192, SC + 16384
    A(f"v_lshlrev_b32 v{lcw}, 11, v{g}")
    A(f"v_lshl_add_u32 v{lcw}, v{j}, 3, v{lcw}")
    A(f"s_lshl_b32 s60, s{sW}, 7")
    A(f"s_add_u32 s60, s60, {SC}")
    A(f"v_add_u32 v{lcw}, s60, v{lcw}")
    A(f"v_lshlrev_b32 v{lcr}, 8, v{g}")
    A(f"v_lshl_add_u32 v{lcr}, v{j}, 2, v{lcr}")
    A(f"s_lshl_b32 s60, s{sW}, 10")
    A(f"s_add_u32 s60, s60, {SC}")
    A(f"v_add_u32 v{lcr}, s60, v{lcr}")
    A(f"v_lshlrev_b32 v{lhw}, 5, v{j}")
    A(f"v_lshl_add_u32 v{lhw}, v{g}, 3, v{lhw}")
    A(f"v_add_u32 v{lhw}, s60, v{lhw}")
    A(f"v_lshlrev_b32 v{lnw}, 8, v{j}")
    A(f"v_lshrrev_b32 v{t1}, 1, v{g}")
    A(f"v_lshl_add_u32 v{lnw}, v{t1}, 7, v{lnw}")
    A(f"v_and_b32 v{t1}, 1, v{g}")
    A(f"v_lshl_add_u32 v{lnw}, v{t1}, 3, v{lnw}")
    A(f"s_lshl_b32 s60, s{sW}, 4")
    A(f"s_add_u32 s60, s60, {SC}")
    A(f"v_add_u32 v{lnw}, s60, v{lnw}")
    emit(A, unpack_l(xf, xC))
    stamp(A, "Vpre")
    V.wait("v")
    stamp(A, "Vfirst")
    RT.check("pv", rng(L, 4), t0, lds_)
    stamp(A, "Vrdy")
    A(f"v_swap_b32 v{L+1}, v{L+2}")
    for u in range(2):
        A(f"{MF16} {vr(Y[u],4)}, {vr(R8,2)}, {vr(L+2*u,2)}, 0")
    for p in range(2):
        for u in range(2):
            A(f"v_cvt_pk_bf16_f32 v{P[0]+2*p+u}, v{Y[u]+2*p}, v{Y[u]+2*p+1}")
        A(f"ds_write_b64 v{lcw}, {vr(P[0]+2*p,2)} offset:{1024*p}")
    A(f"v_cmp_ne_u32 vcc, 0, v{lane}")
    A(f"v_mov_b32 v{t2}, {fhex(2.0**-20)}")
    A("s_waitcnt lgkmcnt(0)")
    A("s_barrier")
    for t in (1, 0):
        A(f"ds_read2_b32 {vr(L+2*t,2)}, v{lcr} offset0:{16*t} offset1:{16*t+32}")
    A("s_waitcnt lgkmcnt(1)")
    A(f"{MF16} {vr(Dre[1],4)}, {vr(L+2,2)}, {vr(B1re,2)}, 0")
    A(f"{MF16} {vr(Dim[1],4)}, {vr(L+2,2)}, {vr(B1im,2)}, 0")
    A("s_waitcnt lgkmcnt(0)")
    A(f"v_readlane_b32 s24, v{L}, 0")
    A(f"v_cndmask_b32 v{L}, 0, v{L}, vcc")
    A("s_lshl_b32 s24, s24, 16")
    A(f"{MF16} {vr(Dre[0],4)}, {vr(L,2)}, {vr(B1re,2)}, 0")
    A(f"{MF16} {vr(Dim[0],4)}, {vr(L,2)}, {vr(B1im,2)}, 0")
    A(f"v_mul_f32 v{Y[0]}, s24, v{t2}")
    A(f"v_sub_f32 v{Y[0]+1}, 0, v{Y[0]}")
    A(f"v_pk_mov_b32 {p2(Y[0]+2)}, {p2(Y[0])}, {p2(Y[0])} op_sel:[0,1]")
    A(f"v_pk_mov_b32 {p2(Y[1])}, {p2(Y[0])}, {p2(Y[0])} op_sel:[0,1]")
    A(f"v_pk_mov_b32 {p2(Y[1]+2)}, {p2(Y[0])}, {p2(Y[0])} op_sel:[0,1]")
    for t in (1, 0):
        emit(A, cmul4_l(P[t], Dre[t], Dim[t], twc + 4 * t, tws + 4 * t, tl + 4 * t, False))
        for u in range(2):
            A(f"{MF32} {vr(Y[u],4)}, {vr(P[t],4)}, {vr(B2[t][u],4)}, {vr(Y[u],4)}")
    yb, hb, yf = P[0], P[1], Dre[0]
    assert Dre[1] == Dre[0] + 4
    for u in range(2):
        for q in range(2):
            A(f"v_cvt_pk_bf16_f32 v{yb+2*u+q}, v{Y[u]+2*q}, v{Y[u]+2*q+1}")
    emit(A, unpack_l(yf, yb))
    for i in range(4):
        A(f"v_pk_add_f32 {p2(xf+2*i)}, {p2(xf+2*i)}, {p2(yf+2*i)}")
    for i in range(4):
        A(f"v_cvt_pk_bf16_f32 v{hb+i}, v{xf+2*i}, v{xf+2*i+1}")
    emit(A, unpack_l(xf, hb))
    side = [f"v_min_u32 v{hb+i}, -2, v{hb+i}" for i in range(4)]
    side += [f"ds_write_b64 v{lhw}, {vr(hb+2*u,2)} offset:{16384+512*u}" for u in range(2)]
    interleave(A, ln_l(xf, tl, 24, yb, c512), side, start=4)
    for u in range(2):
        for q in range(2):
            A(f"v_min_u32 v{yb+2*u+q}, -2, v{yb+2*u+q}")
        A(f"ds_write_b64 v{lnw}, {vr(yb+2*u,2)} offset:{8192+4096*u}")
    A(f"v_add_u32 v{t1}, {SC}, v{voV}")
    A(f"s_lshl_b32 s60, s{sLO}, 13")
    A(f"s_add_u32 s60, s60, {OFF_H}")
    A("s_waitcnt lgkmcnt(0)")
    A("s_barrier")
    A(f"ds_read_b128 {vr(Dre[0],4)}, v{t1} offset:8192")
    A(f"ds_read_b128 {vr(Dre[1],4)}, v{t1} offset:16384")
    A("s_waitcnt lgkmcnt(1)")
    V.do("lnst", f"buffer_store_dwordx4 {vr(Dre[0],4)}, v{vln}, {S(WS)}, s{sLNB} offen sc1")
    A("s_waitcnt lgkmcnt(0)")
    V.do("hst", f"buffer_store_dwordx4 {vr(Dre[1],4)}, v{voV}, {S(WS)}, s60 offen sc1")
    stamp(A, "Cdone")

    RD = RA(base)
    rw = RD.get(3)
    l16b, vtmp = RD.get(), RD.get()
    Fw = [RD.get(24, 4), RD.get(24, 4)]
    acc = RD.get(48, 4)
    X = RD.get(128, 4)
    assert RD.hi <= 256, RD.hi
    sTM, sN0, sROTE, sG, sACT = 23, 25, 26, 27, 21
    V.wait("w4")
    A("s_barrier")
    A(f"s_lshl_b32 s{sTM}, s{sX}, 2")
    A(f"s_and_b32 s60, s{sY}, 3")
    A(f"s_add_u32 s{sTM}, s{sTM}, s60")
    A(f"s_lshr_b32 s{sN0}, s{sY}, 2")
    A("s_mul_i32 s60, s60, 3")
    A(f"s_add_u32 s{sROTE}, s60, s{sN0}")
    A(f"s_cmp_ge_u32 s{sROTE}, 11")
    A("s_cselect_b32 s60, 11, 0")
    A(f"s_sub_u32 s{sROTE}, s{sROTE}, s60")
    A(f"s_lshl_b32 s{sN0}, s{sN0}, 7")
    A(f"v_lshrrev_b32 v{t1}, 3, v{lane}")
    A(f"v_lshlrev_b32 v{vwd}, 10, v{t1}")
    A(f"v_and_b32 v{t1}, 6, v{t1}")
    A(f"v_and_b32 v{t2}, 7, v{lane}")
    A(f"v_xor_b32 v{t1}, v{t1}, v{t2}")
    A(f"v_lshl_add_u32 v{vwd}, v{t1}, 4, v{vwd}")
    A(f"s_and_b32 s60, s{sW}, 3")
    A("s_lshl_b32 s61, s60, 15")
    A(f"s_add_u32 s61, s61, s{sN0}")
    A(f"v_add_u32 v{vwd}, s61, v{vwd}")
    A(f"s_lshr_b32 s61, s{sW}, 2")
    A("s_lshl_b32 s29, s61, 14")
    A("s_lshl_b32 s61, s61, 11")
    A(f"s_mul_i32 s{sG}, s60, 12288")
    A(f"s_add_u32 s{sG}, s{sG}, s61")
    A("s_lshl_b32 s28, s60, 12")
    A("s_add_u32 s28, s28, s61")
    A(f"s_add_u32 s28, s28, {6*SLOT}")
    A("s_add_u32 s30, s29, 8192")

    def idx_of(i, sd):
        return [f"s_add_u32 s{sd}, s{sROTE}, {i}", f"s_cmp_ge_u32 s{sd}, 11", "s_cselect_b32 s62, 11, 0",
                f"s_sub_u32 s{sd}, s{sd}, s62"]

    GB = {1: 49152, 2: 98304, 3: 0}

    def dma_d(i):
        pre = idx_of(i, 22) + ["s_lshl_b32 s22, s22, 17", f"v_add_u32 v{vtmp}, s22, v{vwd}"]
        if i == 0:
            m = lambda n: f"s_add_u32 m0, s28, {1024*n}"
        else:
            grp = (i - 1) // 3 + 1
            m = lambda n: f"s_add_u32 m0, s{sG}, {GB[grp] + ((i-1)%3)*4096 + 1024*n}"
        return [pre + [m(0), f"buffer_load_dwordx4 v{vtmp}, {S(SWD)}, s29 offen lds"],
                [m(1), f"buffer_load_dwordx4 v{vtmp}, {S(SWD)}, s30 offen lds"]]

    A(f"v_lshrrev_b32 v{t0}, 1, v{g}")
    A(f"v_lshlrev_b32 v{t0}, 10, v{t0}")
    A(f"v_and_b32 v{t1}, 1, v{g}")
    A(f"v_mul_u32_u24 v{t1}, {512+32}, v{t1}")
    A(f"v_add_u32 v{t0}, v{t0}, v{t1}")
    A(f"v_lshrrev_b32 v{t1}, 2, v{j}")
    A(f"v_lshl_add_u32 v{t0}, v{t1}, 6, v{t0}")
    A(f"v_and_b32 v{t1}, 3, v{j}")
    A(f"v_lshl_add_u32 v{t0}, v{t1}, 3, v{t0}")
    A(f"s_and_b32 s60, s{sW}, 1")
    A("s_mul_i32 s60, s60, 3")
    for c in range(3):
        A(f"s_add_u32 s61, s60, {c}")
        A("s_and_b32 s62, s61, 1")
        A("s_lshl_b32 s62, s62, 5")
        A("s_lshr_b32 s61, s61, 1")
        A("s_lshl_b32 s61, s61, 12")
        A(f"v_xor_b32 v{t1}, s62, v{t0}")
        A(f"v_add_u32 v{rw+c}, s61, v{t1}")
    A(f"v_add_u32 v{l16b}, 16384, v{l16}")
    A(f"s_lshl_b32 s{sACT}, s{sRT}, 3")
    A(f"s_and_b32 s60, s{sW}, 6")
    A(f"s_add_u32 s{sACT}, s{sACT}, s60")
    A(f"s_lshl_b32 s{sACT}, s{sACT}, 14")
    A(f"s_add_u32 s{sACT}, s{sACT}, {OFF_LN}")

    def act(p):
        pre = [f"s_add_u32 s31, s{sROT}, {p}", "s_and_b32 s31, s31, 7", "s_lshl_b32 s31, s31, 11",
               f"s_add_u32 s31, s31, s{sACT}"]
        o = []
        for ks in range(2):
            for m in range(2):
                ins = f"buffer_load_dwordx4 {vr(X+16*p+8*ks+4*m,4)}, v{l16b if m else l16}, {S(WS)}, s31 offen offset:{1024*ks} sc1"
                o.append(pre + [ins] if not o else [ins])
        return o

    def wreads(p, ks, buf):
        slot = p if p < 6 else p - 6
        o = []
        for c in range(3):
            for mat in range(2):
                for e4 in range(2):
                    off = (slot % 2) * SLOT + mat * 12288 + ks * 2048 + e4 * 256
                    o.append(f"ds_read_b64_tr_b16 {vr(Fw[buf]+(mat*3+c)*4+2*e4,2)}, v{rw+c} offset:{off}")
        return o

    def mfmas(p, ks, buf):
        o = []
        for c in range(3):
            for mat in range(2):
                for m in range(2):
                    a = acc + ((mat * 3 + c) * 2 + m) * 4
                    cc = "0" if (p == 0 and ks == 0) else vr(a, 4)
                    o.append(f"{MF32} {vr(a,4)}, {vr(Fw[buf]+(mat*3+c)*4,4)}, {vr(X+16*p+8*ks+4*m,4)}, {cc}")
        return o

    emit(A, wreads(0, 0, 0))
    V.wait("hst")
    stamp(A, "Cdrain")
    AHEAD = int(os.environ.get("AHEAD", "4"))
    pairs = lambda l: [l[i:i + 2] for i in range(0, len(l), 2)]
    for p in range(AHEAD):
        V.do(f"a{p}", act(p))
    V.do("w5", dma_w(5))
    for p in range(8):
        V.wait(f"a{p}")
        RT.check(f"pa{p}", rng(X + 16 * p, 16), t0, act(p))
        stamp(A, f"a{p}")
        A("s_waitcnt lgkmcnt(0)")
        side = pairs(wreads(p, 1, 1))
        if p + AHEAD < 8:
            side += V.issue(f"a{p+AHEAD}", act(p + AHEAD))
        interleave(A, mfmas(p, 0, 0), side)
        A("s_waitcnt lgkmcnt(0)")
        ex = []
        if p % 2 == 1:
            if p == 3:
                V.wait("w5")
            if p == 5:
                V.wait("w7")
            if p == 7:
                V.wait("d3")
            A("s_barrier")
            if p == 1:
                ex = V.issue("w6", dma_w(6)) + V.issue("w7", dma_w(7))
            else:
                i0 = {3: 0, 5: 4, 7: 7}[p]
                for i in range(i0, {3: 4, 5: 7, 7: 10}[p]):
                    ex += V.issue(f"d{i}", dma_d(i))
            if p < 7:
                d = 2 * SLOT if p < 5 else -4 * SLOT
                for c in range(3):
                    A(f"v_add_u32 v{rw+c}, {d & 0xffffffff:#x}, v{rw+c}")
        side = (pairs(wreads(p + 1, 0, 0)) if p < 7 else []) + ex
        interleave(A, mfmas(p, 1, 1), side)
    stamp(A, "Dmain")
    A(f"s_mov_b32 s60, {fhex(K1)}")
    A(f"v_mov_b32 v{t2}, {fhex(K0)}")
    q = X
    for c in range(3):
        gA = acc + c * 8
        uA = acc + (3 + c) * 8
        for i in range(4):
            A(f"v_pk_mul_f32 {p2(q+2*i)}, {p2(gA+2*i)}, {p2(gA+2*i)}")
        for i in range(4):
            A(f"v_pk_fma_f32 {p2(q+2*i)}, {p2(q+2*i)}, s[60:61], {p2(t2)} op_sel_hi:[1,0,0]")
        for i in range(4):
            A(f"v_pk_mul_f32 {p2(q+2*i)}, {p2(q+2*i)}, {p2(gA+2*i)}")
        for i in range(4):
            A(f"v_exp_f32 v{q+2*i}, v{q+2*i}")
            A(f"v_exp_f32 v{q+2*i+1}, v{q+2*i+1}")
            A(f"v_pk_mul_f32 {p2(uA+2*i)}, {p2(uA+2*i)}, {p2(gA+2*i)}")
        for i in range(4):
            A(f"v_pk_add_f32 {p2(q+2*i)}, {p2(q+2*i)}, 1.0 op_sel_hi:[1,0]")
        for i in range(8):
            A(f"v_rcp_f32 v{q+i}, v{q+i}")
        if c:
            A(f"v_add_u32 v{voHH}, 65536, v{voHH}")
        for i in range(4):
            A(f"v_pk_mul_f32 {p2(q+2*i)}, {p2(q+2*i)}, {p2(uA+2*i)}")
        for i in range(4):
            A(f"v_cvt_pk_bf16_f32 v{gA+i}, v{q+2*i}, v{q+2*i+1}")
        for i in range(4):
            A(f"v_min_u32 v{gA+i}, -2, v{gA+i}")
        V.do("hhst", f"buffer_store_dwordx4 {vr(gA,4)}, v{voHH}, {S(SHH)}, 0 offen sc1")
    stamp(A, "Depi")

    RE = RA(base)
    rd = RE.get(4)
    assert vtmp >= rd + 4
    RE.n = vtmp + 1
    vh, vo, vhr, lrw = (RE.get() for _ in range(4))
    hres = RE.get(4, 4)
    Fd = [RE.get(16, 4), RE.get(16, 4)]
    RE.n = max(RE.n, acc + 48)
    ea = RE.get(32, 4)
    Hf = RE.get(88, 4)
    assert RE.hi <= 256
    A(f"s_and_b32 s60, s{sW}, 3")
    A("s_lshl_b32 s61, s60, 17")
    A(f"v_add_u32 v{vh}, s61, v{l16}")
    A(f"s_lshr_b32 s61, s{sW}, 2")
    A(f"s_lshl_b32 s16, s{sTM}, 1")
    A("s_add_u32 s16, s16, s61")
    A("s_lshl_b32 s18, s16, 5")
    A("s_lshl_b32 s16, s16, 10")
    A("s_add_u32 s17, s16, 65536")
    A(f"v_lshrrev_b32 v{t1}, 2, v{j}")
    A(f"v_lshl_add_u32 v{t1}, v{g}, 2, v{t1}")
    A(f"v_bfe_u32 v{t2}, v{t1}, 1, 2")
    A(f"v_lshlrev_b32 v{t1}, 7, v{t1}")
    A(f"v_lshl_add_u32 v{t1}, v{t2}, 5, v{t1}")
    A(f"v_and_b32 v{t2}, 3, v{j}")
    A(f"v_lshl_add_u32 v{t1}, v{t2}, 3, v{t1}")
    A("s_lshl_b32 s19, s60, 12")
    A(f"s_add_u32 s19, s19, {6*SLOT}")
    A("s_mul_i32 s20, s60, 12288")
    A(f"s_add_u32 s20, s20, {GB[1]}")
    A("s_sub_u32 s20, s20, s19")
    for c in range(4):
        A(f"v_xor_b32 v{rd+c}, {32*c}, v{t1}")
        A(f"v_add_u32 v{rd+c}, s19, v{rd+c}")
    A(f"v_and_b32 v{t1}, 1, v{g}")
    A(f"v_lshlrev_b32 v{t1}, 5, v{t1}")
    A(f"v_lshrrev_b32 v{t2}, 1, v{g}")
    A(f"v_lshl_add_u32 v{t1}, v{t2}, 4, v{t1}")
    A(f"v_lshl_add_u32 v{vhr}, v{j}, 10, v{t1}")
    A(f"v_and_b32 v{t2}, 7, v{j}")
    A(f"v_lshl_add_u32 v{vo}, v{t2}, 18, v{t1}")
    A(f"v_lshrrev_b32 v{t2}, 3, v{j}")
    A(f"v_lshl_add_u32 v{vo}, v{t2}, 10, v{vo}")
    A("s_lshr_b32 s61, s60, 1")
    A("s_lshl_b32 s61, s61, 4")
    A("s_add_u32 s18, s18, s61")
    A("s_and_b32 s61, s60, 1")
    A("s_lshl_b32 s61, s61, 6")
    A(f"s_add_u32 s61, s61, s{sN0}")
    A("s_lshl_b32 s21, s18, 10")
    A("s_add_u32 s21, s21, s61")
    A(f"s_add_u32 s21, s21, {OFF_H}")
    A("s_lshl_b32 s18, s18, 7")
    A("s_add_u32 s18, s18, s61")

    def hload(i):
        pre = idx_of(i, 31) + ["s_lshl_b32 s31, s31, 19", f"v_add_u32 v{t3}, s31, v{vh}"]
        return [pre + [f"buffer_load_dwordx4 {vr(Hf+8*i,4)}, v{t3}, {S(SHH)}, s16 offen sc1"],
                [f"buffer_load_dwordx4 {vr(Hf+8*i+4,4)}, v{t3}, {S(SHH)}, s17 offen sc1"]]

    def dreads(i, buf):
        off = 0 if i in (0, 10) else ((i - 1) % 3) * 4096
        return [f"ds_read_b64_tr_b16 {vr(Fd[buf]+4*c+2*e4,2)}, v{rd+c} offset:{off + 2048*e4}"
                for c in range(4) for e4 in range(2)]

    hl = f"buffer_load_dwordx4 {vr(hres,4)}, v{vhr}, {S(WS)}, s21 offen sc1"
    V.do("hres", hl)
    emit(A, dreads(0, 0))
    V.wait("hres")
    stamp(A, "Edrain")
    EA = 4
    for i in range(EA):
        V.do(f"h{i}", hload(i))
    RT.check("ph", rng(hres, 4), t0, [hl])
    for i in range(11):
        nxt = i + 1
        if nxt in (1, 4, 7, 10):
            for c in range(4):
                if nxt == 1:
                    A(f"v_add_u32 v{rd+c}, s20, v{rd+c}")
                elif nxt == 4:
                    A(f"v_add_u32 v{rd+c}, {GB[2]-GB[1]}, v{rd+c}")
                elif nxt == 7:
                    A(f"v_subrev_u32 v{rd+c}, {GB[2]-GB[3]}, v{rd+c}")
                else:
                    A(f"v_add_u32 v{rd+c}, {GB[1]}, v{rd+c}")
                    A(f"v_subrev_u32 v{rd+c}, s20, v{rd+c}")
        V.wait(f"h{i}")
        RT.check(f"pe{i}", rng(Hf + 8 * i, 8), t0, hload(i))
        stamp(A, f"e{i}")
        A(f"v_swap_b32 v{Hf+8*i+2}, v{Hf+8*i+4}")
        A(f"v_swap_b32 v{Hf+8*i+3}, v{Hf+8*i+5}")
        A("s_waitcnt lgkmcnt(0)")
        ex = []
        if i == 3:
            A("s_barrier")
            pre = idx_of(10, 22) + ["s_lshl_b32 s22, s22, 17", f"v_add_u32 v{vtmp}, s22, v{vwd}"]
            for n in range(4):
                x = (pre if n == 0 else []) + [f"s_add_u32 m0, s19, {1024*n}", f"s_mov_b32 s22, {8192*n}",
                                               f"buffer_load_dwordx4 v{vtmp}, {S(SWD)}, s22 offen lds"]
                ex.append(V.issue("d10", x))
        if i + EA < 11:
            ex += V.issue(f"h{i+EA}", hload(i + EA))
        if i == 9:
            V.wait("d10")
        side = (pairs(dreads(nxt, nxt % 2)) if nxt < 11 else []) + ex
        mm = []
        for c in range(4):
            for m in range(2):
                a = ea + (m * 4 + c) * 4
                mm.append(f"{MF32} {vr(a,4)}, {vr(Fd[i%2]+4*c,4)}, {vr(Hf+8*i+4*m,4)}, {'0' if i == 0 else vr(a,4)}")
        interleave(A, mm, side)
    stamp(A, "Emain")
    RED = GB[1]
    own = Hf
    hf = Hf + 8
    red = Hf + 16
    A(f"s_lshr_b32 s61, s{sW}, 2")
    A("s_mul_i32 s61, s61, 24576")
    A(f"s_add_u32 s61, s61, {RED}")
    A(f"v_add_u32 v{lrw}, s61, v{l16}")
    emit(A, unpack_l(hf, hres))
    A(f"s_and_b32 s60, s{sW}, 3")
    for kq in range(4):
        if kq < 3:
            A(f"s_cmp_lg_u32 s60, {kq}")
            A(f"s_cbranch_scc1 L_rv{kq+1}")
        for o in range(4):
            a = ea + ((o // 2) * 4 + 2 * (o % 2)) * 4
            if o == kq:
                for k in range(4):
                    A(f"v_pk_mov_b32 {p2(own+2*k)}, {p2(a+2*k)}, {p2(a+2*k)} op_sel:[0,1]")
            else:
                sl = (kq - o - 1) & 3
                for u in range(2):
                    A(f"ds_write_b128 v{lrw}, {vr(a+4*u,4)} offset:{o*6144 + sl*2048 + u*1024}")
        if kq < 3:
            A("s_branch L_rvd")
            A.label(f"L_rv{kq+1}")
    A.label("L_rvd")
    A("s_mul_i32 s60, s60, 6144")
    A(f"v_add_u32 v{lrw}, s60, v{lrw}")
    A("s_waitcnt lgkmcnt(0)")
    A("s_barrier")
    for k in range(6):
        A(f"ds_read_b128 {vr(red+4*k,4)}, v{lrw} offset:{1024*k}")
    for sl in range(3):
        A(f"s_waitcnt lgkmcnt({2*(2-sl)})")
        for k in range(4):
            A(f"v_pk_add_f32 {p2(own+2*k)}, {p2(own+2*k)}, {p2(red+8*sl+2*k)}")
    o = red
    for k in range(4):
        A(f"v_cvt_pk_bf16_f32 v{o+k}, v{own+2*k}, v{own+2*k+1}")
    A(f"v_permlane16_swap_b32 v{o}, v{o+2}")
    A(f"v_permlane16_swap_b32 v{o+1}, v{o+3}")
    emit(A, unpack_l(own, o))
    for k in range(4):
        A(f"v_pk_add_f32 {p2(own+2*k)}, {p2(own+2*k)}, {p2(hf+2*k)}")
    for k in range(4):
        A(f"v_cvt_pk_bf16_f32 v{o+k}, v{own+2*k}, v{own+2*k+1}")
    A(f"buffer_store_dwordx4 {vr(o,4)}, v{vo}, {S(SOUT)}, s18 offen")
    if STAMPS:
        A("s_load_dwordx2 s[34:35], s[0:1], 72")
        A("s_waitcnt vmcnt(0) lgkmcnt(0)")
        A("s_memrealtime s[94:95]")
        A("s_waitcnt lgkmcnt(0)")
        srd(A, 96, 34, 16 * MB, 32 * MB)
        A(f"v_and_b32 v{t0}, 0x1c0, v0")
        A("s_lshl_b32 s100, s2, 9")
        A("s_mov_b64 exec, 1")
        for i in range(16):
            A(f"v_mov_b32 v{t1}, s{64+2*i}")
            A(f"buffer_store_dword v{t1}, v{t0}, s[96:99], s100 offen offset:{4*i}")
        A("s_waitcnt vmcnt(0)")
    A.label("L_end")
    A("s_endpgm")
    RT.flush()
    return name, A.finalize(), 256, (256, 512, 163840), 0


def build_q(as_list=False):
    name, body, nv, (gx, bx, lds), ag = gen_Q()
    out = HEADER
    if STAMPS:
        out += "; STAMPSET " + ",".join(STAMPSET) + "\n"
    if as_list:
        out += f"; @launch kernel={name} grid=({gx},1,1) block=({bx},1,1) lds={lds}\n"
    else:
        out += f"; @launch grid=({gx},1,1) block=({bx},1,1) lds={lds}\n"
    out += '.amdgcn_target "amdgcn-amd-amdhsa--gfx950"\n' + body + kernel_desc(name, nv, agprs=ag)
    return out


if __name__ == "__main__":
    path = sys.argv[1] if len(sys.argv) > 1 else f"cdna_kernels/{NAME}.s"
    s = build_q(as_list=len(sys.argv) > 2)
    open(path, "w").write(s)
    print("lines", s.count("\n"))
```

```python
import sys, math, os
sys.path.insert(0, "work")
from asmlib import Asm, fhex
from gen import RA, vr, srd, kernel_header, kernel_desc, NAME, MB, W_BYTES, WG_BYTES, STAMPS
from gen_p import emit, zipl, interleave, reduce_l, unpack_l, ln_l, cmul4_l, S, K0, K1, MF32, MF16, HEADER

OFF_U, OFF_V, OFF_H, OFF_LN, OFF_HH = 0, 2 * MB, 4 * MB, 6 * MB, 8 * MB
OFF_FL = 14 * MB
OFF_TAG = 14 * MB + 8192
OFF_FH = 14 * MB + 65536
NT = os.environ.get('NTF', ' nt')
TAG_STEP = 0x9E3779B9
sT = 3
HH_BYTES = 86 * 65536
SPIN = 200000
WS, DBG, SX, SWF, SWM, SWD, SOUT, SHH = 4, 8, 36, 40, 44, 48, 52, 56
sW, sX, sY, sLO = 12, 13, 14, 15
SLOT = 24576
SC = 5 * SLOT
p2 = lambda a: vr(a, 2)


class VM:
    def __init__(self, A):
        self.A = A
        self.q = []

    def issue(self, tag, ins):
        def walk(x):
            if isinstance(x, list):
                for y in x:
                    walk(y)
            elif x.startswith("buffer_"):
                self.q.append(tag)
        walk(ins)
        return ins

    def do(self, tag, ins):
        emit(self.A, [self.issue(tag, ins)])

    def count_after(self, tag):
        idx = max((i for i, t in enumerate(self.q) if t == tag), default=-1)
        return len(self.q) - 1 - idx, idx

    def wait(self, tag, extra=""):
        n, idx = self.count_after(tag)
        if idx < 0:
            if extra:
                self.A("s_waitcnt " + extra)
            return
        assert n <= 63, n
        self.A(f"s_waitcnt vmcnt({n}) {extra}".strip())
        self.q = self.q[idx + 1:]


STAMPSET = os.environ.get("STAMPSET", "start,xrdy,Adone,b0ld,b0ok,Urdy,Bdone,Vdrain,Vrdy,Cdone,Cdrain,Dmain,Depi,Edrain,Emain").split(",")
OPT = set(os.environ.get("OPT", "").split(","))


def stamp(A, name):
    if STAMPS and name in STAMPSET:
        i = STAMPSET.index(name)
        A(f"s_memrealtime s[{64+2*i}:{65+2*i}]")


def maxtree(regs, vt):
    n = len(regs)
    o = []
    if n == 4:
        o.append(f"v_max3_u32 v{vt}, v{regs[0]}, v{regs[1]}, v{regs[2]}")
        o.append(f"v_max_u32 v{vt}, v{vt}, v{regs[3]}")
    else:
        o.append(f"v_max3_u32 v{vt}, v{regs[0]}, v{regs[1]}, v{regs[2]}")
        o.append(f"v_max3_u32 v{vt+1}, v{regs[3]}, v{regs[4]}, v{regs[5]}")
        i = 6
        k = 0
        while i + 1 < n:
            o.append(f"v_max3_u32 v{vt+k}, v{vt+k}, v{regs[i]}, v{regs[i+1]}")
            i += 2
            k ^= 1
        assert i == n
        o.append(f"v_max_u32 v{vt}, v{vt}, v{vt+1}")
    o.append(f"v_cmp_eq_u32 vcc, -1, v{vt}")
    return o


class Retry:
    def __init__(self, A):
        self.A = A
        self.blocks = []

    def check(self, tag, regs, vt, reload):
        A = self.A
        emit(A, maxtree(regs, vt))
        A(f"s_cbranch_vccnz L{tag}_r")
        A.label(f"L{tag}_ok")
        self.blocks.append((tag, regs, vt, reload))

    def flush(self):
        A = self.A
        for tag, regs, vt, reload in self.blocks:
            A.label(f"L{tag}_r")
            A("s_mov_b32 s63, 0")
            A.label(f"L{tag}_r2")
            A("s_mov_b64 exec, vcc")
            emit(A, reload)
            A("s_waitcnt vmcnt(0)")
            emit(A, maxtree(regs, vt))
            A("s_add_u32 s63, s63, 1")
            A(f"s_cmp_gt_u32 s63, {SPIN}")
            A(f"s_cbranch_scc1 L{tag}_x")
            A(f"s_cbranch_vccnz L{tag}_r2")
            A.label(f"L{tag}_x")
            A("s_mov_b64 exec, -1")
            A(f"s_branch L{tag}_ok")


def rng(a, n):
    return list(range(a, a + n))


def gen_Q():
    A = Asm()
    V = VM(A)
    RT = Retry(A)
    name = NAME + "_kernel"
    kernel_header(A, name)
    R = RA(1)
    lane, g, j, gf, jf, c512, b0 = (R.get() for _ in range(7))
    t0 = R.get(4, 2)
    t1, t2, t3 = t0 + 1, t0 + 2, t0 + 3
    voV, vln, vw, vwd, l16 = (R.get() for _ in range(5))
    voHH = R.get()
    xC = R.get(4, 2)
    base = R.n

    A("s_cmp_ge_u32 s2, 256")
    A("s_cbranch_scc1 L_end")
    stamp(A, "start")
    A("s_load_dwordx16 s[16:31], s[0:1], 0")
    A("s_load_dwordx4 s[32:35], s[0:1], 64")
    RA_ = RA(base)
    xr = RA_.get(4, 4)
    xf = RA_.get(8, 4)
    tl = RA_.get(8, 2)
    Bc = [RA_.get(4, 4), RA_.get(4, 4)]
    Bs = [RA_.get(4, 4), RA_.get(4, 4)]
    twc, tws = RA_.get(8, 4), RA_.get(8, 4)
    A2, A2n = RA_.get(4, 4), RA_.get(4, 4)
    R8 = RA_.get(2, 2)
    za = RA_.get(4, 4)
    Dre = [RA_.get(4, 4), RA_.get(4, 4)]
    Dim = [RA_.get(4, 4), RA_.get(4, 4)]
    P = [RA_.get(4, 4), RA_.get(4, 4)]
    Zn = RA_.get(4, 4)
    ang = RA_.get(8, 4)
    vx, voC, voU, vwo = (RA_.get() for _ in range(4))
    lz, lzr, lw, lru = (RA_.get() for _ in range(4))
    ones = 248
    Wraw = 240
    A(f"v_and_b32 v{lane}, 63, v0")
    A(f"v_lshrrev_b32 v{t0}, 6, v0")
    A(f"v_lshrrev_b32 v{g}, 4, v{lane}")
    A(f"v_and_b32 v{j}, 15, v{lane}")
    A(f"v_readfirstlane_b32 s{sW}, v{t0}")
    A(f"s_and_b32 s{sX}, s2, 7")
    A(f"s_lshr_b32 s{sY}, s2, 3")
    A(f"s_lshl_b32 s{sLO}, s{sX}, 5")
    A(f"s_add_u32 s{sLO}, s{sLO}, s{sY}")
    A(f"v_lshlrev_b32 v{voV}, 4, v0")
    A(f"v_lshlrev_b32 v{l16}, 4, v{lane}")
    A(f"v_lshlrev_b32 v{vx}, 18, v{t0}")
    A(f"v_lshl_add_u32 v{voC}, v{j}, 5, v{vx}")
    A(f"v_lshl_add_u32 v{voC}, v{g}, 3, v{voC}")
    A(f"v_add_u32 v{vx}, v{l16}, v{vx}")
    for i in range(4):
        A(f"v_mov_b32 v{ones+i}, -1")
    A(f"v_and_b32 v{vwo}, 255, v0")
    A(f"v_mul_u32_u24 v{vwo}, {514*8}, v{vwo}")
    A(f"s_lshl_b32 s60, s{sLO}, 13")
    A(f"s_lshl_b32 s61, s{sLO}, 10")
    A(f"v_mov_b32 v{c512}, {fhex(1.0/512)}")
    A(f"v_cvt_f32_u32 v{gf}, v{g}")
    A(f"v_cvt_f32_u32 v{jf}, v{j}")
    A(f"v_mul_f32 v{gf}, 4.0, v{gf}")
    A(f"v_mul_f32 v{t1}, {fhex(1/32)}, v{jf}")
    for e in range(8):
        a_add = e if e < 4 else 12 + e
        A(f"v_add_f32 v{t2}, {fhex(float(a_add))}, v{gf}")
        A(f"v_mul_f32 v{ang+e}, v{t2}, v{t1}")
    for e in range(8):
        A(f"v_cos_f32 v{twc+e}, v{ang+e}")
        A(f"v_sin_f32 v{tws+e}, v{ang+e}")
    for q in range(4):
        A(f"v_cvt_pk_bf16_f32 v{Bc[0]+q}, v{twc+2*q}, v{twc+2*q+1}")
        A(f"v_cvt_pk_bf16_f32 v{Bs[0]+q}, -v{tws+2*q}, -v{tws+2*q+1}")
    for q in range(4):
        A(f"v_xor_b32 v{Bc[1]+q}, 0x80000000, v{Bc[0]+q}")
        A(f"v_xor_b32 v{Bs[1]+q}, 0x80000000, v{Bs[0]+q}")
    A("s_waitcnt lgkmcnt(0)")
    stamp(A, "karg")
    srd(A, WS, 34, 16 * MB)
    srd(A, SX, 16, 2 * MB)
    A(f"s_cmp_lg_u32 s{sW}, 7")
    A("s_cbranch_scc1 L_nouclr")
    for i in range(8):
        if i == 4:
            A("s_add_u32 s60, s60, 4096")
        A(f"buffer_store_dwordx4 {vr(ones,4)}, v{l16}, {S(WS)}, s60 offen offset:{1024*(i%4)} sc1")
    A.label("L_nouclr")
    V.q.append("uclr")
    V.do("x", f"buffer_load_dwordx4 {vr(xr,4)}, v{vx}, {S(SX)}, s61 offen{NT}")
    for u in range(2):
        V.do("xc", f"buffer_load_dwordx2 {vr(xC+2*u,2)}, v{voC}, {S(SX)}, s61 offen offset:{512*u}")
    A(f"s_add_u32 s62, s34, {OFF_TAG}")
    A("s_addc_u32 s63, s35, 0")
    A(f"s_load_dword s{sT}, s[62:63], 0")
    A(f"s_cmp_lt_u32 s{sW}, 4")
    A(f"s_cselect_b64 s[{SWF}:{SWF+1}], s[18:19], s[20:21]")
    A(f"s_cselect_b64 s[{SWM}:{SWM+1}], s[24:25], s[26:27]")
    A(f"s_mov_b32 s{SWF+2}, {W_BYTES:#x}")
    A(f"s_mov_b32 s{SWF+3}, 0x20000")
    A(f"s_mov_b32 s{SWM+2}, {WG_BYTES:#x}")
    A(f"s_mov_b32 s{SWM+3}, 0x20000")
    srd(A, SWD, 28, WG_BYTES)
    srd(A, SOUT, 30, 2 * MB)
    srd(A, SHH, 34, HH_BYTES, OFF_HH)
    sRT, sFT, sROT, sWSRC, sWDST, sLNB = 16, 17, 18, 19, 20, 21
    A(f"s_and_b32 s{sRT}, s{sX}, 1")
    A(f"s_lshl_b32 s{sRT}, s{sRT}, 3")
    A(f"s_and_b32 s60, s{sY}, 7")
    A(f"s_add_u32 s{sRT}, s{sRT}, s60")
    A(f"s_lshr_b32 s{sFT}, s{sX}, 1")
    A(f"s_lshl_b32 s{sFT}, s{sFT}, 2")
    A(f"s_lshr_b32 s61, s{sY}, 3")
    A(f"s_add_u32 s{sFT}, s{sFT}, s61")
    A("s_lshl_b32 s61, s61, 1")
    A(f"s_add_u32 s{sROT}, s60, s61")
    A(f"s_and_b32 s60, s{sW}, 3")
    A(f"s_mul_i32 s{sWSRC}, s60, {16*2752}")
    A(f"s_mul_i32 s61, s{sFT}, 192")
    A(f"s_add_u32 s{sWSRC}, s{sWSRC}, s61")
    A(f"s_lshl_b32 s{sWDST}, s60, 10")
    A(f"s_lshr_b32 s60, s{sW}, 2")
    A("s_mul_i32 s60, s60, 12288")
    A(f"s_add_u32 s{sWDST}, s{sWDST}, s60")
    A(f"v_lshrrev_b32 v{t0}, 2, v{lane}")
    A(f"v_mul_u32_u24 v{vw}, 2752, v{t0}")
    A(f"v_and_b32 v{t1}, 2, v{g}")
    A(f"v_and_b32 v{t2}, 3, v{lane}")
    A(f"v_xor_b32 v{t1}, v{t1}, v{t2}")
    A(f"v_lshl_add_u32 v{vw}, v{t1}, 4, v{vw}")
    A(f"v_lshrrev_b32 v{t0}, 3, v0")
    A(f"v_lshlrev_b32 v{vln}, 8, v{t0}")
    A(f"v_and_b32 v{t0}, 7, v0")
    A(f"v_lshl_add_u32 v{vln}, v{t0}, 4, v{vln}")
    A(f"s_lshr_b32 s{sLNB}, s{sLO}, 1")
    A(f"s_lshl_b32 s{sLNB}, s{sLNB}, 14")
    A(f"s_and_b32 s60, s{sLO}, 1")
    A("s_lshl_b32 s60, s60, 7")
    A(f"s_add_u32 s{sLNB}, s{sLNB}, s60")
    A(f"s_add_u32 s{sLNB}, s{sLNB}, {OFF_LN}")
    A(f"s_mul_i32 s60, s{sFT}, 6")
    A(f"s_and_b32 s61, s{sW}, 1")
    A("s_mul_i32 s61, s61, 3")
    A("s_add_u32 s60, s60, s61")
    A("s_lshl_b32 s60, s60, 16")
    A(f"s_lshl_b32 s61, s{sRT}, 2")
    A(f"s_lshr_b32 s62, s{sW}, 1")
    A("s_add_u32 s61, s61, s62")
    A("s_lshl_b32 s61, s61, 10")
    A("s_add_u32 s60, s60, s61")
    A(f"v_add_u32 v{voHH}, s60, v{l16}")

    def dma_w(p, fl=''):
        slot = p if p < 6 else p - 6
        out = []
        for cp in range(3):
            x = []
            if cp == 0:
                x += [f"s_add_u32 s22, s{sROT}, {p}", "s_and_b32 s22, s22, 7", f"s_mul_i32 s22, s22, {64*2752}",
                      f"s_add_u32 s22, s22, s{sWSRC}"]
            x.append(f"s_add_u32 m0, s{sWDST}, {slot*SLOT + cp*4096 - cp*64}")
            x.append(f"buffer_load_dwordx4 v{vw}, {S(SWM)}, s22 offen offset:{cp*64}{fl} lds")
            out.append(x)
        return out

    A("s_barrier")
    stamp(A, "bar1")
    A("s_lshl_b32 s62, s2, 13")
    A(f"s_add_u32 s62, s62, {OFF_V}")
    V.do("vclr", f"buffer_store_dwordx4 {vr(ones,4)}, v{voV}, {S(WS)}, s62 offen sc1")
    A(f"v_lshrrev_b32 v{t1}, 3, v{lane}")
    A(f"v_mul_u32_u24 v{t1}, {514*8}, v{t1}")
    A(f"v_and_b32 v{t2}, 7, v{lane}")
    A(f"v_min_u32 v{t2}, 4, v{t2}")
    A(f"v_lshl_add_u32 v{t1}, v{t2}, 7, v{t1}")
    A(f"s_mul_i32 s60, s{sX}, 514")
    A(f"s_mul_i32 s61, s{sY}, {514*64}")
    A("s_add_u32 s61, s61, s60")
    A(f"s_and_b32 s60, s{sW}, 3")
    A("s_cmp_lg_u32 s60, 0")
    A("s_cbranch_scc1 L_notch")
    A(f"buffer_load_ushort v{Wraw+5}, v{t1}, {S(SWF)}, s61 offen{NT}")
    A.label("L_notch")
    if "now" not in OPT:
        V.do("w0", dma_w(0, NT))
    A(f"v_lshrrev_b32 v{t2}, 1, v{j}")
    A(f"v_cvt_f32_u32 v{t2}, v{t2}")
    A(f"v_and_b32 v{t3}, 1, v{j}")
    A(f"v_cvt_f32_u32 v{t3}, v{t3}")
    A(f"v_mul_f32 v{t3}, {fhex(0.25)}, v{t3}")
    A(f"v_mul_f32 v{t1}, {fhex(1/16)}, v{t2}")
    for q in range(4):
        A(f"v_add_f32 v{ang+q}, {fhex(float(q))}, v{gf}")
        A(f"v_fma_f32 v{ang+q}, v{ang+q}, v{t1}, v{t3}")
    A(f"v_cvt_f32_u32 v{t0}, s{sLO}")
    A(f"v_mul_f32 v{t1}, {fhex(1/2048)}, v{t2}")
    A(f"v_fmamk_f32 v{t0}, v{gf}, {fhex(128.0)}, v{t0}")
    A(f"v_fma_f32 v{ang+4}, v{t0}, v{t1}, v{t3}")
    A(f"v_add_f32 v{t0}, {fhex(256.0)}, v{t0}")
    A(f"v_fma_f32 v{ang+5}, v{t0}, v{t1}, v{t3}")
    for q in range(6):
        A(f"v_cos_f32 v{twc+q}, v{ang+q}")
        A(f"v_sin_f32 v{tws+q}, v{ang+q}")
    for q in range(4):
        A(f"v_cvt_pk_bf16_f32 v{A2+q}, v{twc+q}, v{tws+q}")
    for p in range(2):
        A(f"v_cvt_pk_bf16_f32 v{R8+p}, v{twc+4+p}, v{tws+4+p}")
    for q in range(4):
        A(f"v_mov_b32 v{A2n+q}, {0x3F80 if q % 2 == 0 else 0xBF80:#x}")
    for t in range(2):
        A(f"v_add_f32 v{t1}, {fhex(16.0*t)}, v{jf}")
        A(f"v_mul_f32 v{t1}, {fhex(1/512)}, v{t1}")
        for r in range(4):
            A(f"v_add_f32 v{t2}, {fhex(float(r))}, v{gf}")
            A(f"v_mul_f32 v{ang+4*t+r}, v{t2}, v{t1}")
    for e in range(8):
        A(f"v_cos_f32 v{twc+e}, v{ang+e}")
        A(f"v_sin_f32 v{tws+e}, v{ang+e}")
    ZL = SC + 8192
    A(f"v_add_u32 v{lz}, {SC}, v{voV}")
    A(f"s_lshl_b32 s60, s{sW}, 10")
    A(f"s_add_u32 s60, s60, {SC}")
    A(f"v_lshl_add_u32 v{lzr}, v{lane}, 3, s60")
    A(f"v_lshlrev_b32 v{lw}, 8, v{g}")
    A(f"v_lshl_add_u32 v{lw}, v{j}, 2, v{lw}")
    A("s_add_u32 s60, s60, 8192")
    A(f"v_add_u32 v{lw}, s60, v{lw}")
    A(f"s_lshl_b32 s60, s{sW}, 8")
    A(f"v_lshlrev_b32 v{voU}, 11, v{g}")
    A(f"v_lshl_add_u32 v{voU}, v{j}, 4, v{voU}")
    A(f"v_add_u32 v{voU}, s60, v{voU}")
    A(f"v_add_u32 v{lru}, {ZL}, v{voU}")
    stamp(A, "const")
    A("s_waitcnt lgkmcnt(0)")
    A(f"s_add_u32 s{sT}, s{sT}, {TAG_STEP:#x}")
    A(f"s_cmp_lg_u32 s{sW}, 7")
    A("s_cbranch_scc1 L_noarr")
    V.wait("uclr")
    A(f"v_mov_b32 v{t1}, s{sT}")
    A("s_lshl_b32 s60, s2, 4")
    A(f"s_add_u32 s60, s60, {OFF_FL}")
    A(f"v_lshlrev_b32 v{t2}, 24, v{lane}")
    A(f"buffer_store_dword v{t1}, v{t2}, {S(WS)}, s60 offen sc1")
    A.label("L_noarr")
    V.wait("x")
    stamp(A, "xrdy")
    main = unpack_l(xf, xr) + ln_l(xf, tl, 24, xr, c512)
    emit(A, main)
    stamp(A, "Aln")
    A(f"s_mul_i32 s60, s{sX}, 514")
    A(f"s_lshl_b32 s61, s{sY}, 4")
    A("s_add_u32 s61, s61, s60")
    V.do("w", f"buffer_load_dwordx4 {vr(Wraw,4)}, v{vwo}, {S(SWF)}, s61 offen")
    A(f"s_cmp_lg_u32 s{sY}, 0")
    A("s_cbranch_scc1 L_nonyq")
    A(f"buffer_load_ushort v{Wraw+4}, v{vwo}, {S(SWF)}, s60 offen offset:512")
    A.label("L_nonyq")
    A(f"ds_write_b128 v{lz}, {vr(xr,4)}")
    A("s_waitcnt lgkmcnt(0)")
    A(f"ds_read_b64_tr_b16 {vr(za,2)}, v{lzr}")
    A(f"ds_read_b64_tr_b16 {vr(za+2,2)}, v{lzr} offset:512")
    A(f"v_cmp_eq_u32 vcc, 0, v{lane}")
    A("s_waitcnt lgkmcnt(0)")
    for t in range(2):
        A(f"{MF32} {vr(Dre[t],4)}, {vr(za,4)}, {vr(Bc[t],4)}, 0")
        A(f"{MF32} {vr(Dim[t],4)}, {vr(za,4)}, {vr(Bs[t],4)}, 0")
    for t in range(2):
        emit(A, cmul4_l(P[t], Dre[t], Dim[t], twc + 4 * t, tws + 4 * t, tl + 4 * t, True))
        A(f"{MF32} {vr(Dre[t],4)}, {vr(A2,4)}, {vr(P[t],4)}, 0")
        if t == 0:
            A(f"{MF32} {vr(Zn,4)}, {vr(A2n,4)}, {vr(P[0],4)}, 0")
    A(f"v_cndmask_b32 v{Dre[0]}, v{Dre[0]}, v{Zn}, vcc")
    for t in range(2):
        for q in range(2):
            A(f"v_cvt_pk_bf16_f32 v{P[t]+q}, v{Dre[t]+2*q}, v{Dre[t]+2*q+1}")
        A(f"ds_write2_b32 v{lw}, v{P[t]}, v{P[t]+1} offset0:{16*t} offset1:{16*t+32}")
    stamp(A, "Afft")
    V.wait("vclr", "lgkmcnt(0)")
    A("s_barrier")
    stamp(A, "Abar")
    A(f"s_cmp_ge_u32 s{sW}, 4")
    A("s_cbranch_scc1 L_Askip")
    L8 = xf
    A(f"ds_read_b128 {vr(L8,4)}, v{lru}")
    A(f"ds_read_b128 {vr(L8+4,4)}, v{lru} offset:1024")
    A(f"s_lshl_b32 s60, s{sLO}, 13")
    A("s_waitcnt lgkmcnt(0)")
    A(f"v_swap_b32 v{L8+1}, v{L8+4}")
    A(f"v_swap_b32 v{L8+3}, v{L8+6}")
    upos = [0, 4, 2, 6]
    Y4 = [Dre[0], Dre[1], Dim[0], Dim[1]]
    for u in range(4):
        A(f"{MF16} {vr(Y4[u],4)}, {vr(R8,2)}, {vr(L8+upos[u],2)}, 0")
    O8 = P[0]
    assert P[1] == P[0] + 4
    for p in range(2):
        for u in range(4):
            A(f"v_cvt_pk_bf16_f32 v{O8+4*p+u}, v{Y4[u]+2*p}, v{Y4[u]+2*p+1}")
        for u in range(4):
            A(f"v_min_u32 v{O8+4*p+u}, -2, v{O8+4*p+u}")
        A(f"buffer_store_dwordx4 {vr(O8+4*p,4)}, v{voU}, {S(WS)}, s60 offen offset:{1024*p} sc1")
    A("s_branch L_Adone")
    A.label("L_Askip")
    A(f"v_add_u32 v{t1}, {(OFF_FL - 4096) & 0xffffffff:#x}, v{voV}")
    A("s_mov_b32 s63, 0")
    A.label("L_b0r")
    A(f"buffer_load_dword v{b0}, v{t1}, {S(WS)}, 0 offen sc1")
    A("s_waitcnt vmcnt(0)")
    A(f"v_cmp_ne_u32 vcc, s{sT}, v{b0}")
    A("s_add_u32 s63, s63, 1")
    A(f"s_cmp_gt_u32 s63, {SPIN}")
    A("s_cbranch_scc1 L_Adone")
    A("s_cbranch_vccnz L_b0r")
    A.label("L_Adone")
    stamp(A, "Adone")

    RB = RA(base)
    In = RB.get(4, 4)
    Fre, Fim, Gre, Gim = RB.get(4, 4), RB.get(4, 4), RB.get(4, 4), RB.get(4, 4)
    twc, tws = RB.get(4, 4), RB.get(4, 4)
    Wre, Wim = RB.get(4, 4), RB.get(4, 4)
    Dre, Dim = RB.get(4, 4), RB.get(4, 4)
    tb = RB.get(4, 2)
    ang = RB.get(4)
    Ld = RB.get(4, 4)
    vul, lbw, lbr, lwr = (RB.get() for _ in range(4))
    WL = SC + 16384
    BL = SC + 32768
    A(f"v_mul_f32 v{t1}, {fhex(1/16)}, v{jf}")
    for q in range(4):
        A(f"v_add_f32 v{t2}, {fhex(float(q))}, v{gf}")
        A(f"v_mul_f32 v{ang+q}, v{t2}, v{t1}")
    for q in range(4):
        A(f"v_cos_f32 v{twc+q}, v{ang+q}")
        A(f"v_sin_f32 v{tws+q}, v{ang+q}")
    for q in range(4):
        A(f"v_cvt_pk_bf16_f32 v{Fre+q}, v{twc+q}, v{tws+q}")
        A(f"v_cvt_pk_bf16_f32 v{Fim+q}, -v{tws+q}, v{twc+q}")
        A(f"v_cvt_pk_bf16_f32 v{Gre+q}, v{twc+q}, -v{tws+q}")
        A(f"v_cvt_pk_bf16_f32 v{Gim+q}, v{tws+q}, v{twc+q}")
    for q in range(4):
        A(f"v_mul_f32 v{ang+q}, {fhex(1/16)}, v{ang+q}")
    for q in range(4):
        A(f"v_cos_f32 v{twc+q}, v{ang+q}")
        A(f"v_sin_f32 v{tws+q}, v{ang+q}")
    for i in range(4):
        A(f"v_mov_b32 v{Wre+i}, 0")
        A(f"v_mov_b32 v{Wim+i}, 0")
    A(f"v_lshrrev_b32 v{t1}, 1, v0")
    A(f"v_and_b32 v{t2}, 1, v0")
    A(f"v_lshlrev_b32 v{vul}, 13, v{t1}")
    A(f"v_lshl_add_u32 v{vul}, v{t2}, 4, v{vul}")
    A(f"s_lshl_b32 s23, s{sX}, 10")
    A(f"s_lshl_b32 s60, s{sY}, 5")
    A("s_add_u32 s23, s23, s60")
    A(f"v_and_b32 v{lbw}, 0xc0, v{t1}")
    A(f"v_and_b32 v{t3}, 15, v{t1}")
    A(f"v_lshl_add_u32 v{lbw}, v{t3}, 2, v{lbw}")
    A(f"v_bfe_u32 v{t3}, v{t1}, 4, 2")
    A(f"v_add_u32 v{lbw}, v{lbw}, v{t3}")
    A(f"v_lshl_add_u32 v{lbw}, v{t2}, 10, v{lbw}")
    A(f"v_lshlrev_b32 v{lbw}, 2, v{lbw}")
    A(f"v_add_u32 v{lbw}, {BL}, v{lbw}")
    A(f"v_add_u32 v{lbr}, {BL}, v{voV}")
    A(f"v_lshl_add_u32 v{lwr}, v{g}, 6, v{j}")
    A(f"v_lshlrev_b32 v{lwr}, 4, v{lwr}")
    A(f"s_lshl_b32 s60, s{sW}, 1")
    A(f"s_add_u32 s60, s60, {WL}")
    A(f"v_add_u32 v{lwr}, s60, v{lwr}")
    A(f"v_add_u32 v{t1}, {WL}, v{voV}")
    A("s_waitcnt vmcnt(0)")
    V.q = []
    A(f"s_cmp_lg_u32 s{sY}, 0")
    A("s_cbranch_scc1 L_nonyq2")
    A("s_mov_b32 s60, 0xffff0000")
    A(f"v_and_or_b32 v{Wraw}, v{Wraw}, s60, v{Wraw+4}")
    A.label("L_nonyq2")
    A(f"ds_write_b128 v{t1}, {vr(Wraw,4)}")
    stamp(A, "b0ld")
    A("s_waitcnt lgkmcnt(0)")
    A("s_barrier")
    stamp(A, "b0ok")
    ld = f"buffer_load_dwordx4 {vr(Ld,4)}, v{vul}, {S(WS)}, s23 offen sc1"
    V.do("u", ld)
    for r in range(4):
        A(f"ds_read_u16_d16_hi v{Wre+r}, v{lwr} offset:{256*r}")
        A(f"ds_read_u16_d16_hi v{Wim+r}, v{lwr} offset:{4096+256*r}")
    stamp(A, "Upre")
    V.wait("u")
    stamp(A, "Ufirst")
    RT.check("pu", rng(Ld, 4), t0, [ld])
    stamp(A, "Urdy")
    A(f"ds_write2st64_b32 v{lbw}, v{Ld}, v{Ld+1} offset0:0 offset1:4")
    A(f"ds_write2st64_b32 v{lbw}, v{Ld+2}, v{Ld+3} offset0:8 offset1:12")
    A("s_waitcnt lgkmcnt(0)")
    A("s_barrier")
    A(f"ds_read_b128 {vr(In,4)}, v{lbr}")
    V.do("lnclr", f"buffer_store_dwordx4 {vr(ones,4)}, v{vln}, {S(WS)}, s{sLNB} offen sc1")
    if "now" not in OPT:
        V.do("w1", dma_w(1))
    A(f"s_or_b32 s60, s2, s{sW}")
    A("s_cmp_lg_u32 s60, 0")
    A("s_cbranch_scc1 L_notag")
    A(f"v_mov_b32 v{t1}, s{sT}")
    A(f"v_lshlrev_b32 v{t2}, 24, v{lane}")
    A(f"s_mov_b32 s60, {OFF_TAG}")
    A(f"buffer_store_dword v{t1}, v{t2}, {S(WS)}, s60 offen sc1")
    A.label("L_notag")
    A("s_waitcnt lgkmcnt(0)")
    A(f"{MF32} {vr(Dre,4)}, {vr(In,4)}, {vr(Fre,4)}, 0")
    A(f"{MF32} {vr(Dim,4)}, {vr(In,4)}, {vr(Fim,4)}, 0")
    emit(A, cmul4_l(In, Dre, Dim, twc, tws, tb, True))
    A(f"{MF32} {vr(Dre,4)}, {vr(Fre,4)}, {vr(In,4)}, 0")
    A(f"{MF32} {vr(Dim,4)}, {vr(Fim,4)}, {vr(In,4)}, 0")
    emit(A, cmul4_l(In, Dre, Dim, Wre, Wim, tb, False))
    A(f"{MF32} {vr(Dre,4)}, {vr(In,4)}, {vr(Gre,4)}, 0")
    A(f"{MF32} {vr(Dim,4)}, {vr(In,4)}, {vr(Gim,4)}, 0")
    emit(A, cmul4_l(In, Dre, Dim, twc, tws, tb, False))
    A(f"{MF32} {vr(Dre,4)}, {vr(Gre,4)}, {vr(In,4)}, 0")
    A(f"{MF32} {vr(Dim,4)}, {vr(Gim,4)}, {vr(In,4)}, 0")
    for r in range(4):
        A(f"v_cvt_pk_bf16_f32 v{In+r}, v{Dre+r}, v{Dim+r}")
    for r in range(4):
        A(f"v_min_u32 v{In+r}, -2, v{In+r}")
    A(f"ds_write_b128 v{lbr}, {vr(In,4)}")
    stamp(A, "Bfft")
    V.wait("lnclr", "lgkmcnt(0)")
    A("s_barrier")
    A(f"ds_read2st64_b32 {vr(Ld,2)}, v{lbw} offset0:0 offset1:4")
    A(f"ds_read2st64_b32 {vr(Ld+2,2)}, v{lbw} offset0:8 offset1:12")
    A("s_lshl_b32 s60, s2, 13")
    A(f"s_add_u32 s60, s60, {OFF_V}")
    A("s_waitcnt lgkmcnt(0)")
    V.do("vst", f"buffer_store_dwordx4 {vr(Ld,4)}, v{voV}, {S(WS)}, s60 offen sc1")
    stamp(A, "Bdone")

    RC = RA(base)
    B2 = [[RC.get(4, 4), RC.get(4, 4)], [RC.get(4, 4), RC.get(4, 4)]]
    twc, tws = RC.get(8, 4), RC.get(8, 4)
    ang = RC.get(8, 4)
    P = [RC.get(4, 4), RC.get(4, 4)]
    RC.n = max(RC.n, RB.hi)
    L = RC.get(4, 4)
    xf = RC.get(8, 4)
    tl = RC.get(8, 2)
    R8 = RC.get(2, 2)
    B1re, B1im = RC.get(2, 2), RC.get(2, 2)
    Dre = [RC.get(4, 4), RC.get(4, 4)]
    Dim = [RC.get(4, 4), RC.get(4, 4)]
    Y = [RC.get(4, 4), RC.get(4, 4)]
    vvl, lcw, lcr, lnw, lhw, dummy = (RC.get() for _ in range(6))
    A(f"v_lshrrev_b32 v{t2}, 1, v{j}")
    A(f"v_cvt_f32_u32 v{t2}, v{t2}")
    A(f"v_and_b32 v{t3}, 1, v{j}")
    A(f"v_cvt_f32_u32 v{t3}, v{t3}")
    A(f"v_mul_f32 v{t3}, {fhex(-0.25)}, v{t3}")
    A(f"v_cvt_f32_u32 v{t0}, s{sLO}")
    A(f"v_fmamk_f32 v{t0}, v{t2}, {fhex(256.0)}, v{t0}")
    A(f"v_mul_f32 v{t0}, {fhex(1/2048)}, v{t0}")
    A(f"v_mul_f32 v{t1}, 0.5, v{gf}")
    A(f"v_fma_f32 v{ang}, v{t1}, v{t0}, v{t3}")
    A(f"v_add_f32 v{ang+1}, v{ang}, v{t0}")
    A(f"v_mul_f32 v{t0}, {fhex(1/16)}, v{jf}")
    A(f"v_mul_f32 v{ang+2}, v{t1}, v{t0}")
    A(f"v_add_f32 v{ang+3}, v{ang+2}, v{t0}")
    A(f"v_mul_f32 v{t0}, {fhex(1/32)}, v{jf}")
    for r in range(4):
        A(f"v_add_f32 v{t2}, {fhex(float(r))}, v{gf}")
        A(f"v_mul_f32 v{ang+4+r}, v{t2}, v{t0}")
    for e in range(8):
        A(f"v_cos_f32 v{twc+e}, v{ang+e}")
        A(f"v_sin_f32 v{tws+e}, v{ang+e}")
    A(f"v_lshlrev_b32 v{vvl}, 14, v{g}")
    A(f"v_lshrrev_b32 v{t1}, 2, v{j}")
    A(f"v_lshl_add_u32 v{vvl}, v{t1}, 16, v{vvl}")
    A(f"v_and_b32 v{t1}, 3, v{j}")
    A(f"v_lshl_add_u32 v{vvl}, v{t1}, 3, v{vvl}")
    A(f"s_lshl_b32 s23, s{sW}, 18")
    A(f"s_lshl_b32 s60, s{sLO}, 5")
    A("s_add_u32 s23, s23, s60")
    A(f"s_add_u32 s23, s23, {OFF_V}")
    A("s_add_u32 s25, s23, 8192")
    for p in range(2):
        A(f"v_cvt_pk_bf16_f32 v{R8+p}, v{twc+p}, -v{tws+p}")
        A(f"v_cvt_pk_bf16_f32 v{B1re+p}, v{twc+2+p}, -v{tws+2+p}")
        A(f"v_cvt_pk_bf16_f32 v{B1im+p}, v{tws+2+p}, v{twc+2+p}")
    for r in range(4):
        A(f"v_cvt_pk_bf16_f32 v{B2[0][0]+r}, v{twc+4+r}, -v{tws+4+r}")
    A(f"v_and_b32 v{t3}, 1, v{j}")
    A(f"v_mul_u32_u24 v{t3}, 0x8000, v{t3}")
    A(f"v_lshl_or_b32 v{t3}, v{t3}, 16, v{t3}")
    for r in range(4):
        A(f"v_xor_b32 v{B2[1][0]+r}, v{t3}, v{B2[0][0]+r}")
    for t in range(2):
        for r in range(4):
            if r % 2:
                A(f"v_xor_b32 v{B2[t][1]+r}, 0x80008000, v{B2[t][0]+r}")
            else:
                A(f"v_mov_b32 v{B2[t][1]+r}, v{B2[t][0]+r}")
    V.wait("vst")
    stamp(A, "Vdrain")
    lds_ = [f"buffer_load_dwordx2 {vr(L+2*p,2)}, v{vvl}, {S(WS)}, s{23+2*p} offen sc1" for p in range(2)]
    V.do("v", lds_)
    A(f"v_mul_f32 v{t0}, {fhex(1/512)}, v{jf}")
    for t in range(2):
        for r in range(4):
            A(f"v_add_f32 v{t2}, {fhex(float(16*t+r))}, v{gf}")
            A(f"v_mul_f32 v{ang+4*t+r}, v{t2}, v{t0}")
    for e in range(8):
        A(f"v_cos_f32 v{twc+e}, v{ang+e}")
        A(f"v_sin_f32 v{tws+e}, v{ang+e}")
    A(f"v_mov_b32 v{t2}, {fhex(2.0**-19)}")
    for e in range(4):
        A(f"v_pk_mul_f32 {p2(twc+2*e)}, {p2(twc+2*e)}, {p2(t2)} op_sel_hi:[1,0]")
        A(f"v_pk_mul_f32 {p2(tws+2*e)}, {p2(tws+2*e)}, {p2(t2)} op_sel_hi:[1,0]")
    LNL, HL = SC + 8192, SC + 16384
    A(f"v_lshlrev_b32 v{lcw}, 11, v{g}")
    A(f"v_lshl_add_u32 v{lcw}, v{j}, 3, v{lcw}")
    A(f"s_lshl_b32 s60, s{sW}, 7")
    A(f"s_add_u32 s60, s60, {SC}")
    A(f"v_add_u32 v{lcw}, s60, v{lcw}")
    A(f"v_lshlrev_b32 v{lcr}, 8, v{g}")
    A(f"v_lshl_add_u32 v{lcr}, v{j}, 2, v{lcr}")
    A(f"s_lshl_b32 s60, s{sW}, 10")
    A(f"s_add_u32 s60, s60, {SC}")
    A(f"v_add_u32 v{lcr}, s60, v{lcr}")
    A(f"v_lshlrev_b32 v{lhw}, 5, v{j}")
    A(f"v_lshl_add_u32 v{lhw}, v{g}, 3, v{lhw}")
    A(f"v_add_u32 v{lhw}, s60, v{lhw}")
    A(f"v_lshlrev_b32 v{lnw}, 8, v{j}")
    A(f"v_lshrrev_b32 v{t1}, 1, v{g}")
    A(f"v_lshl_add_u32 v{lnw}, v{t1}, 7, v{lnw}")
    A(f"v_and_b32 v{t1}, 1, v{g}")
    A(f"v_lshl_add_u32 v{lnw}, v{t1}, 3, v{lnw}")
    A(f"s_lshl_b32 s60, s{sW}, 4")
    A(f"s_add_u32 s60, s60, {SC}")
    A(f"v_add_u32 v{lnw}, s60, v{lnw}")
    emit(A, unpack_l(xf, xC))
    stamp(A, "Vpre")
    V.wait("v")
    stamp(A, "Vfirst")
    RT.check("pv", rng(L, 4), t0, lds_)
    stamp(A, "Vrdy")
    A(f"v_swap_b32 v{L+1}, v{L+2}")
    for u in range(2):
        A(f"{MF16} {vr(Y[u],4)}, {vr(R8,2)}, {vr(L+2*u,2)}, 0")
    for p in range(2):
        for u in range(2):
            A(f"v_cvt_pk_bf16_f32 v{P[0]+2*p+u}, v{Y[u]+2*p}, v{Y[u]+2*p+1}")
        A(f"ds_write_b64 v{lcw}, {vr(P[0]+2*p,2)} offset:{1024*p}")
    A(f"v_cmp_ne_u32 vcc, 0, v{lane}")
    A(f"v_mov_b32 v{t2}, {fhex(2.0**-20)}")
    A("s_waitcnt lgkmcnt(0)")
    A("s_barrier")
    for t in (1, 0):
        A(f"ds_read2_b32 {vr(L+2*t,2)}, v{lcr} offset0:{16*t} offset1:{16*t+32}")
    A(f"s_lshl_b32 s62, s{sLO}, 13")
    A(f"s_add_u32 s62, s62, {OFF_H}")
    V.do("hclr", f"buffer_store_dwordx4 {vr(ones,4)}, v{voV}, {S(WS)}, s62 offen sc1")
    if "now" not in OPT:
        V.do("w2", dma_w(2))
    A("s_waitcnt lgkmcnt(1)")
    A(f"{MF16} {vr(Dre[1],4)}, {vr(L+2,2)}, {vr(B1re,2)}, 0")
    A(f"{MF16} {vr(Dim[1],4)}, {vr(L+2,2)}, {vr(B1im,2)}, 0")
    A("s_waitcnt lgkmcnt(0)")
    A(f"v_readlane_b32 s24, v{L}, 0")
    A(f"v_cndmask_b32 v{L}, 0, v{L}, vcc")
    A("s_lshl_b32 s24, s24, 16")
    A(f"{MF16} {vr(Dre[0],4)}, {vr(L,2)}, {vr(B1re,2)}, 0")
    A(f"{MF16} {vr(Dim[0],4)}, {vr(L,2)}, {vr(B1im,2)}, 0")
    A(f"v_mul_f32 v{Y[0]}, s24, v{t2}")
    A(f"v_sub_f32 v{Y[0]+1}, 0, v{Y[0]}")
    A(f"v_pk_mov_b32 {p2(Y[0]+2)}, {p2(Y[0])}, {p2(Y[0])} op_sel:[0,1]")
    A(f"v_pk_mov_b32 {p2(Y[1])}, {p2(Y[0])}, {p2(Y[0])} op_sel:[0,1]")
    A(f"v_pk_mov_b32 {p2(Y[1]+2)}, {p2(Y[0])}, {p2(Y[0])} op_sel:[0,1]")
    for t in (1, 0):
        emit(A, cmul4_l(P[t], Dre[t], Dim[t], twc + 4 * t, tws + 4 * t, tl + 4 * t, False))
        for u in range(2):
            A(f"{MF32} {vr(Y[u],4)}, {vr(P[t],4)}, {vr(B2[t][u],4)}, {vr(Y[u],4)}")
    if "now" not in OPT:
        V.do("w3", dma_w(3))
    yb, hb, yf = P[0], P[1], Dre[0]
    assert Dre[1] == Dre[0] + 4
    for u in range(2):
        for q in range(2):
            A(f"v_cvt_pk_bf16_f32 v{yb+2*u+q}, v{Y[u]+2*q}, v{Y[u]+2*q+1}")
    emit(A, unpack_l(yf, yb))
    for i in range(4):
        A(f"v_pk_add_f32 {p2(xf+2*i)}, {p2(xf+2*i)}, {p2(yf+2*i)}")
    for i in range(4):
        A(f"v_cvt_pk_bf16_f32 v{hb+i}, v{xf+2*i}, v{xf+2*i+1}")
    emit(A, unpack_l(xf, hb))
    side = [f"v_min_u32 v{hb+i}, -2, v{hb+i}" for i in range(4)]
    side += [f"ds_write_b64 v{lhw}, {vr(hb+2*u,2)} offset:{16384+512*u}" for u in range(2)]
    if "now" not in OPT:
        side += [[]] * 14 + V.issue("w4", dma_w(4))
    interleave(A, ln_l(xf, tl, 24, yb, c512), side, start=4)
    for u in range(2):
        for q in range(2):
            A(f"v_min_u32 v{yb+2*u+q}, -2, v{yb+2*u+q}")
        A(f"ds_write_b64 v{lnw}, {vr(yb+2*u,2)} offset:{8192+4096*u}")
    A(f"v_add_u32 v{t1}, {SC}, v{voV}")
    A(f"s_lshl_b32 s60, s{sLO}, 13")
    A(f"s_add_u32 s60, s60, {OFF_H}")
    V.wait("hclr", "lgkmcnt(0)")
    A("s_barrier")
    A(f"ds_read_b128 {vr(Dre[0],4)}, v{t1} offset:8192")
    A(f"ds_read_b128 {vr(Dre[1],4)}, v{t1} offset:16384")
    A("s_waitcnt lgkmcnt(1)")
    V.do("lnst", f"buffer_store_dwordx4 {vr(Dre[0],4)}, v{vln}, {S(WS)}, s{sLNB} offen sc1")
    A("s_waitcnt lgkmcnt(0)")
    V.do("hst", f"buffer_store_dwordx4 {vr(Dre[1],4)}, v{voV}, {S(WS)}, s60 offen sc1")
    stamp(A, "Cdone")

    RD = RA(base)
    rw = RD.get(3)
    l16b, vtmp = RD.get(), RD.get()
    Fw = [RD.get(24, 4), RD.get(24, 4)]
    acc = RD.get(48, 4)
    X = RD.get(128, 4)
    assert RD.hi <= 256, RD.hi
    sTM, sN0, sROTE, sG, sACT = 23, 25, 26, 27, 21
    V.wait("w4")
    A("s_barrier")
    A(f"s_lshl_b32 s{sTM}, s{sX}, 2")
    A(f"s_and_b32 s60, s{sY}, 3")
    A(f"s_add_u32 s{sTM}, s{sTM}, s60")
    A(f"s_lshr_b32 s{sN0}, s{sY}, 2")
    A("s_mul_i32 s60, s60, 3")
    A(f"s_add_u32 s{sROTE}, s60, s{sN0}")
    A(f"s_cmp_ge_u32 s{sROTE}, 11")
    A("s_cselect_b32 s60, 11, 0")
    A(f"s_sub_u32 s{sROTE}, s{sROTE}, s60")
    A(f"s_lshl_b32 s{sN0}, s{sN0}, 7")
    A(f"v_lshrrev_b32 v{t1}, 3, v{lane}")
    A(f"v_lshlrev_b32 v{vwd}, 10, v{t1}")
    A(f"v_and_b32 v{t1}, 6, v{t1}")
    A(f"v_and_b32 v{t2}, 7, v{lane}")
    A(f"v_xor_b32 v{t1}, v{t1}, v{t2}")
    A(f"v_lshl_add_u32 v{vwd}, v{t1}, 4, v{vwd}")
    A(f"s_and_b32 s60, s{sW}, 3")
    A("s_lshl_b32 s61, s60, 15")
    A(f"s_add_u32 s61, s61, s{sN0}")
    A(f"v_add_u32 v{vwd}, s61, v{vwd}")
    A(f"s_lshr_b32 s61, s{sW}, 2")
    A("s_lshl_b32 s29, s61, 14")
    A("s_lshl_b32 s61, s61, 11")
    A(f"s_mul_i32 s{sG}, s60, 12288")
    A(f"s_add_u32 s{sG}, s{sG}, s61")
    A("s_lshl_b32 s28, s60, 12")
    A("s_add_u32 s28, s28, s61")
    A(f"s_add_u32 s28, s28, {6*SLOT}")
    A("s_add_u32 s30, s29, 8192")

    def idx_of(i, sd):
        return [f"s_add_u32 s{sd}, s{sROTE}, {i}", f"s_cmp_ge_u32 s{sd}, 11", "s_cselect_b32 s62, 11, 0",
                f"s_sub_u32 s{sd}, s{sd}, s62"]

    GB = {1: 49152, 2: 98304, 3: 0}

    def dma_d(i):
        pre = idx_of(i, 22) + ["s_lshl_b32 s22, s22, 17", f"v_add_u32 v{vtmp}, s22, v{vwd}"]
        if i == 0:
            m = lambda n: f"s_add_u32 m0, s28, {1024*n}"
        else:
            grp = (i - 1) // 3 + 1
            m = lambda n: f"s_add_u32 m0, s{sG}, {GB[grp] + ((i-1)%3)*4096 + 1024*n}"
        return [pre + [m(0), f"buffer_load_dwordx4 v{vtmp}, {S(SWD)}, s29 offen lds"],
                [m(1), f"buffer_load_dwordx4 v{vtmp}, {S(SWD)}, s30 offen lds"]]

    A(f"v_lshrrev_b32 v{t0}, 1, v{g}")
    A(f"v_lshlrev_b32 v{t0}, 10, v{t0}")
    A(f"v_and_b32 v{t1}, 1, v{g}")
    A(f"v_mul_u32_u24 v{t1}, {512+32}, v{t1}")
    A(f"v_add_u32 v{t0}, v{t0}, v{t1}")
    A(f"v_lshrrev_b32 v{t1}, 2, v{j}")
    A(f"v_lshl_add_u32 v{t0}, v{t1}, 6, v{t0}")
    A(f"v_and_b32 v{t1}, 3, v{j}")
    A(f"v_lshl_add_u32 v{t0}, v{t1}, 3, v{t0}")
    A(f"s_and_b32 s60, s{sW}, 1")
    A("s_mul_i32 s60, s60, 3")
    for c in range(3):
        A(f"s_add_u32 s61, s60, {c}")
        A("s_and_b32 s62, s61, 1")
        A("s_lshl_b32 s62, s62, 5")
        A("s_lshr_b32 s61, s61, 1")
        A("s_lshl_b32 s61, s61, 12")
        A(f"v_xor_b32 v{t1}, s62, v{t0}")
        A(f"v_add_u32 v{rw+c}, s61, v{t1}")
    A(f"v_add_u32 v{l16b}, 16384, v{l16}")
    A(f"s_lshl_b32 s{sACT}, s{sRT}, 3")
    A(f"s_and_b32 s60, s{sW}, 6")
    A(f"s_add_u32 s{sACT}, s{sACT}, s60")
    A(f"s_lshl_b32 s{sACT}, s{sACT}, 14")
    A(f"s_add_u32 s{sACT}, s{sACT}, {OFF_LN}")

    def act(p):
        pre = [f"s_add_u32 s31, s{sROT}, {p}", "s_and_b32 s31, s31, 7", "s_lshl_b32 s31, s31, 11",
               f"s_add_u32 s31, s31, s{sACT}"]
        o = []
        for ks in range(2):
            for m in range(2):
                ins = f"buffer_load_dwordx4 {vr(X+16*p+8*ks+4*m,4)}, v{l16b if m else l16}, {S(WS)}, s31 offen offset:{1024*ks} sc1"
                o.append(pre + [ins] if not o else [ins])
        return o

    def wreads(p, ks, buf):
        slot = p if p < 6 else p - 6
        o = []
        for c in range(3):
            for mat in range(2):
                for e4 in range(2):
                    off = (slot % 2) * SLOT + mat * 12288 + ks * 2048 + e4 * 256
                    o.append(f"ds_read_b64_tr_b16 {vr(Fw[buf]+(mat*3+c)*4+2*e4,2)}, v{rw+c} offset:{off}")
        return o

    def mfmas(p, ks, buf):
        o = []
        for c in range(3):
            for mat in range(2):
                for m in range(2):
                    a = acc + ((mat * 3 + c) * 2 + m) * 4
                    cc = "0" if (p == 0 and ks == 0) else vr(a, 4)
                    o.append(f"{MF32} {vr(a,4)}, {vr(Fw[buf]+(mat*3+c)*4,4)}, {vr(X+16*p+8*ks+4*m,4)}, {cc}")
        return o

    emit(A, wreads(0, 0, 0))
    V.wait("hst")
    stamp(A, "Cdrain")
    pairs = lambda l: [l[i:i + 2] for i in range(0, len(l), 2)]
    onesD = X
    hhclr = []
    for c in range(3):
        x = [f"v_add_u32 v{vtmp}, {65536*c}, v{voHH}",
             f"buffer_store_dwordx4 {vr(onesD,4)}, v{vtmp}, {S(SHH)}, 0 offen sc1"]
        hhclr.append(([f"v_mov_b32 v{onesD+i}, -1" for i in range(4)] if c == 0 else []) + x)
    plan = {
        (0, 0): [("a2", act(2))], (0, 1): [("a3", act(3))],
        (1, 0): [("w5", dma_w(5))], (1, 1): [("a4", act(4))],
        (2, 0): [("w6", dma_w(6))], (2, 1): [("a5", act(5))],
        (3, 0): [("w7", dma_w(7))], (3, 1): [("a6", act(6))],
        (4, 0): [("a7", act(7))], (4, 1): [("hhclr", hhclr)],
        (5, 0): [("d0", dma_d(0)), ("d1", dma_d(1))], (5, 1): [("d2", dma_d(2)), ("d3", dma_d(3))],
        (6, 0): [("d4", dma_d(4))], (6, 1): [("d5", dma_d(5))],
        (7, 0): [("d6", dma_d(6))], (7, 1): [("d7", dma_d(7))],
    }

    def extra(p, h):
        o = []
        for tag, ins in plan.get((p, h), []):
            o += V.issue(tag, ins)
        return o
    V.do("a0", act(0))
    V.do("a1", act(1))
    for p in range(8):
        V.wait(f"a{p}")
        RT.check(f"pa{p}", rng(X + 16 * p, 16), t0, act(p))
        stamp(A, f"a{p}")
        if p == 7:
            V.wait("hhclr")
            A(f"s_lshl_b32 s60, s{sRT}, 2")
            A(f"s_lshr_b32 s61, s{sW}, 1")
            A("s_add_u32 s60, s60, s61")
            A("s_lshl_b32 s60, s60, 5")
            A(f"s_lshl_b32 s61, s{sFT}, 1")
            A("s_add_u32 s60, s60, s61")
            A(f"s_and_b32 s61, s{sW}, 1")
            A("s_add_u32 s60, s60, s61")
            A("s_lshl_b32 s60, s60, 4")
            A(f"s_add_u32 s60, s60, {OFF_FH}")
            A(f"v_mov_b32 v{t2}, s{sT}")
            A(f"v_lshlrev_b32 v{t3}, 24, v{lane}")
            V.do("fh", f"buffer_store_dword v{t2}, v{t3}, {S(WS)}, s60 offen sc1")
        A("s_waitcnt lgkmcnt(0)")
        interleave(A, mfmas(p, 0, 0), pairs(wreads(p, 1, 1)) + extra(p, 0))
        A("s_waitcnt lgkmcnt(0)")
        if p % 2 == 1:
            if p == 3:
                V.wait("w5")
            if p == 5:
                V.wait("w7")
            A("s_barrier")
            if p < 7:
                d = 2 * SLOT if p < 5 else -4 * SLOT
                for c in range(3):
                    A(f"v_add_u32 v{rw+c}, {d & 0xffffffff:#x}, v{rw+c}")
        interleave(A, mfmas(p, 1, 1), (pairs(wreads(p + 1, 0, 0)) if p < 7 else []) + extra(p, 1))
    stamp(A, "Dmain")
    A(f"s_mov_b32 s60, {fhex(K1)}")
    A(f"v_mov_b32 v{t2}, {fhex(K0)}")
    q = X
    for c in range(3):
        gA = acc + c * 8
        uA = acc + (3 + c) * 8
        if c < 2:
            V.do(f"d{8+c}", dma_d(8 + c))
        for i in range(4):
            A(f"v_pk_mul_f32 {p2(q+2*i)}, {p2(gA+2*i)}, {p2(gA+2*i)}")
        for i in range(4):
            A(f"v_pk_fma_f32 {p2(q+2*i)}, {p2(q+2*i)}, s[60:61], {p2(t2)} op_sel_hi:[1,0,0]")
        for i in range(4):
            A(f"v_pk_mul_f32 {p2(q+2*i)}, {p2(q+2*i)}, {p2(gA+2*i)}")
        for i in range(4):
            A(f"v_exp_f32 v{q+2*i}, v{q+2*i}")
            A(f"v_exp_f32 v{q+2*i+1}, v{q+2*i+1}")
            A(f"v_pk_mul_f32 {p2(uA+2*i)}, {p2(uA+2*i)}, {p2(gA+2*i)}")
        for i in range(4):
            A(f"v_pk_add_f32 {p2(q+2*i)}, {p2(q+2*i)}, 1.0 op_sel_hi:[1,0]")
        for i in range(8):
            A(f"v_rcp_f32 v{q+i}, v{q+i}")
        if c:
            A(f"v_add_u32 v{voHH}, 65536, v{voHH}")
        for i in range(4):
            A(f"v_pk_mul_f32 {p2(q+2*i)}, {p2(q+2*i)}, {p2(uA+2*i)}")
        for i in range(4):
            A(f"v_cvt_pk_bf16_f32 v{gA+i}, v{q+2*i}, v{q+2*i+1}")
        for i in range(4):
            A(f"v_min_u32 v{gA+i}, -2, v{gA+i}")
        V.do("hhst", f"buffer_store_dwordx4 {vr(gA,4)}, v{voHH}, {S(SHH)}, 0 offen sc1")
    stamp(A, "Depi")

    RE = RA(base)
    rd = RE.get(4)
    assert vtmp >= rd + 4
    RE.n = vtmp + 1
    vh, vo, vhr, lrw = (RE.get() for _ in range(4))
    hres = RE.get(4, 4)
    Fd = [RE.get(16, 4), RE.get(16, 4)]
    RE.n = max(RE.n, acc + 48)
    ea = RE.get(32, 4)
    Hf = RE.get(88, 4)
    assert RE.hi <= 256
    A(f"s_and_b32 s60, s{sW}, 3")
    A("s_lshl_b32 s61, s60, 17")
    A(f"v_add_u32 v{vh}, s61, v{l16}")
    A(f"s_lshr_b32 s61, s{sW}, 2")
    A(f"s_lshl_b32 s16, s{sTM}, 1")
    A("s_add_u32 s16, s16, s61")
    A("s_lshl_b32 s18, s16, 5")
    A("s_lshl_b32 s16, s16, 10")
    A("s_add_u32 s17, s16, 65536")
    A(f"v_lshrrev_b32 v{t1}, 2, v{j}")
    A(f"v_lshl_add_u32 v{t1}, v{g}, 2, v{t1}")
    A(f"v_bfe_u32 v{t2}, v{t1}, 1, 2")
    A(f"v_lshlrev_b32 v{t1}, 7, v{t1}")
    A(f"v_lshl_add_u32 v{t1}, v{t2}, 5, v{t1}")
    A(f"v_and_b32 v{t2}, 3, v{j}")
    A(f"v_lshl_add_u32 v{t1}, v{t2}, 3, v{t1}")
    A("s_lshl_b32 s19, s60, 12")
    A(f"s_add_u32 s19, s19, {6*SLOT}")
    A("s_mul_i32 s20, s60, 12288")
    A(f"s_add_u32 s20, s20, {GB[1]}")
    A("s_sub_u32 s20, s20, s19")
    for c in range(4):
        A(f"v_xor_b32 v{rd+c}, {32*c}, v{t1}")
        A(f"v_add_u32 v{rd+c}, s19, v{rd+c}")
    A(f"v_and_b32 v{t1}, 1, v{g}")
    A(f"v_lshlrev_b32 v{t1}, 5, v{t1}")
    A(f"v_lshrrev_b32 v{t2}, 1, v{g}")
    A(f"v_lshl_add_u32 v{t1}, v{t2}, 4, v{t1}")
    A(f"v_lshl_add_u32 v{vhr}, v{j}, 10, v{t1}")
    A(f"v_and_b32 v{t2}, 7, v{j}")
    A(f"v_lshl_add_u32 v{vo}, v{t2}, 18, v{t1}")
    A(f"v_lshrrev_b32 v{t2}, 3, v{j}")
    A(f"v_lshl_add_u32 v{vo}, v{t2}, 10, v{vo}")
    A("s_lshr_b32 s61, s60, 1")
    A("s_lshl_b32 s61, s61, 4")
    A("s_add_u32 s18, s18, s61")
    A("s_and_b32 s61, s60, 1")
    A("s_lshl_b32 s61, s61, 6")
    A(f"s_add_u32 s61, s61, s{sN0}")
    A("s_lshl_b32 s21, s18, 10")
    A("s_add_u32 s21, s21, s61")
    A(f"s_add_u32 s21, s21, {OFF_H}")
    A("s_lshl_b32 s18, s18, 7")
    A("s_add_u32 s18, s18, s61")

    def hload(i):
        pre = idx_of(i, 31) + ["s_lshl_b32 s31, s31, 19", f"v_add_u32 v{t3}, s31, v{vh}"]
        return [pre + [f"buffer_load_dwordx4 {vr(Hf+8*i,4)}, v{t3}, {S(SHH)}, s16 offen sc1"],
                [f"buffer_load_dwordx4 {vr(Hf+8*i+4,4)}, v{t3}, {S(SHH)}, s17 offen sc1"]]

    def dreads(i, buf):
        off = 0 if i in (0, 10) else ((i - 1) % 3) * 4096
        return [f"ds_read_b64_tr_b16 {vr(Fd[buf]+4*c+2*e4,2)}, v{rd+c} offset:{off + 2048*e4}"
                for c in range(4) for e4 in range(2)]

    hl = f"buffer_load_dwordx4 {vr(hres,4)}, v{vhr}, {S(WS)}, s21 offen sc1"
    A(f"v_and_b32 v{t2}, 0x1f0, v{l16}")
    A("s_lshr_b32 s60, s16, 1")
    A(f"s_add_u32 s60, s60, {OFF_FH}")
    A("s_mov_b32 s63, 0")
    A.label("L_fhr")
    A(f"buffer_load_dword v{t1}, v{t2}, {S(WS)}, s60 offen sc1")
    A("s_waitcnt vmcnt(0)")
    V.q = []
    A(f"v_cmp_ne_u32 vcc, s{sT}, v{t1}")
    A("s_add_u32 s63, s63, 1")
    A(f"s_cmp_gt_u32 s63, {SPIN}")
    A("s_cbranch_scc1 L_fhok")
    A("s_cbranch_vccnz L_fhr")
    A.label("L_fhok")
    stamp(A, "Edrain")
    EA = int(os.environ.get("EA", "4"))
    for i in range(EA):
        V.do(f"h{i}", hload(i))
        if i == 0:
            A("s_barrier")
            emit(A, dreads(0, 0))
    for i in range(11):
        nxt = i + 1
        if nxt in (1, 4, 7, 10):
            for c in range(4):
                if nxt == 1:
                    A(f"v_add_u32 v{rd+c}, s20, v{rd+c}")
                elif nxt == 4:
                    A(f"v_add_u32 v{rd+c}, {GB[2]-GB[1]}, v{rd+c}")
                elif nxt == 7:
                    A(f"v_subrev_u32 v{rd+c}, {GB[2]-GB[3]}, v{rd+c}")
                else:
                    A(f"v_add_u32 v{rd+c}, {GB[1]}, v{rd+c}")
                    A(f"v_subrev_u32 v{rd+c}, s20, v{rd+c}")
        V.wait(f"h{i}")
        RT.check(f"pe{i}", rng(Hf + 8 * i, 8), t0, hload(i))
        stamp(A, f"e{i}")
        A(f"v_swap_b32 v{Hf+8*i+2}, v{Hf+8*i+4}")
        A(f"v_swap_b32 v{Hf+8*i+3}, v{Hf+8*i+5}")
        A("s_waitcnt lgkmcnt(0)")
        ex = []
        if i == 3:
            A("s_barrier")
            pre = idx_of(10, 22) + ["s_lshl_b32 s22, s22, 17", f"v_add_u32 v{vtmp}, s22, v{vwd}"]
            for n in range(4):
                x = (pre if n == 0 else []) + [f"s_add_u32 m0, s19, {1024*n}", f"s_mov_b32 s22, {8192*n}",
                                               f"buffer_load_dwordx4 v{vtmp}, {S(SWD)}, s22 offen lds"]
                ex.append(V.issue("d10", x))
        if i + EA < 11:
            ex += V.issue(f"h{i+EA}", hload(i + EA))
        if i == 7:
            ex += [V.issue("hres", hl)]
        if i == 9:
            V.wait("d10")
        side = (pairs(dreads(nxt, nxt % 2)) if nxt < 11 else []) + ex
        mm = []
        for c in range(4):
            for m in range(2):
                a = ea + (m * 4 + c) * 4
                mm.append(f"{MF32} {vr(a,4)}, {vr(Fd[i%2]+4*c,4)}, {vr(Hf+8*i+4*m,4)}, {'0' if i == 0 else vr(a,4)}")
        interleave(A, mm, side)
    stamp(A, "Emain")
    RED = GB[1]
    own = Hf
    hf = Hf + 8
    red = Hf + 16
    A(f"s_lshr_b32 s61, s{sW}, 2")
    A("s_mul_i32 s61, s61, 24576")
    A(f"s_add_u32 s61, s61, {RED}")
    A(f"v_add_u32 v{lrw}, s61, v{l16}")
    V.wait("hres")
    RT.check("ph", rng(hres, 4), t0, [hl])
    emit(A, unpack_l(hf, hres))
    A(f"s_and_b32 s60, s{sW}, 3")
    for kq in range(4):
        if kq < 3:
            A(f"s_cmp_lg_u32 s60, {kq}")
            A(f"s_cbranch_scc1 L_rv{kq+1}")
        for o in range(4):
            a = ea + ((o // 2) * 4 + 2 * (o % 2)) * 4
            if o == kq:
                for k in range(4):
                    A(f"v_pk_mov_b32 {p2(own+2*k)}, {p2(a+2*k)}, {p2(a+2*k)} op_sel:[0,1]")
            else:
                sl = (kq - o - 1) & 3
                for u in range(2):
                    A(f"ds_write_b128 v{lrw}, {vr(a+4*u,4)} offset:{o*6144 + sl*2048 + u*1024}")
        if kq < 3:
            A("s_branch L_rvd")
            A.label(f"L_rv{kq+1}")
    A.label("L_rvd")
    A("s_mul_i32 s60, s60, 6144")
    A(f"v_add_u32 v{lrw}, s60, v{lrw}")
    A("s_waitcnt lgkmcnt(0)")
    A("s_barrier")
    for k in range(6):
        A(f"ds_read_b128 {vr(red+4*k,4)}, v{lrw} offset:{1024*k}")
    for sl in range(3):
        A(f"s_waitcnt lgkmcnt({2*(2-sl)})")
        for k in range(4):
            A(f"v_pk_add_f32 {p2(own+2*k)}, {p2(own+2*k)}, {p2(red+8*sl+2*k)}")
    o = red
    for k in range(4):
        A(f"v_cvt_pk_bf16_f32 v{o+k}, v{own+2*k}, v{own+2*k+1}")
    A(f"v_permlane16_swap_b32 v{o}, v{o+2}")
    A(f"v_permlane16_swap_b32 v{o+1}, v{o+3}")
    emit(A, unpack_l(own, o))
    for k in range(4):
        A(f"v_pk_add_f32 {p2(own+2*k)}, {p2(own+2*k)}, {p2(hf+2*k)}")
    for k in range(4):
        A(f"v_cvt_pk_bf16_f32 v{o+k}, v{own+2*k}, v{own+2*k+1}")
    A(f"buffer_store_dwordx4 {vr(o,4)}, v{vo}, {S(SOUT)}, s18 offen")
    if STAMPS:
        A("s_load_dwordx2 s[34:35], s[0:1], 72")
        A("s_waitcnt vmcnt(0) lgkmcnt(0)")
        A("s_memrealtime s[94:95]")
        A("s_waitcnt lgkmcnt(0)")
        srd(A, 96, 34, 16 * MB, 32 * MB)
        A(f"v_and_b32 v{t0}, 0x1c0, v0")
        A("s_lshl_b32 s100, s2, 9")
        A("s_mov_b64 exec, 1")
        for i in range(16):
            A(f"v_mov_b32 v{t1}, s{64+2*i}")
            A(f"buffer_store_dword v{t1}, v{t0}, s[96:99], s100 offen offset:{4*i}")
        A("s_waitcnt vmcnt(0)")
    A.label("L_end")
    A("s_endpgm")
    RT.flush()
    return name, A.finalize(), 256, (256, 512, 163840), 0


def build_q(as_list=False):
    name, body, nv, (gx, bx, lds), ag = gen_Q()
    out = HEADER
    if STAMPS:
        out += "; STAMPSET " + ",".join(STAMPSET) + "\n"
    if as_list:
        out += f"; @launch kernel={name} grid=({gx},1,1) block=({bx},1,1) lds={lds}\n"
    else:
        out += f"; @launch grid=({gx},1,1) block=({bx},1,1) lds={lds}\n"
    out += '.amdgcn_target "amdgcn-amd-amdhsa--gfx950"\n' + body + kernel_desc(name, nv, agprs=ag)
    return out


if __name__ == "__main__":
    path = sys.argv[1] if len(sys.argv) > 1 else f"cdna_kernels/{NAME}.s"
    s = build_q(as_list=len(sys.argv) > 2)
    open(path, "w").write(s)
    print("lines", s.count("\n"))
```

```python
import os, sys
os.environ.setdefault("NTF", "")
from gen import *
import gen_q
from gen_q import gen_Q, S

def gen_Z():
    A = Asm(); kernel_header(A, "kz_kernel"); A("s_endpgm")
    return "kz_kernel", A.finalize(), 8, (256, 64, 0)

def gen_T(name, inputs=True, wsr=True, stride=128):
    A = Asm(); kernel_header(A, name)
    A("s_cmp_ge_u32 s2, 256"); A(f"s_cbranch_scc1 L{name}_end")
    A("s_load_dwordx16 s[16:31], s[0:1], 0")
    A("s_load_dwordx4 s[32:35], s[0:1], 64")
    A("s_lshl_b32 s3, s2, 6")
    A("v_add_u32 v1, s3, v0")
    A(f"v_mul_u32_u24 v1, {stride}, v1")
    A("s_waitcnt lgkmcnt(0)")
    n = 0
    if inputs:
        for ptr, sz in ((16, 2*MB), (18, W_BYTES), (20, W_BYTES), (24, WG_BYTES), (26, WG_BYTES), (28, WG_BYTES), (30, 2*MB)):
            srd(A, 8, ptr, sz)
            A(f"buffer_load_dword v{2+n}, v1, s[8:11], 0 offen"); n += 1
    if wsr:
        srd(A, 8, 34, 16*MB)
        for i in range(8 if stride == 128 else 1):
            A(f"s_mov_b32 s4, {i*2*MB}")
            A(f"buffer_load_dword v{2+n}, v1, s[8:11], s4 offen"); n += 1
    A("s_waitcnt vmcnt(0)")
    A.label(f"L{name}_end")
    A("s_endpgm")
    return name, A.finalize(), 32, (256, 64, 0)

q = gen_Q(); m = q[0]
z = gen_Z()
open("e2.s", "w").write(build([q], [m, m]))
open("e3.s", "w").write(build([q, z], ["kz_kernel", m]))
t = gen_T("kt_kernel"); open("e4.s", "w").write(build([q, t], ["kt_kernel", m]))
t = gen_T("kt_kernel", wsr=False); open("e5.s", "w").write(build([q, t], ["kt_kernel", m]))
t = gen_T("kt_kernel", stride=4096); open("e6.s", "w").write(build([q, t], ["kt_kernel", m]))
open("e1.s", "w").write(build([q], [m]))
```

```python
import os, sys
os.environ.setdefault("NTF", "")
from gen import *
import gen_q
from gen_q import gen_Q, S

def gen_Z():
    A = Asm(); kernel_header(A, "kz_kernel"); A("s_endpgm")
    return "kz_kernel", A.finalize(), 8, (256, 64, 0)

def gen_T(name, inputs=True, wsr=True, stride=128):
    A = Asm(); kernel_header(A, name)
    A("s_cmp_ge_u32 s2, 256"); A(f"s_cbranch_scc1 L{name}_end")
    A("s_load_dwordx16 s[16:31], s[0:1], 0")
    A("s_load_dwordx4 s[32:35], s[0:1], 64")
    A("s_lshl_b32 s3, s2, 6")
    A("v_add_u32 v1, s3, v0")
    A(f"v_mul_u32_u24 v1, {stride}, v1")
    A("s_waitcnt lgkmcnt(0)")
    n = 0
    if inputs:
        for ptr, sz in ((16, 2*MB), (18, W_BYTES), (20, W_BYTES), (24, WG_BYTES), (26, WG_BYTES), (28, WG_BYTES), (30, 2*MB)):
            srd(A, 8, ptr, sz)
            A(f"buffer_load_dword v{2+n}, v1, s[8:11], 0 offen"); n += 1
    if wsr:
        srd(A, 8, 34, 16*MB)
        for i in range(8 if stride == 128 else 1):
            A(f"s_mov_b32 s4, {i*2*MB}")
            A(f"buffer_load_dword v{2+n}, v1, s[8:11], s4 offen"); n += 1
    A("s_waitcnt vmcnt(0)")
    A.label(f"L{name}_end")
    A("s_endpgm")
    return name, A.finalize(), 32, (256, 64, 0)

q = gen_Q(); m = q[0]
z = gen_Z()
open("e2.s", "w").write(build([q], [m, m]))
open("e3.s", "w").write(build([q, z], ["kz_kernel", m]))
t = gen_T("kt_kernel"); open("e4.s", "w").write(build([q, t], ["kt_kernel", m]))
t = gen_T("kt_kernel", wsr=False); open("e5.s", "w").write(build([q, t], ["kt_kernel", m]))
t = gen_T("kt_kernel", stride=4096); open("e6.s", "w").write(build([q, t], ["kt_kernel", m]))
open("e1.s", "w").write(build([q], [m]))

def gen_C(name, m, inputs):
    A = Asm(); kernel_header(A, name)
    A("s_cmp_ge_u32 s2, 256"); A(f"s_cbranch_scc1 L{name}_end")
    A("s_load_dwordx16 s[16:31], s[0:1], 0")
    A("s_getpc_b64 s[4:5]")
    A.label("Lpc")
    A.raw(f"    s_sub_u32 s4, s4, Lpc-{m}")
    A("s_subb_u32 s5, s5, 0")
    A("v_lshlrev_b32 v1, 7, v0")
    A("v_mov_b32 v3, s5")
    A("v_add_co_u32 v2, vcc, s4, v1")
    A("v_addc_co_u32 v3, vcc, 0, v3, vcc")
    for i in range(3):
        A(f"global_load_dword v{4+i}, v[2:3], off")
        A("v_add_co_u32 v2, vcc, 0x2000, v2")
        A("v_addc_co_u32 v3, vcc, 0, v3, vcc")
    if inputs:
        A("s_lshl_b32 s3, s2, 6")
        A("v_add_u32 v1, s3, v0")
        A(f"v_mul_u32_u24 v1, 128, v1")
        A("s_waitcnt lgkmcnt(0)")
        n = 0
        for ptr, sz in ((16, 2*MB), (18, W_BYTES), (20, W_BYTES), (24, WG_BYTES), (26, WG_BYTES), (28, WG_BYTES)):
            srd(A, 8, ptr, sz)
            A(f"buffer_load_dword v{8+n}, v1, s[8:11], 0 offen"); n += 1
    A("s_waitcnt vmcnt(0) lgkmcnt(0)")
    A.label(f"L{name}_end")
    A("s_endpgm")
    A.raw(".fill 2048, 4, 0xbf800000")
    return name, A.finalize(), 32, (256, 64, 0)
c = gen_C("kc_kernel", m, False); open("e7.s", "w").write(build([q, c], ["kc_kernel", m]))
c = gen_C("kc_kernel", m, True); open("e8.s", "w").write(build([q, c], ["kc_kernel", m]))
open("e9.s", "w").write(build([q], [m, m, m]))
```

```python
import sys, math, os
sys.path.insert(0, "work")
from asmlib import Asm, fhex
from gen import RA, vr, srd, kernel_header, kernel_desc, NAME, MB, W_BYTES, WG_BYTES, STAMPS
from gen_p import emit, zipl, interleave, reduce_l, unpack_l, ln_l, cmul4_l, S, K0, K1, MF32, MF16, HEADER

OFF_U, OFF_V, OFF_H, OFF_LN, OFF_HH = 0, 2 * MB, 4 * MB, 6 * MB, 8 * MB
OFF_FL = 14 * MB
OFF_TAG = 14 * MB + 8192
OFF_FH = 14 * MB + 65536
NT = os.environ.get('NTF', ' nt')
TAG_STEP = 0x9E3779B9
sT = 3
HH_BYTES = 86 * 65536
SPIN = 200000
WS, DBG, SX, SWF, SWM, SWD, SOUT, SHH = 4, 8, 36, 40, 44, 48, 52, 56
sW, sX, sY, sLO = 12, 13, 14, 15
SLOT = 24576
SC = 5 * SLOT
p2 = lambda a: vr(a, 2)


class VM:
    def __init__(self, A):
        self.A = A
        self.q = []

    def issue(self, tag, ins):
        def walk(x):
            if isinstance(x, list):
                for y in x:
                    walk(y)
            elif x.startswith("buffer_"):
                self.q.append(tag)
        walk(ins)
        return ins

    def do(self, tag, ins):
        emit(self.A, [self.issue(tag, ins)])

    def count_after(self, tag):
        idx = max((i for i, t in enumerate(self.q) if t == tag), default=-1)
        return len(self.q) - 1 - idx, idx

    def wait(self, tag, extra=""):
        n, idx = self.count_after(tag)
        if idx < 0:
            if extra:
                self.A("s_waitcnt " + extra)
            return
        assert n <= 63, n
        self.A(f"s_waitcnt vmcnt({n}) {extra}".strip())
        self.q = self.q[idx + 1:]


STAMPSET = os.environ.get("STAMPSET", "start,xrdy,Adone,b0ld,b0ok,Urdy,Bdone,Vdrain,Vrdy,Cdone,Cdrain,Dmain,Depi,Edrain,Emain").split(",")
OPT = set(os.environ.get("OPT", "").split(","))


def stamp(A, name):
    if STAMPS and name in STAMPSET:
        i = STAMPSET.index(name)
        A(f"s_memrealtime s[{64+2*i}:{65+2*i}]")


def maxtree(regs, vt):
    n = len(regs)
    o = []
    if n == 4:
        o.append(f"v_max3_u32 v{vt}, v{regs[0]}, v{regs[1]}, v{regs[2]}")
        o.append(f"v_max_u32 v{vt}, v{vt}, v{regs[3]}")
    else:
        o.append(f"v_max3_u32 v{vt}, v{regs[0]}, v{regs[1]}, v{regs[2]}")
        o.append(f"v_max3_u32 v{vt+1}, v{regs[3]}, v{regs[4]}, v{regs[5]}")
        i = 6
        k = 0
        while i + 1 < n:
            o.append(f"v_max3_u32 v{vt+k}, v{vt+k}, v{regs[i]}, v{regs[i+1]}")
            i += 2
            k ^= 1
        assert i == n
        o.append(f"v_max_u32 v{vt}, v{vt}, v{vt+1}")
    o.append(f"v_cmp_eq_u32 vcc, -1, v{vt}")
    return o


class Retry:
    def __init__(self, A):
        self.A = A
        self.blocks = []

    def check(self, tag, regs, vt, reload):
        A = self.A
        emit(A, maxtree(regs, vt))
        A(f"s_cbranch_vccnz L{tag}_r")
        A.label(f"L{tag}_ok")
        self.blocks.append((tag, regs, vt, reload))

    def flush(self):
        A = self.A
        for tag, regs, vt, reload in self.blocks:
            A.label(f"L{tag}_r")
            A("s_mov_b32 s63, 0")
            A.label(f"L{tag}_r2")
            A("s_mov_b64 exec, vcc")
            emit(A, reload)
            A("s_waitcnt vmcnt(0)")
            emit(A, maxtree(regs, vt))
            A("s_add_u32 s63, s63, 1")
            A(f"s_cmp_gt_u32 s63, {SPIN}")
            A(f"s_cbranch_scc1 L{tag}_x")
            A(f"s_cbranch_vccnz L{tag}_r2")
            A.label(f"L{tag}_x")
            A("s_mov_b64 exec, -1")
            A(f"s_branch L{tag}_ok")


def rng(a, n):
    return list(range(a, a + n))


def gen_Q():
    A = Asm()
    V = VM(A)
    RT = Retry(A)
    name = NAME + "_kernel"
    kernel_header(A, name)
    R = RA(1)
    lane, g, j, gf, jf, c512, b0 = (R.get() for _ in range(7))
    t0 = R.get(4, 2)
    t1, t2, t3 = t0 + 1, t0 + 2, t0 + 3
    voV, vln, vw, vwd, l16 = (R.get() for _ in range(5))
    voHH = R.get()
    xC = R.get(4, 2)
    base = R.n

    A("s_cmp_ge_u32 s2, 256")
    A("s_cbranch_scc1 L_end")
    stamp(A, "start")
    if os.environ.get("DBGST"):
        A("s_memtime s[10:11]")
    A("s_load_dwordx16 s[16:31], s[0:1], 0")
    A("s_load_dwordx4 s[32:35], s[0:1], 64")
    RA_ = RA(base)
    xr = RA_.get(4, 4)
    xf = RA_.get(8, 4)
    tl = RA_.get(8, 2)
    Bc = [RA_.get(4, 4), RA_.get(4, 4)]
    Bs = [RA_.get(4, 4), RA_.get(4, 4)]
    twc, tws = RA_.get(8, 4), RA_.get(8, 4)
    A2, A2n = RA_.get(4, 4), RA_.get(4, 4)
    R8 = RA_.get(2, 2)
    za = RA_.get(4, 4)
    Dre = [RA_.get(4, 4), RA_.get(4, 4)]
    Dim = [RA_.get(4, 4), RA_.get(4, 4)]
    P = [RA_.get(4, 4), RA_.get(4, 4)]
    Zn = RA_.get(4, 4)
    ang = RA_.get(8, 4)
    vx, voC, voU, vwo = (RA_.get() for _ in range(4))
    lz, lzr, lw, lru = (RA_.get() for _ in range(4))
    ones = 248
    Wraw = 240
    A(f"v_and_b32 v{lane}, 63, v0")
    A(f"v_lshrrev_b32 v{t0}, 6, v0")
    A(f"v_lshrrev_b32 v{g}, 4, v{lane}")
    A(f"v_and_b32 v{j}, 15, v{lane}")
    A(f"v_readfirstlane_b32 s{sW}, v{t0}")
    A(f"s_and_b32 s{sX}, s2, 7")
    A(f"s_lshr_b32 s{sY}, s2, 3")
    A(f"s_lshl_b32 s{sLO}, s{sX}, 5")
    A(f"s_add_u32 s{sLO}, s{sLO}, s{sY}")
    A(f"v_lshlrev_b32 v{voV}, 4, v0")
    A(f"v_lshlrev_b32 v{l16}, 4, v{lane}")
    A(f"v_lshlrev_b32 v{vx}, 18, v{t0}")
    A(f"v_lshl_add_u32 v{voC}, v{j}, 5, v{vx}")
    A(f"v_lshl_add_u32 v{voC}, v{g}, 3, v{voC}")
    A(f"v_add_u32 v{vx}, v{l16}, v{vx}")
    for i in range(4):
        A(f"v_mov_b32 v{ones+i}, -1")
    A(f"v_and_b32 v{vwo}, 255, v0")
    A(f"v_mul_u32_u24 v{vwo}, {514*8}, v{vwo}")
    A(f"s_lshl_b32 s60, s{sLO}, 13")
    A(f"s_lshl_b32 s61, s{sLO}, 10")
    A(f"v_mov_b32 v{c512}, {fhex(1.0/512)}")
    A(f"v_cvt_f32_u32 v{gf}, v{g}")
    A(f"v_cvt_f32_u32 v{jf}, v{j}")
    A(f"v_mul_f32 v{gf}, 4.0, v{gf}")
    A(f"v_mul_f32 v{t1}, {fhex(1/32)}, v{jf}")
    for e in range(8):
        a_add = e if e < 4 else 12 + e
        A(f"v_add_f32 v{t2}, {fhex(float(a_add))}, v{gf}")
        A(f"v_mul_f32 v{ang+e}, v{t2}, v{t1}")
    for e in range(8):
        A(f"v_cos_f32 v{twc+e}, v{ang+e}")
        A(f"v_sin_f32 v{tws+e}, v{ang+e}")
    for q in range(4):
        A(f"v_cvt_pk_bf16_f32 v{Bc[0]+q}, v{twc+2*q}, v{twc+2*q+1}")
        A(f"v_cvt_pk_bf16_f32 v{Bs[0]+q}, -v{tws+2*q}, -v{tws+2*q+1}")
    for q in range(4):
        A(f"v_xor_b32 v{Bc[1]+q}, 0x80000000, v{Bc[0]+q}")
        A(f"v_xor_b32 v{Bs[1]+q}, 0x80000000, v{Bs[0]+q}")
    A("s_waitcnt lgkmcnt(0)")
    stamp(A, "karg")
    srd(A, WS, 34, 16 * MB)
    srd(A, SX, 16, 2 * MB)
    A(f"s_cmp_lg_u32 s{sW}, 7")
    A("s_cbranch_scc1 L_nouclr")
    for i in range(8):
        if i == 4:
            A("s_add_u32 s60, s60, 4096")
        A(f"buffer_store_dwordx4 {vr(ones,4)}, v{l16}, {S(WS)}, s60 offen offset:{1024*(i%4)} sc1")
    A.label("L_nouclr")
    V.q.append("uclr")
    V.do("x", f"buffer_load_dwordx4 {vr(xr,4)}, v{vx}, {S(SX)}, s61 offen{NT}")
    for u in range(2):
        V.do("xc", f"buffer_load_dwordx2 {vr(xC+2*u,2)}, v{voC}, {S(SX)}, s61 offen offset:{512*u}")
    A(f"s_add_u32 s62, s34, {OFF_TAG}")
    A("s_addc_u32 s63, s35, 0")
    A(f"s_load_dword s{sT}, s[62:63], 0")
    A(f"s_cmp_lt_u32 s{sW}, 4")
    A(f"s_cselect_b64 s[{SWF}:{SWF+1}], s[18:19], s[20:21]")
    A(f"s_cselect_b64 s[{SWM}:{SWM+1}], s[24:25], s[26:27]")
    A(f"s_mov_b32 s{SWF+2}, {W_BYTES:#x}")
    A(f"s_mov_b32 s{SWF+3}, 0x20000")
    A(f"s_mov_b32 s{SWM+2}, {WG_BYTES:#x}")
    A(f"s_mov_b32 s{SWM+3}, 0x20000")
    srd(A, SWD, 28, WG_BYTES)
    srd(A, SOUT, 30, 2 * MB)
    srd(A, SHH, 34, HH_BYTES, OFF_HH)
    sRT, sFT, sROT, sWSRC, sWDST, sLNB = 16, 17, 18, 19, 20, 21
    A(f"s_and_b32 s{sRT}, s{sX}, 1")
    A(f"s_lshl_b32 s{sRT}, s{sRT}, 3")
    A(f"s_and_b32 s60, s{sY}, 7")
    A(f"s_add_u32 s{sRT}, s{sRT}, s60")
    A(f"s_lshr_b32 s{sFT}, s{sX}, 1")
    A(f"s_lshl_b32 s{sFT}, s{sFT}, 2")
    A(f"s_lshr_b32 s61, s{sY}, 3")
    A(f"s_add_u32 s{sFT}, s{sFT}, s61")
    A("s_lshl_b32 s61, s61, 1")
    A(f"s_add_u32 s{sROT}, s60, s61")
    A(f"s_and_b32 s60, s{sW}, 3")
    A(f"s_mul_i32 s{sWSRC}, s60, {16*2752}")
    A(f"s_mul_i32 s61, s{sFT}, 192")
    A(f"s_add_u32 s{sWSRC}, s{sWSRC}, s61")
    A(f"s_lshl_b32 s{sWDST}, s60, 10")
    A(f"s_lshr_b32 s60, s{sW}, 2")
    A("s_mul_i32 s60, s60, 12288")
    A(f"s_add_u32 s{sWDST}, s{sWDST}, s60")
    A(f"v_lshrrev_b32 v{t0}, 2, v{lane}")
    A(f"v_mul_u32_u24 v{vw}, 2752, v{t0}")
    A(f"v_and_b32 v{t1}, 2, v{g}")
    A(f"v_and_b32 v{t2}, 3, v{lane}")
    A(f"v_xor_b32 v{t1}, v{t1}, v{t2}")
    A(f"v_lshl_add_u32 v{vw}, v{t1}, 4, v{vw}")
    A(f"v_lshrrev_b32 v{t0}, 3, v0")
    A(f"v_lshlrev_b32 v{vln}, 8, v{t0}")
    A(f"v_and_b32 v{t0}, 7, v0")
    A(f"v_lshl_add_u32 v{vln}, v{t0}, 4, v{vln}")
    A(f"s_lshr_b32 s{sLNB}, s{sLO}, 1")
    A(f"s_lshl_b32 s{sLNB}, s{sLNB}, 14")
    A(f"s_and_b32 s60, s{sLO}, 1")
    A("s_lshl_b32 s60, s60, 7")
    A(f"s_add_u32 s{sLNB}, s{sLNB}, s60")
    A(f"s_add_u32 s{sLNB}, s{sLNB}, {OFF_LN}")
    A(f"s_mul_i32 s60, s{sFT}, 6")
    A(f"s_and_b32 s61, s{sW}, 1")
    A("s_mul_i32 s61, s61, 3")
    A("s_add_u32 s60, s60, s61")
    A("s_lshl_b32 s60, s60, 16")
    A(f"s_lshl_b32 s61, s{sRT}, 2")
    A(f"s_lshr_b32 s62, s{sW}, 1")
    A("s_add_u32 s61, s61, s62")
    A("s_lshl_b32 s61, s61, 10")
    A("s_add_u32 s60, s60, s61")
    A(f"v_add_u32 v{voHH}, s60, v{l16}")

    def dma_w(p, fl=''):
        slot = p if p < 6 else p - 6
        out = []
        for cp in range(3):
            x = []
            if cp == 0:
                x += [f"s_add_u32 s22, s{sROT}, {p}", "s_and_b32 s22, s22, 7", f"s_mul_i32 s22, s22, {64*2752}",
                      f"s_add_u32 s22, s22, s{sWSRC}"]
            x.append(f"s_add_u32 m0, s{sWDST}, {slot*SLOT + cp*4096 - cp*64}")
            x.append(f"buffer_load_dwordx4 v{vw}, {S(SWM)}, s22 offen offset:{cp*64}{fl} lds")
            out.append(x)
        return out

    A("s_barrier")
    stamp(A, "bar1")
    A("s_lshl_b32 s62, s2, 13")
    A(f"s_add_u32 s62, s62, {OFF_V}")
    V.do("vclr", f"buffer_store_dwordx4 {vr(ones,4)}, v{voV}, {S(WS)}, s62 offen sc1")
    A(f"v_lshrrev_b32 v{t1}, 3, v{lane}")
    A(f"v_mul_u32_u24 v{t1}, {514*8}, v{t1}")
    A(f"v_and_b32 v{t2}, 7, v{lane}")
    A(f"v_min_u32 v{t2}, 4, v{t2}")
    A(f"v_lshl_add_u32 v{t1}, v{t2}, 7, v{t1}")
    A(f"s_mul_i32 s60, s{sX}, 514")
    A(f"s_mul_i32 s61, s{sY}, {514*64}")
    A("s_add_u32 s61, s61, s60")
    A(f"s_and_b32 s60, s{sW}, 3")
    A("s_cmp_lg_u32 s60, 0")
    A("s_cbranch_scc1 L_notch")
    A(f"buffer_load_ushort v{Wraw+5}, v{t1}, {S(SWF)}, s61 offen{NT}")
    A.label("L_notch")
    if "now" not in OPT:
        V.do("w0", dma_w(0, NT))
    A(f"v_lshrrev_b32 v{t2}, 1, v{j}")
    A(f"v_cvt_f32_u32 v{t2}, v{t2}")
    A(f"v_and_b32 v{t3}, 1, v{j}")
    A(f"v_cvt_f32_u32 v{t3}, v{t3}")
    A(f"v_mul_f32 v{t3}, {fhex(0.25)}, v{t3}")
    A(f"v_mul_f32 v{t1}, {fhex(1/16)}, v{t2}")
    for q in range(4):
        A(f"v_add_f32 v{ang+q}, {fhex(float(q))}, v{gf}")
        A(f"v_fma_f32 v{ang+q}, v{ang+q}, v{t1}, v{t3}")
    A(f"v_cvt_f32_u32 v{t0}, s{sLO}")
    A(f"v_mul_f32 v{t1}, {fhex(1/2048)}, v{t2}")
    A(f"v_fmamk_f32 v{t0}, v{gf}, {fhex(128.0)}, v{t0}")
    A(f"v_fma_f32 v{ang+4}, v{t0}, v{t1}, v{t3}")
    A(f"v_add_f32 v{t0}, {fhex(256.0)}, v{t0}")
    A(f"v_fma_f32 v{ang+5}, v{t0}, v{t1}, v{t3}")
    for q in range(6):
        A(f"v_cos_f32 v{twc+q}, v{ang+q}")
        A(f"v_sin_f32 v{tws+q}, v{ang+q}")
    for q in range(4):
        A(f"v_cvt_pk_bf16_f32 v{A2+q}, v{twc+q}, v{tws+q}")
    for p in range(2):
        A(f"v_cvt_pk_bf16_f32 v{R8+p}, v{twc+4+p}, v{tws+4+p}")
    for q in range(4):
        A(f"v_mov_b32 v{A2n+q}, {0x3F80 if q % 2 == 0 else 0xBF80:#x}")
    for t in range(2):
        A(f"v_add_f32 v{t1}, {fhex(16.0*t)}, v{jf}")
        A(f"v_mul_f32 v{t1}, {fhex(1/512)}, v{t1}")
        for r in range(4):
            A(f"v_add_f32 v{t2}, {fhex(float(r))}, v{gf}")
            A(f"v_mul_f32 v{ang+4*t+r}, v{t2}, v{t1}")
    for e in range(8):
        A(f"v_cos_f32 v{twc+e}, v{ang+e}")
        A(f"v_sin_f32 v{tws+e}, v{ang+e}")
    ZL = SC + 8192
    A(f"v_add_u32 v{lz}, {SC}, v{voV}")
    A(f"s_lshl_b32 s60, s{sW}, 10")
    A(f"s_add_u32 s60, s60, {SC}")
    A(f"v_lshl_add_u32 v{lzr}, v{lane}, 3, s60")
    A(f"v_lshlrev_b32 v{lw}, 8, v{g}")
    A(f"v_lshl_add_u32 v{lw}, v{j}, 2, v{lw}")
    A("s_add_u32 s60, s60, 8192")
    A(f"v_add_u32 v{lw}, s60, v{lw}")
    A(f"s_lshl_b32 s60, s{sW}, 8")
    A(f"v_lshlrev_b32 v{voU}, 11, v{g}")
    A(f"v_lshl_add_u32 v{voU}, v{j}, 4, v{voU}")
    A(f"v_add_u32 v{voU}, s60, v{voU}")
    A(f"v_add_u32 v{lru}, {ZL}, v{voU}")
    stamp(A, "const")
    A("s_waitcnt lgkmcnt(0)")
    A(f"s_add_u32 s{sT}, s{sT}, {TAG_STEP:#x}")
    A(f"s_cmp_lg_u32 s{sW}, 7")
    A("s_cbranch_scc1 L_noarr")
    V.wait("uclr")
    A(f"v_mov_b32 v{t1}, s{sT}")
    A("s_lshl_b32 s60, s2, 4")
    A(f"s_add_u32 s60, s60, {OFF_FL}")
    A(f"v_lshlrev_b32 v{t2}, 24, v{lane}")
    A(f"buffer_store_dword v{t1}, v{t2}, {S(WS)}, s60 offen sc1")
    A.label("L_noarr")
    V.wait("x")
    stamp(A, "xrdy")
    main = unpack_l(xf, xr) + ln_l(xf, tl, 24, xr, c512)
    emit(A, main)
    stamp(A, "Aln")
    A(f"s_mul_i32 s60, s{sX}, 514")
    A(f"s_lshl_b32 s61, s{sY}, 4")
    A("s_add_u32 s61, s61, s60")
    V.do("w", f"buffer_load_dwordx4 {vr(Wraw,4)}, v{vwo}, {S(SWF)}, s61 offen")
    A(f"s_cmp_lg_u32 s{sY}, 0")
    A("s_cbranch_scc1 L_nonyq")
    A(f"buffer_load_ushort v{Wraw+4}, v{vwo}, {S(SWF)}, s60 offen offset:512")
    A.label("L_nonyq")
    A(f"ds_write_b128 v{lz}, {vr(xr,4)}")
    A("s_waitcnt lgkmcnt(0)")
    A(f"ds_read_b64_tr_b16 {vr(za,2)}, v{lzr}")
    A(f"ds_read_b64_tr_b16 {vr(za+2,2)}, v{lzr} offset:512")
    A(f"v_cmp_eq_u32 vcc, 0, v{lane}")
    A("s_waitcnt lgkmcnt(0)")
    for t in range(2):
        A(f"{MF32} {vr(Dre[t],4)}, {vr(za,4)}, {vr(Bc[t],4)}, 0")
        A(f"{MF32} {vr(Dim[t],4)}, {vr(za,4)}, {vr(Bs[t],4)}, 0")
    for t in range(2):
        emit(A, cmul4_l(P[t], Dre[t], Dim[t], twc + 4 * t, tws + 4 * t, tl + 4 * t, True))
        A(f"{MF32} {vr(Dre[t],4)}, {vr(A2,4)}, {vr(P[t],4)}, 0")
        if t == 0:
            A(f"{MF32} {vr(Zn,4)}, {vr(A2n,4)}, {vr(P[0],4)}, 0")
    A(f"v_cndmask_b32 v{Dre[0]}, v{Dre[0]}, v{Zn}, vcc")
    for t in range(2):
        for q in range(2):
            A(f"v_cvt_pk_bf16_f32 v{P[t]+q}, v{Dre[t]+2*q}, v{Dre[t]+2*q+1}")
        A(f"ds_write2_b32 v{lw}, v{P[t]}, v{P[t]+1} offset0:{16*t} offset1:{16*t+32}")
    stamp(A, "Afft")
    V.wait("vclr", "lgkmcnt(0)")
    A("s_barrier")
    stamp(A, "Abar")
    A(f"s_cmp_ge_u32 s{sW}, 4")
    A("s_cbranch_scc1 L_Askip")
    L8 = xf
    A(f"ds_read_b128 {vr(L8,4)}, v{lru}")
    A(f"ds_read_b128 {vr(L8+4,4)}, v{lru} offset:1024")
    A(f"s_lshl_b32 s60, s{sLO}, 13")
    A("s_waitcnt lgkmcnt(0)")
    A(f"v_swap_b32 v{L8+1}, v{L8+4}")
    A(f"v_swap_b32 v{L8+3}, v{L8+6}")
    upos = [0, 4, 2, 6]
    Y4 = [Dre[0], Dre[1], Dim[0], Dim[1]]
    for u in range(4):
        A(f"{MF16} {vr(Y4[u],4)}, {vr(R8,2)}, {vr(L8+upos[u],2)}, 0")
    O8 = P[0]
    assert P[1] == P[0] + 4
    for p in range(2):
        for u in range(4):
            A(f"v_cvt_pk_bf16_f32 v{O8+4*p+u}, v{Y4[u]+2*p}, v{Y4[u]+2*p+1}")
        for u in range(4):
            A(f"v_min_u32 v{O8+4*p+u}, -2, v{O8+4*p+u}")
        A(f"buffer_store_dwordx4 {vr(O8+4*p,4)}, v{voU}, {S(WS)}, s60 offen offset:{1024*p} sc1")
    A("s_branch L_Adone")
    A.label("L_Askip")
    A(f"v_add_u32 v{t1}, {(OFF_FL - 4096) & 0xffffffff:#x}, v{voV}")
    A("s_mov_b32 s63, 0")
    A.label("L_b0r")
    A(f"buffer_load_dword v{b0}, v{t1}, {S(WS)}, 0 offen sc1")
    A("s_waitcnt vmcnt(0)")
    A(f"v_cmp_ne_u32 vcc, s{sT}, v{b0}")
    A("s_add_u32 s63, s63, 1")
    A(f"s_cmp_gt_u32 s63, {SPIN}")
    A("s_cbranch_scc1 L_Adone")
    A("s_cbranch_vccnz L_b0r")
    A.label("L_Adone")
    stamp(A, "Adone")

    RB = RA(base)
    In = RB.get(4, 4)
    Fre, Fim, Gre, Gim = RB.get(4, 4), RB.get(4, 4), RB.get(4, 4), RB.get(4, 4)
    twc, tws = RB.get(4, 4), RB.get(4, 4)
    Wre, Wim = RB.get(4, 4), RB.get(4, 4)
    Dre, Dim = RB.get(4, 4), RB.get(4, 4)
    tb = RB.get(4, 2)
    ang = RB.get(4)
    Ld = RB.get(4, 4)
    vul, lbw, lbr, lwr = (RB.get() for _ in range(4))
    WL = SC + 16384
    BL = SC + 32768
    A(f"v_mul_f32 v{t1}, {fhex(1/16)}, v{jf}")
    for q in range(4):
        A(f"v_add_f32 v{t2}, {fhex(float(q))}, v{gf}")
        A(f"v_mul_f32 v{ang+q}, v{t2}, v{t1}")
    for q in range(4):
        A(f"v_cos_f32 v{twc+q}, v{ang+q}")
        A(f"v_sin_f32 v{tws+q}, v{ang+q}")
    for q in range(4):
        A(f"v_cvt_pk_bf16_f32 v{Fre+q}, v{twc+q}, v{tws+q}")
        A(f"v_cvt_pk_bf16_f32 v{Fim+q}, -v{tws+q}, v{twc+q}")
        A(f"v_cvt_pk_bf16_f32 v{Gre+q}, v{twc+q}, -v{tws+q}")
        A(f"v_cvt_pk_bf16_f32 v{Gim+q}, v{tws+q}, v{twc+q}")
    for q in range(4):
        A(f"v_mul_f32 v{ang+q}, {fhex(1/16)}, v{ang+q}")
    for q in range(4):
        A(f"v_cos_f32 v{twc+q}, v{ang+q}")
        A(f"v_sin_f32 v{tws+q}, v{ang+q}")
    for i in range(4):
        A(f"v_mov_b32 v{Wre+i}, 0")
        A(f"v_mov_b32 v{Wim+i}, 0")
    A(f"v_lshrrev_b32 v{t1}, 1, v0")
    A(f"v_and_b32 v{t2}, 1, v0")
    A(f"v_lshlrev_b32 v{vul}, 13, v{t1}")
    A(f"v_lshl_add_u32 v{vul}, v{t2}, 4, v{vul}")
    A(f"s_lshl_b32 s23, s{sX}, 10")
    A(f"s_lshl_b32 s60, s{sY}, 5")
    A("s_add_u32 s23, s23, s60")
    A(f"v_and_b32 v{lbw}, 0xc0, v{t1}")
    A(f"v_and_b32 v{t3}, 15, v{t1}")
    A(f"v_lshl_add_u32 v{lbw}, v{t3}, 2, v{lbw}")
    A(f"v_bfe_u32 v{t3}, v{t1}, 4, 2")
    A(f"v_add_u32 v{lbw}, v{lbw}, v{t3}")
    A(f"v_lshl_add_u32 v{lbw}, v{t2}, 10, v{lbw}")
    A(f"v_lshlrev_b32 v{lbw}, 2, v{lbw}")
    A(f"v_add_u32 v{lbw}, {BL}, v{lbw}")
    A(f"v_add_u32 v{lbr}, {BL}, v{voV}")
    A(f"v_lshl_add_u32 v{lwr}, v{g}, 6, v{j}")
    A(f"v_lshlrev_b32 v{lwr}, 4, v{lwr}")
    A(f"s_lshl_b32 s60, s{sW}, 1")
    A(f"s_add_u32 s60, s60, {WL}")
    A(f"v_add_u32 v{lwr}, s60, v{lwr}")
    A(f"v_add_u32 v{t1}, {WL}, v{voV}")
    A("s_waitcnt vmcnt(0)")
    V.q = []
    A(f"s_cmp_lg_u32 s{sY}, 0")
    A("s_cbranch_scc1 L_nonyq2")
    A("s_mov_b32 s60, 0xffff0000")
    A(f"v_and_or_b32 v{Wraw}, v{Wraw}, s60, v{Wraw+4}")
    A.label("L_nonyq2")
    A(f"ds_write_b128 v{t1}, {vr(Wraw,4)}")
    stamp(A, "b0ld")
    A("s_waitcnt lgkmcnt(0)")
    A("s_barrier")
    stamp(A, "b0ok")
    ld = f"buffer_load_dwordx4 {vr(Ld,4)}, v{vul}, {S(WS)}, s23 offen sc1"
    V.do("u", ld)
    for r in range(4):
        A(f"ds_read_u16_d16_hi v{Wre+r}, v{lwr} offset:{256*r}")
        A(f"ds_read_u16_d16_hi v{Wim+r}, v{lwr} offset:{4096+256*r}")
    stamp(A, "Upre")
    V.wait("u")
    stamp(A, "Ufirst")
    RT.check("pu", rng(Ld, 4), t0, [ld])
    stamp(A, "Urdy")
    A(f"ds_write2st64_b32 v{lbw}, v{Ld}, v{Ld+1} offset0:0 offset1:4")
    A(f"ds_write2st64_b32 v{lbw}, v{Ld+2}, v{Ld+3} offset0:8 offset1:12")
    A("s_waitcnt lgkmcnt(0)")
    A("s_barrier")
    A(f"ds_read_b128 {vr(In,4)}, v{lbr}")
    V.do("lnclr", f"buffer_store_dwordx4 {vr(ones,4)}, v{vln}, {S(WS)}, s{sLNB} offen sc1")
    if "now" not in OPT:
        V.do("w1", dma_w(1))
    A(f"s_or_b32 s60, s2, s{sW}")
    A("s_cmp_lg_u32 s60, 0")
    A("s_cbranch_scc1 L_notag")
    A(f"v_mov_b32 v{t1}, s{sT}")
    A(f"v_lshlrev_b32 v{t2}, 24, v{lane}")
    A(f"s_mov_b32 s60, {OFF_TAG}")
    A(f"buffer_store_dword v{t1}, v{t2}, {S(WS)}, s60 offen sc1")
    A.label("L_notag")
    A("s_waitcnt lgkmcnt(0)")
    A(f"{MF32} {vr(Dre,4)}, {vr(In,4)}, {vr(Fre,4)}, 0")
    A(f"{MF32} {vr(Dim,4)}, {vr(In,4)}, {vr(Fim,4)}, 0")
    emit(A, cmul4_l(In, Dre, Dim, twc, tws, tb, True))
    A(f"{MF32} {vr(Dre,4)}, {vr(Fre,4)}, {vr(In,4)}, 0")
    A(f"{MF32} {vr(Dim,4)}, {vr(Fim,4)}, {vr(In,4)}, 0")
    emit(A, cmul4_l(In, Dre, Dim, Wre, Wim, tb, False))
    A(f"{MF32} {vr(Dre,4)}, {vr(In,4)}, {vr(Gre,4)}, 0")
    A(f"{MF32} {vr(Dim,4)}, {vr(In,4)}, {vr(Gim,4)}, 0")
    emit(A, cmul4_l(In, Dre, Dim, twc, tws, tb, False))
    A(f"{MF32} {vr(Dre,4)}, {vr(Gre,4)}, {vr(In,4)}, 0")
    A(f"{MF32} {vr(Dim,4)}, {vr(Gim,4)}, {vr(In,4)}, 0")
    for r in range(4):
        A(f"v_cvt_pk_bf16_f32 v{In+r}, v{Dre+r}, v{Dim+r}")
    for r in range(4):
        A(f"v_min_u32 v{In+r}, -2, v{In+r}")
    A(f"ds_write_b128 v{lbr}, {vr(In,4)}")
    stamp(A, "Bfft")
    V.wait("lnclr", "lgkmcnt(0)")
    A("s_barrier")
    A(f"ds_read2st64_b32 {vr(Ld,2)}, v{lbw} offset0:0 offset1:4")
    A(f"ds_read2st64_b32 {vr(Ld+2,2)}, v{lbw} offset0:8 offset1:12")
    A("s_lshl_b32 s60, s2, 13")
    A(f"s_add_u32 s60, s60, {OFF_V}")
    A("s_waitcnt lgkmcnt(0)")
    V.do("vst", f"buffer_store_dwordx4 {vr(Ld,4)}, v{voV}, {S(WS)}, s60 offen sc1")
    stamp(A, "Bdone")

    RC = RA(base)
    B2 = [[RC.get(4, 4), RC.get(4, 4)], [RC.get(4, 4), RC.get(4, 4)]]
    twc, tws = RC.get(8, 4), RC.get(8, 4)
    ang = RC.get(8, 4)
    P = [RC.get(4, 4), RC.get(4, 4)]
    RC.n = max(RC.n, RB.hi)
    L = RC.get(4, 4)
    xf = RC.get(8, 4)
    tl = RC.get(8, 2)
    R8 = RC.get(2, 2)
    B1re, B1im = RC.get(2, 2), RC.get(2, 2)
    Dre = [RC.get(4, 4), RC.get(4, 4)]
    Dim = [RC.get(4, 4), RC.get(4, 4)]
    Y = [RC.get(4, 4), RC.get(4, 4)]
    vvl, lcw, lcr, lnw, lhw, dummy = (RC.get() for _ in range(6))
    A(f"v_lshrrev_b32 v{t2}, 1, v{j}")
    A(f"v_cvt_f32_u32 v{t2}, v{t2}")
    A(f"v_and_b32 v{t3}, 1, v{j}")
    A(f"v_cvt_f32_u32 v{t3}, v{t3}")
    A(f"v_mul_f32 v{t3}, {fhex(-0.25)}, v{t3}")
    A(f"v_cvt_f32_u32 v{t0}, s{sLO}")
    A(f"v_fmamk_f32 v{t0}, v{t2}, {fhex(256.0)}, v{t0}")
    A(f"v_mul_f32 v{t0}, {fhex(1/2048)}, v{t0}")
    A(f"v_mul_f32 v{t1}, 0.5, v{gf}")
    A(f"v_fma_f32 v{ang}, v{t1}, v{t0}, v{t3}")
    A(f"v_add_f32 v{ang+1}, v{ang}, v{t0}")
    A(f"v_mul_f32 v{t0}, {fhex(1/16)}, v{jf}")
    A(f"v_mul_f32 v{ang+2}, v{t1}, v{t0}")
    A(f"v_add_f32 v{ang+3}, v{ang+2}, v{t0}")
    A(f"v_mul_f32 v{t0}, {fhex(1/32)}, v{jf}")
    for r in range(4):
        A(f"v_add_f32 v{t2}, {fhex(float(r))}, v{gf}")
        A(f"v_mul_f32 v{ang+4+r}, v{t2}, v{t0}")
    for e in range(8):
        A(f"v_cos_f32 v{twc+e}, v{ang+e}")
        A(f"v_sin_f32 v{tws+e}, v{ang+e}")
    A(f"v_lshlrev_b32 v{vvl}, 14, v{g}")
    A(f"v_lshrrev_b32 v{t1}, 2, v{j}")
    A(f"v_lshl_add_u32 v{vvl}, v{t1}, 16, v{vvl}")
    A(f"v_and_b32 v{t1}, 3, v{j}")
    A(f"v_lshl_add_u32 v{vvl}, v{t1}, 3, v{vvl}")
    A(f"s_lshl_b32 s23, s{sW}, 18")
    A(f"s_lshl_b32 s60, s{sLO}, 5")
    A("s_add_u32 s23, s23, s60")
    A(f"s_add_u32 s23, s23, {OFF_V}")
    A("s_add_u32 s25, s23, 8192")
    for p in range(2):
        A(f"v_cvt_pk_bf16_f32 v{R8+p}, v{twc+p}, -v{tws+p}")
        A(f"v_cvt_pk_bf16_f32 v{B1re+p}, v{twc+2+p}, -v{tws+2+p}")
        A(f"v_cvt_pk_bf16_f32 v{B1im+p}, v{tws+2+p}, v{twc+2+p}")
    for r in range(4):
        A(f"v_cvt_pk_bf16_f32 v{B2[0][0]+r}, v{twc+4+r}, -v{tws+4+r}")
    A(f"v_and_b32 v{t3}, 1, v{j}")
    A(f"v_mul_u32_u24 v{t3}, 0x8000, v{t3}")
    A(f"v_lshl_or_b32 v{t3}, v{t3}, 16, v{t3}")
    for r in range(4):
        A(f"v_xor_b32 v{B2[1][0]+r}, v{t3}, v{B2[0][0]+r}")
    for t in range(2):
        for r in range(4):
            if r % 2:
                A(f"v_xor_b32 v{B2[t][1]+r}, 0x80008000, v{B2[t][0]+r}")
            else:
                A(f"v_mov_b32 v{B2[t][1]+r}, v{B2[t][0]+r}")
    V.wait("vst")
    stamp(A, "Vdrain")
    lds_ = [f"buffer_load_dwordx2 {vr(L+2*p,2)}, v{vvl}, {S(WS)}, s{23+2*p} offen sc1" for p in range(2)]
    V.do("v", lds_)
    A(f"v_mul_f32 v{t0}, {fhex(1/512)}, v{jf}")
    for t in range(2):
        for r in range(4):
            A(f"v_add_f32 v{t2}, {fhex(float(16*t+r))}, v{gf}")
            A(f"v_mul_f32 v{ang+4*t+r}, v{t2}, v{t0}")
    for e in range(8):
        A(f"v_cos_f32 v{twc+e}, v{ang+e}")
        A(f"v_sin_f32 v{tws+e}, v{ang+e}")
    A(f"v_mov_b32 v{t2}, {fhex(2.0**-19)}")
    for e in range(4):
        A(f"v_pk_mul_f32 {p2(twc+2*e)}, {p2(twc+2*e)}, {p2(t2)} op_sel_hi:[1,0]")
        A(f"v_pk_mul_f32 {p2(tws+2*e)}, {p2(tws+2*e)}, {p2(t2)} op_sel_hi:[1,0]")
    LNL, HL = SC + 8192, SC + 16384
    A(f"v_lshlrev_b32 v{lcw}, 11, v{g}")
    A(f"v_lshl_add_u32 v{lcw}, v{j}, 3, v{lcw}")
    A(f"s_lshl_b32 s60, s{sW}, 7")
    A(f"s_add_u32 s60, s60, {SC}")
    A(f"v_add_u32 v{lcw}, s60, v{lcw}")
    A(f"v_lshlrev_b32 v{lcr}, 8, v{g}")
    A(f"v_lshl_add_u32 v{lcr}, v{j}, 2, v{lcr}")
    A(f"s_lshl_b32 s60, s{sW}, 10")
    A(f"s_add_u32 s60, s60, {SC}")
    A(f"v_add_u32 v{lcr}, s60, v{lcr}")
    A(f"v_lshlrev_b32 v{lhw}, 5, v{j}")
    A(f"v_lshl_add_u32 v{lhw}, v{g}, 3, v{lhw}")
    A(f"v_add_u32 v{lhw}, s60, v{lhw}")
    A(f"v_lshlrev_b32 v{lnw}, 8, v{j}")
    A(f"v_lshrrev_b32 v{t1}, 1, v{g}")
    A(f"v_lshl_add_u32 v{lnw}, v{t1}, 7, v{lnw}")
    A(f"v_and_b32 v{t1}, 1, v{g}")
    A(f"v_lshl_add_u32 v{lnw}, v{t1}, 3, v{lnw}")
    A(f"s_lshl_b32 s60, s{sW}, 4")
    A(f"s_add_u32 s60, s60, {SC}")
    A(f"v_add_u32 v{lnw}, s60, v{lnw}")
    emit(A, unpack_l(xf, xC))
    stamp(A, "Vpre")
    V.wait("v")
    stamp(A, "Vfirst")
    RT.check("pv", rng(L, 4), t0, lds_)
    stamp(A, "Vrdy")
    A(f"v_swap_b32 v{L+1}, v{L+2}")
    for u in range(2):
        A(f"{MF16} {vr(Y[u],4)}, {vr(R8,2)}, {vr(L+2*u,2)}, 0")
    for p in range(2):
        for u in range(2):
            A(f"v_cvt_pk_bf16_f32 v{P[0]+2*p+u}, v{Y[u]+2*p}, v{Y[u]+2*p+1}")
        A(f"ds_write_b64 v{lcw}, {vr(P[0]+2*p,2)} offset:{1024*p}")
    A(f"v_cmp_ne_u32 vcc, 0, v{lane}")
    A(f"v_mov_b32 v{t2}, {fhex(2.0**-20)}")
    A("s_waitcnt lgkmcnt(0)")
    A("s_barrier")
    for t in (1, 0):
        A(f"ds_read2_b32 {vr(L+2*t,2)}, v{lcr} offset0:{16*t} offset1:{16*t+32}")
    A(f"s_lshl_b32 s62, s{sLO}, 13")
    A(f"s_add_u32 s62, s62, {OFF_H}")
    V.do("hclr", f"buffer_store_dwordx4 {vr(ones,4)}, v{voV}, {S(WS)}, s62 offen sc1")
    if "now" not in OPT:
        V.do("w2", dma_w(2))
    A("s_waitcnt lgkmcnt(1)")
    A(f"{MF16} {vr(Dre[1],4)}, {vr(L+2,2)}, {vr(B1re,2)}, 0")
    A(f"{MF16} {vr(Dim[1],4)}, {vr(L+2,2)}, {vr(B1im,2)}, 0")
    A("s_waitcnt lgkmcnt(0)")
    A(f"v_readlane_b32 s24, v{L}, 0")
    A(f"v_cndmask_b32 v{L}, 0, v{L}, vcc")
    A("s_lshl_b32 s24, s24, 16")
    A(f"{MF16} {vr(Dre[0],4)}, {vr(L,2)}, {vr(B1re,2)}, 0")
    A(f"{MF16} {vr(Dim[0],4)}, {vr(L,2)}, {vr(B1im,2)}, 0")
    A(f"v_mul_f32 v{Y[0]}, s24, v{t2}")
    A(f"v_sub_f32 v{Y[0]+1}, 0, v{Y[0]}")
    A(f"v_pk_mov_b32 {p2(Y[0]+2)}, {p2(Y[0])}, {p2(Y[0])} op_sel:[0,1]")
    A(f"v_pk_mov_b32 {p2(Y[1])}, {p2(Y[0])}, {p2(Y[0])} op_sel:[0,1]")
    A(f"v_pk_mov_b32 {p2(Y[1]+2)}, {p2(Y[0])}, {p2(Y[0])} op_sel:[0,1]")
    for t in (1, 0):
        emit(A, cmul4_l(P[t], Dre[t], Dim[t], twc + 4 * t, tws + 4 * t, tl + 4 * t, False))
        for u in range(2):
            A(f"{MF32} {vr(Y[u],4)}, {vr(P[t],4)}, {vr(B2[t][u],4)}, {vr(Y[u],4)}")
    if "now" not in OPT:
        V.do("w3", dma_w(3))
    yb, hb, yf = P[0], P[1], Dre[0]
    assert Dre[1] == Dre[0] + 4
    for u in range(2):
        for q in range(2):
            A(f"v_cvt_pk_bf16_f32 v{yb+2*u+q}, v{Y[u]+2*q}, v{Y[u]+2*q+1}")
    emit(A, unpack_l(yf, yb))
    for i in range(4):
        A(f"v_pk_add_f32 {p2(xf+2*i)}, {p2(xf+2*i)}, {p2(yf+2*i)}")
    for i in range(4):
        A(f"v_cvt_pk_bf16_f32 v{hb+i}, v{xf+2*i}, v{xf+2*i+1}")
    emit(A, unpack_l(xf, hb))
    side = [f"v_min_u32 v{hb+i}, -2, v{hb+i}" for i in range(4)]
    side += [f"ds_write_b64 v{lhw}, {vr(hb+2*u,2)} offset:{16384+512*u}" for u in range(2)]
    if "now" not in OPT:
        side += [[]] * 14 + V.issue("w4", dma_w(4))
    interleave(A, ln_l(xf, tl, 24, yb, c512), side, start=4)
    for u in range(2):
        for q in range(2):
            A(f"v_min_u32 v{yb+2*u+q}, -2, v{yb+2*u+q}")
        A(f"ds_write_b64 v{lnw}, {vr(yb+2*u,2)} offset:{8192+4096*u}")
    A(f"v_add_u32 v{t1}, {SC}, v{voV}")
    A(f"s_lshl_b32 s60, s{sLO}, 13")
    A(f"s_add_u32 s60, s60, {OFF_H}")
    V.wait("hclr", "lgkmcnt(0)")
    A("s_barrier")
    A(f"ds_read_b128 {vr(Dre[0],4)}, v{t1} offset:8192")
    A(f"ds_read_b128 {vr(Dre[1],4)}, v{t1} offset:16384")
    A("s_waitcnt lgkmcnt(1)")
    V.do("lnst", f"buffer_store_dwordx4 {vr(Dre[0],4)}, v{vln}, {S(WS)}, s{sLNB} offen sc1")
    A("s_waitcnt lgkmcnt(0)")
    V.do("hst", f"buffer_store_dwordx4 {vr(Dre[1],4)}, v{voV}, {S(WS)}, s60 offen sc1")
    stamp(A, "Cdone")

    RD = RA(base)
    rw = RD.get(3)
    l16b, vtmp = RD.get(), RD.get()
    Fw = [RD.get(24, 4), RD.get(24, 4)]
    acc = RD.get(48, 4)
    X = RD.get(128, 4)
    assert RD.hi <= 256, RD.hi
    sTM, sN0, sROTE, sG, sACT = 23, 25, 26, 27, 21
    V.wait("w4")
    A("s_barrier")
    A(f"s_lshl_b32 s{sTM}, s{sX}, 2")
    A(f"s_and_b32 s60, s{sY}, 3")
    A(f"s_add_u32 s{sTM}, s{sTM}, s60")
    A(f"s_lshr_b32 s{sN0}, s{sY}, 2")
    A("s_mul_i32 s60, s60, 3")
    A(f"s_add_u32 s{sROTE}, s60, s{sN0}")
    A(f"s_cmp_ge_u32 s{sROTE}, 11")
    A("s_cselect_b32 s60, 11, 0")
    A(f"s_sub_u32 s{sROTE}, s{sROTE}, s60")
    A(f"s_lshl_b32 s{sN0}, s{sN0}, 7")
    A(f"v_lshrrev_b32 v{t1}, 3, v{lane}")
    A(f"v_lshlrev_b32 v{vwd}, 10, v{t1}")
    A(f"v_and_b32 v{t1}, 6, v{t1}")
    A(f"v_and_b32 v{t2}, 7, v{lane}")
    A(f"v_xor_b32 v{t1}, v{t1}, v{t2}")
    A(f"v_lshl_add_u32 v{vwd}, v{t1}, 4, v{vwd}")
    A(f"s_and_b32 s60, s{sW}, 3")
    A("s_lshl_b32 s61, s60, 15")
    A(f"s_add_u32 s61, s61, s{sN0}")
    A(f"v_add_u32 v{vwd}, s61, v{vwd}")
    A(f"s_lshr_b32 s61, s{sW}, 2")
    A("s_lshl_b32 s29, s61, 14")
    A("s_lshl_b32 s61, s61, 11")
    A(f"s_mul_i32 s{sG}, s60, 12288")
    A(f"s_add_u32 s{sG}, s{sG}, s61")
    A("s_lshl_b32 s28, s60, 12")
    A("s_add_u32 s28, s28, s61")
    A(f"s_add_u32 s28, s28, {6*SLOT}")
    A("s_add_u32 s30, s29, 8192")

    def idx_of(i, sd):
        return [f"s_add_u32 s{sd}, s{sROTE}, {i}", f"s_cmp_ge_u32 s{sd}, 11", "s_cselect_b32 s62, 11, 0",
                f"s_sub_u32 s{sd}, s{sd}, s62"]

    GB = {1: 49152, 2: 98304, 3: 0}

    def dma_d(i):
        pre = idx_of(i, 22) + ["s_lshl_b32 s22, s22, 17", f"v_add_u32 v{vtmp}, s22, v{vwd}"]
        if i == 0:
            m = lambda n: f"s_add_u32 m0, s28, {1024*n}"
        else:
            grp = (i - 1) // 3 + 1
            m = lambda n: f"s_add_u32 m0, s{sG}, {GB[grp] + ((i-1)%3)*4096 + 1024*n}"
        return [pre + [m(0), f"buffer_load_dwordx4 v{vtmp}, {S(SWD)}, s29 offen lds"],
                [m(1), f"buffer_load_dwordx4 v{vtmp}, {S(SWD)}, s30 offen lds"]]

    A(f"v_lshrrev_b32 v{t0}, 1, v{g}")
    A(f"v_lshlrev_b32 v{t0}, 10, v{t0}")
    A(f"v_and_b32 v{t1}, 1, v{g}")
    A(f"v_mul_u32_u24 v{t1}, {512+32}, v{t1}")
    A(f"v_add_u32 v{t0}, v{t0}, v{t1}")
    A(f"v_lshrrev_b32 v{t1}, 2, v{j}")
    A(f"v_lshl_add_u32 v{t0}, v{t1}, 6, v{t0}")
    A(f"v_and_b32 v{t1}, 3, v{j}")
    A(f"v_lshl_add_u32 v{t0}, v{t1}, 3, v{t0}")
    A(f"s_and_b32 s60, s{sW}, 1")
    A("s_mul_i32 s60, s60, 3")
    for c in range(3):
        A(f"s_add_u32 s61, s60, {c}")
        A("s_and_b32 s62, s61, 1")
        A("s_lshl_b32 s62, s62, 5")
        A("s_lshr_b32 s61, s61, 1")
        A("s_lshl_b32 s61, s61, 12")
        A(f"v_xor_b32 v{t1}, s62, v{t0}")
        A(f"v_add_u32 v{rw+c}, s61, v{t1}")
    A(f"v_add_u32 v{l16b}, 16384, v{l16}")
    A(f"s_lshl_b32 s{sACT}, s{sRT}, 3")
    A(f"s_and_b32 s60, s{sW}, 6")
    A(f"s_add_u32 s{sACT}, s{sACT}, s60")
    A(f"s_lshl_b32 s{sACT}, s{sACT}, 14")
    A(f"s_add_u32 s{sACT}, s{sACT}, {OFF_LN}")

    def act(p):
        pre = [f"s_add_u32 s31, s{sROT}, {p}", "s_and_b32 s31, s31, 7", "s_lshl_b32 s31, s31, 11",
               f"s_add_u32 s31, s31, s{sACT}"]
        o = []
        for ks in range(2):
            for m in range(2):
                ins = f"buffer_load_dwordx4 {vr(X+16*p+8*ks+4*m,4)}, v{l16b if m else l16}, {S(WS)}, s31 offen offset:{1024*ks} sc1"
                o.append(pre + [ins] if not o else [ins])
        return o

    def wreads(p, ks, buf):
        slot = p if p < 6 else p - 6
        o = []
        for c in range(3):
            for mat in range(2):
                for e4 in range(2):
                    off = (slot % 2) * SLOT + mat * 12288 + ks * 2048 + e4 * 256
                    o.append(f"ds_read_b64_tr_b16 {vr(Fw[buf]+(mat*3+c)*4+2*e4,2)}, v{rw+c} offset:{off}")
        return o

    def mfmas(p, ks, buf):
        o = []
        for c in range(3):
            for mat in range(2):
                for m in range(2):
                    a = acc + ((mat * 3 + c) * 2 + m) * 4
                    cc = "0" if (p == 0 and ks == 0) else vr(a, 4)
                    o.append(f"{MF32} {vr(a,4)}, {vr(Fw[buf]+(mat*3+c)*4,4)}, {vr(X+16*p+8*ks+4*m,4)}, {cc}")
        return o

    emit(A, wreads(0, 0, 0))
    V.wait("hst")
    stamp(A, "Cdrain")
    pairs = lambda l: [l[i:i + 2] for i in range(0, len(l), 2)]
    onesD = X
    hhclr = []
    for c in range(3):
        x = [f"v_add_u32 v{vtmp}, {65536*c}, v{voHH}",
             f"buffer_store_dwordx4 {vr(onesD,4)}, v{vtmp}, {S(SHH)}, 0 offen sc1"]
        hhclr.append(([f"v_mov_b32 v{onesD+i}, -1" for i in range(4)] if c == 0 else []) + x)
    plan = {
        (0, 0): [("a2", act(2))], (0, 1): [("a3", act(3))],
        (1, 0): [("w5", dma_w(5))], (1, 1): [("a4", act(4))],
        (2, 0): [("w6", dma_w(6))], (2, 1): [("a5", act(5))],
        (3, 0): [("w7", dma_w(7))], (3, 1): [("a6", act(6))],
        (4, 0): [("a7", act(7))], (4, 1): [("hhclr", hhclr)],
        (5, 0): [("d0", dma_d(0)), ("d1", dma_d(1))], (5, 1): [("d2", dma_d(2)), ("d3", dma_d(3))],
        (6, 0): [("d4", dma_d(4))], (6, 1): [("d5", dma_d(5))],
        (7, 0): [("d6", dma_d(6))], (7, 1): [("d7", dma_d(7))],
    }

    def extra(p, h):
        o = []
        for tag, ins in plan.get((p, h), []):
            o += V.issue(tag, ins)
        return o
    V.do("a0", act(0))
    V.do("a1", act(1))
    for p in range(8):
        V.wait(f"a{p}")
        RT.check(f"pa{p}", rng(X + 16 * p, 16), t0, act(p))
        stamp(A, f"a{p}")
        if p == 7:
            V.wait("hhclr")
            A(f"s_lshl_b32 s60, s{sRT}, 2")
            A(f"s_lshr_b32 s61, s{sW}, 1")
            A("s_add_u32 s60, s60, s61")
            A("s_lshl_b32 s60, s60, 5")
            A(f"s_lshl_b32 s61, s{sFT}, 1")
            A("s_add_u32 s60, s60, s61")
            A(f"s_and_b32 s61, s{sW}, 1")
            A("s_add_u32 s60, s60, s61")
            A("s_lshl_b32 s60, s60, 4")
            A(f"s_add_u32 s60, s60, {OFF_FH}")
            A(f"v_mov_b32 v{t2}, s{sT}")
            A(f"v_lshlrev_b32 v{t3}, 24, v{lane}")
            V.do("fh", f"buffer_store_dword v{t2}, v{t3}, {S(WS)}, s60 offen sc1")
        A("s_waitcnt lgkmcnt(0)")
        interleave(A, mfmas(p, 0, 0), pairs(wreads(p, 1, 1)) + extra(p, 0))
        A("s_waitcnt lgkmcnt(0)")
        if p % 2 == 1:
            if p == 3:
                V.wait("w5")
            if p == 5:
                V.wait("w7")
            A("s_barrier")
            if p < 7:
                d = 2 * SLOT if p < 5 else -4 * SLOT
                for c in range(3):
                    A(f"v_add_u32 v{rw+c}, {d & 0xffffffff:#x}, v{rw+c}")
        interleave(A, mfmas(p, 1, 1), (pairs(wreads(p + 1, 0, 0)) if p < 7 else []) + extra(p, 1))
    stamp(A, "Dmain")
    A(f"s_mov_b32 s60, {fhex(K1)}")
    A(f"v_mov_b32 v{t2}, {fhex(K0)}")
    q = X
    for c in range(3):
        gA = acc + c * 8
        uA = acc + (3 + c) * 8
        if c < 2:
            V.do(f"d{8+c}", dma_d(8 + c))
        for i in range(4):
            A(f"v_pk_mul_f32 {p2(q+2*i)}, {p2(gA+2*i)}, {p2(gA+2*i)}")
        for i in range(4):
            A(f"v_pk_fma_f32 {p2(q+2*i)}, {p2(q+2*i)}, s[60:61], {p2(t2)} op_sel_hi:[1,0,0]")
        for i in range(4):
            A(f"v_pk_mul_f32 {p2(q+2*i)}, {p2(q+2*i)}, {p2(gA+2*i)}")
        for i in range(4):
            A(f"v_exp_f32 v{q+2*i}, v{q+2*i}")
            A(f"v_exp_f32 v{q+2*i+1}, v{q+2*i+1}")
            A(f"v_pk_mul_f32 {p2(uA+2*i)}, {p2(uA+2*i)}, {p2(gA+2*i)}")
        for i in range(4):
            A(f"v_pk_add_f32 {p2(q+2*i)}, {p2(q+2*i)}, 1.0 op_sel_hi:[1,0]")
        for i in range(8):
            A(f"v_rcp_f32 v{q+i}, v{q+i}")
        if c:
            A(f"v_add_u32 v{voHH}, 65536, v{voHH}")
        for i in range(4):
            A(f"v_pk_mul_f32 {p2(q+2*i)}, {p2(q+2*i)}, {p2(uA+2*i)}")
        for i in range(4):
            A(f"v_cvt_pk_bf16_f32 v{gA+i}, v{q+2*i}, v{q+2*i+1}")
        for i in range(4):
            A(f"v_min_u32 v{gA+i}, -2, v{gA+i}")
        V.do("hhst", f"buffer_store_dwordx4 {vr(gA,4)}, v{voHH}, {S(SHH)}, 0 offen sc1")
    stamp(A, "Depi")

    RE = RA(base)
    rd = RE.get(4)
    assert vtmp >= rd + 4
    RE.n = vtmp + 1
    vh, vo, vhr, lrw = (RE.get() for _ in range(4))
    hres = RE.get(4, 4)
    Fd = [RE.get(16, 4), RE.get(16, 4)]
    RE.n = max(RE.n, acc + 48)
    ea = RE.get(32, 4)
    Hf = RE.get(88, 4)
    assert RE.hi <= 256
    A(f"s_and_b32 s60, s{sW}, 3")
    A("s_lshl_b32 s61, s60, 17")
    A(f"v_add_u32 v{vh}, s61, v{l16}")
    A(f"s_lshr_b32 s61, s{sW}, 2")
    A(f"s_lshl_b32 s16, s{sTM}, 1")
    A("s_add_u32 s16, s16, s61")
    A("s_lshl_b32 s18, s16, 5")
    A("s_lshl_b32 s16, s16, 10")
    A("s_add_u32 s17, s16, 65536")
    A(f"v_lshrrev_b32 v{t1}, 2, v{j}")
    A(f"v_lshl_add_u32 v{t1}, v{g}, 2, v{t1}")
    A(f"v_bfe_u32 v{t2}, v{t1}, 1, 2")
    A(f"v_lshlrev_b32 v{t1}, 7, v{t1}")
    A(f"v_lshl_add_u32 v{t1}, v{t2}, 5, v{t1}")
    A(f"v_and_b32 v{t2}, 3, v{j}")
    A(f"v_lshl_add_u32 v{t1}, v{t2}, 3, v{t1}")
    A("s_lshl_b32 s19, s60, 12")
    A(f"s_add_u32 s19, s19, {6*SLOT}")
    A("s_mul_i32 s20, s60, 12288")
    A(f"s_add_u32 s20, s20, {GB[1]}")
    A("s_sub_u32 s20, s20, s19")
    for c in range(4):
        A(f"v_xor_b32 v{rd+c}, {32*c}, v{t1}")
        A(f"v_add_u32 v{rd+c}, s19, v{rd+c}")
    A(f"v_and_b32 v{t1}, 1, v{g}")
    A(f"v_lshlrev_b32 v{t1}, 5, v{t1}")
    A(f"v_lshrrev_b32 v{t2}, 1, v{g}")
    A(f"v_lshl_add_u32 v{t1}, v{t2}, 4, v{t1}")
    A(f"v_lshl_add_u32 v{vhr}, v{j}, 10, v{t1}")
    A(f"v_and_b32 v{t2}, 7, v{j}")
    A(f"v_lshl_add_u32 v{vo}, v{t2}, 18, v{t1}")
    A(f"v_lshrrev_b32 v{t2}, 3, v{j}")
    A(f"v_lshl_add_u32 v{vo}, v{t2}, 10, v{vo}")
    A("s_lshr_b32 s61, s60, 1")
    A("s_lshl_b32 s61, s61, 4")
    A("s_add_u32 s18, s18, s61")
    A("s_and_b32 s61, s60, 1")
    A("s_lshl_b32 s61, s61, 6")
    A(f"s_add_u32 s61, s61, s{sN0}")
    A("s_lshl_b32 s21, s18, 10")
    A("s_add_u32 s21, s21, s61")
    A(f"s_add_u32 s21, s21, {OFF_H}")
    A("s_lshl_b32 s18, s18, 7")
    A("s_add_u32 s18, s18, s61")

    def hload(i):
        pre = idx_of(i, 31) + ["s_lshl_b32 s31, s31, 19", f"v_add_u32 v{t3}, s31, v{vh}"]
        return [pre + [f"buffer_load_dwordx4 {vr(Hf+8*i,4)}, v{t3}, {S(SHH)}, s16 offen sc1"],
                [f"buffer_load_dwordx4 {vr(Hf+8*i+4,4)}, v{t3}, {S(SHH)}, s17 offen sc1"]]

    def dreads(i, buf):
        off = 0 if i in (0, 10) else ((i - 1) % 3) * 4096
        return [f"ds_read_b64_tr_b16 {vr(Fd[buf]+4*c+2*e4,2)}, v{rd+c} offset:{off + 2048*e4}"
                for c in range(4) for e4 in range(2)]

    hl = f"buffer_load_dwordx4 {vr(hres,4)}, v{vhr}, {S(WS)}, s21 offen sc1"
    A(f"v_and_b32 v{t2}, 0x1f0, v{l16}")
    A("s_lshr_b32 s60, s16, 1")
    A(f"s_add_u32 s60, s60, {OFF_FH}")
    A("s_mov_b32 s63, 0")
    A.label("L_fhr")
    A(f"buffer_load_dword v{t1}, v{t2}, {S(WS)}, s60 offen sc1")
    A("s_waitcnt vmcnt(0)")
    V.q = []
    A(f"v_cmp_ne_u32 vcc, s{sT}, v{t1}")
    A("s_add_u32 s63, s63, 1")
    A(f"s_cmp_gt_u32 s63, {SPIN}")
    A("s_cbranch_scc1 L_fhok")
    A("s_cbranch_vccnz L_fhr")
    A.label("L_fhok")
    stamp(A, "Edrain")
    EA = int(os.environ.get("EA", "4"))
    for i in range(EA):
        V.do(f"h{i}", hload(i))
        if i == 0:
            A("s_barrier")
            emit(A, dreads(0, 0))
    for i in range(11):
        nxt = i + 1
        if nxt in (1, 4, 7, 10):
            for c in range(4):
                if nxt == 1:
                    A(f"v_add_u32 v{rd+c}, s20, v{rd+c}")
                elif nxt == 4:
                    A(f"v_add_u32 v{rd+c}, {GB[2]-GB[1]}, v{rd+c}")
                elif nxt == 7:
                    A(f"v_subrev_u32 v{rd+c}, {GB[2]-GB[3]}, v{rd+c}")
                else:
                    A(f"v_add_u32 v{rd+c}, {GB[1]}, v{rd+c}")
                    A(f"v_subrev_u32 v{rd+c}, s20, v{rd+c}")
        V.wait(f"h{i}")
        RT.check(f"pe{i}", rng(Hf + 8 * i, 8), t0, hload(i))
        stamp(A, f"e{i}")
        A(f"v_swap_b32 v{Hf+8*i+2}, v{Hf+8*i+4}")
        A(f"v_swap_b32 v{Hf+8*i+3}, v{Hf+8*i+5}")
        A("s_waitcnt lgkmcnt(0)")
        ex = []
        if i == 3:
            A("s_barrier")
            pre = idx_of(10, 22) + ["s_lshl_b32 s22, s22, 17", f"v_add_u32 v{vtmp}, s22, v{vwd}"]
            for n in range(4):
                x = (pre if n == 0 else []) + [f"s_add_u32 m0, s19, {1024*n}", f"s_mov_b32 s22, {8192*n}",
                                               f"buffer_load_dwordx4 v{vtmp}, {S(SWD)}, s22 offen lds"]
                ex.append(V.issue("d10", x))
        if i + EA < 11:
            ex += V.issue(f"h{i+EA}", hload(i + EA))
        if i == 7:
            ex += [V.issue("hres", hl)]
        if i == 9:
            V.wait("d10")
        side = (pairs(dreads(nxt, nxt % 2)) if nxt < 11 else []) + ex
        mm = []
        for c in range(4):
            for m in range(2):
                a = ea + (m * 4 + c) * 4
                mm.append(f"{MF32} {vr(a,4)}, {vr(Fd[i%2]+4*c,4)}, {vr(Hf+8*i+4*m,4)}, {'0' if i == 0 else vr(a,4)}")
        interleave(A, mm, side)
    stamp(A, "Emain")
    RED = GB[1]
    own = Hf
    hf = Hf + 8
    red = Hf + 16
    A(f"s_lshr_b32 s61, s{sW}, 2")
    A("s_mul_i32 s61, s61, 24576")
    A(f"s_add_u32 s61, s61, {RED}")
    A(f"v_add_u32 v{lrw}, s61, v{l16}")
    V.wait("hres")
    RT.check("ph", rng(hres, 4), t0, [hl])
    emit(A, unpack_l(hf, hres))
    A(f"s_and_b32 s60, s{sW}, 3")
    for kq in range(4):
        if kq < 3:
            A(f"s_cmp_lg_u32 s60, {kq}")
            A(f"s_cbranch_scc1 L_rv{kq+1}")
        for o in range(4):
            a = ea + ((o // 2) * 4 + 2 * (o % 2)) * 4
            if o == kq:
                for k in range(4):
                    A(f"v_pk_mov_b32 {p2(own+2*k)}, {p2(a+2*k)}, {p2(a+2*k)} op_sel:[0,1]")
            else:
                sl = (kq - o - 1) & 3
                for u in range(2):
                    A(f"ds_write_b128 v{lrw}, {vr(a+4*u,4)} offset:{o*6144 + sl*2048 + u*1024}")
        if kq < 3:
            A("s_branch L_rvd")
            A.label(f"L_rv{kq+1}")
    A.label("L_rvd")
    A("s_mul_i32 s60, s60, 6144")
    A(f"v_add_u32 v{lrw}, s60, v{lrw}")
    A("s_waitcnt lgkmcnt(0)")
    A("s_barrier")
    for k in range(6):
        A(f"ds_read_b128 {vr(red+4*k,4)}, v{lrw} offset:{1024*k}")
    for sl in range(3):
        A(f"s_waitcnt lgkmcnt({2*(2-sl)})")
        for k in range(4):
            A(f"v_pk_add_f32 {p2(own+2*k)}, {p2(own+2*k)}, {p2(red+8*sl+2*k)}")
    o = red
    for k in range(4):
        A(f"v_cvt_pk_bf16_f32 v{o+k}, v{own+2*k}, v{own+2*k+1}")
    A(f"v_permlane16_swap_b32 v{o}, v{o+2}")
    A(f"v_permlane16_swap_b32 v{o+1}, v{o+3}")
    emit(A, unpack_l(own, o))
    for k in range(4):
        A(f"v_pk_add_f32 {p2(own+2*k)}, {p2(own+2*k)}, {p2(hf+2*k)}")
    for k in range(4):
        A(f"v_cvt_pk_bf16_f32 v{o+k}, v{own+2*k}, v{own+2*k+1}")
    A(f"buffer_store_dwordx4 {vr(o,4)}, v{vo}, {S(SOUT)}, s18 offen")
    if os.environ.get("DBGST"):
        A("s_load_dwordx2 s[34:35], s[0:1], 64")
        A("s_waitcnt vmcnt(0) lgkmcnt(0)")
        A("s_memrealtime s[94:95]")
        A("s_memtime s[8:9]")
        A("s_waitcnt lgkmcnt(0)")
        A(f"s_cmp_lg_u32 s2, {os.environ['DBGST']}")
        A("s_cbranch_scc1 L_end")
        A(f"s_cmp_lg_u32 s{sW}, 0")
        A("s_cbranch_scc1 L_end")
        srd(A, 96, 34, 256)
        A(f"v_mov_b32 v{t0}, 0")
        A("s_mov_b64 exec, 1")
        for i in range(16):
            if i == 0:
                A("s_sub_u32 s100, s8, s10")
            else:
                A(f"s_sub_u32 s100, s{64+2*i}, s64")
            A(f"v_mov_b32 v{t1}, s100")
            A(f"buffer_store_dword v{t1}, v{t0}, s[96:99], 0 offen offset:{4*i}")
        A("s_waitcnt vmcnt(0)")
    elif STAMPS:
        A("s_load_dwordx2 s[34:35], s[0:1], 72")
        A("s_waitcnt vmcnt(0) lgkmcnt(0)")
        A("s_memrealtime s[94:95]")
        A("s_waitcnt lgkmcnt(0)")
        srd(A, 96, 34, 16 * MB, 32 * MB)
        A(f"v_and_b32 v{t0}, 0x1c0, v0")
        A("s_lshl_b32 s100, s2, 9")
        A("s_mov_b64 exec, 1")
        for i in range(16):
            A(f"v_mov_b32 v{t1}, s{64+2*i}")
            A(f"buffer_store_dword v{t1}, v{t0}, s[96:99], s100 offen offset:{4*i}")
        A("s_waitcnt vmcnt(0)")
    A.label("L_end")
    A("s_endpgm")
    RT.flush()
    return name, A.finalize(), 256, (256, 512, 163840), 0


def build_q(as_list=False):
    name, body, nv, (gx, bx, lds), ag = gen_Q()
    out = HEADER
    if STAMPS:
        out += "; STAMPSET " + ",".join(STAMPSET) + "\n"
    if as_list:
        out += f"; @launch kernel={name} grid=({gx},1,1) block=({bx},1,1) lds={lds}\n"
    else:
        out += f"; @launch grid=({gx},1,1) block=({bx},1,1) lds={lds}\n"
    out += '.amdgcn_target "amdgcn-amd-amdhsa--gfx950"\n' + body + kernel_desc(name, nv, agprs=ag)
    return out


if __name__ == "__main__":
    path = sys.argv[1] if len(sys.argv) > 1 else f"cdna_kernels/{NAME}.s"
    s = build_q(as_list=len(sys.argv) > 2)
    open(path, "w").write(s)
    print("lines", s.count("\n"))
```

```python
import sys, math, os
sys.path.insert(0, "work")
from asmlib import Asm, fhex
from gen import RA, vr, srd, kernel_header, kernel_desc, NAME, MB, W_BYTES, WG_BYTES, STAMPS
from gen_p import emit, zipl, interleave, reduce_l, unpack_l, ln_l, cmul4_l, S, K0, K1, MF32, MF16, HEADER

OFF_U, OFF_V, OFF_H, OFF_LN, OFF_HH = 0, 2 * MB, 4 * MB, 6 * MB, 8 * MB
OFF_FL = 14 * MB
OFF_TAG = 14 * MB + 8192
OFF_FC = 14 * MB + 65536
OFF_FD = 14 * MB + 131072
NT = os.environ.get('NTF', '')
TAG_STEP = 0x9E3779B9
sT = 3
HH_BYTES = 86 * 65536
SPIN = 200000
WS, DBG, SX, SWF, SWM, SWD, SOUT, SHH = 4, 8, 36, 40, 44, 48, 52, 56
sW, sX, sY, sLO = 12, 13, 14, 15
SLOT = 24576
SC = 5 * SLOT
p2 = lambda a: vr(a, 2)


class VM:
    def __init__(self, A):
        self.A = A
        self.q = []

    def issue(self, tag, ins):
        def walk(x):
            if isinstance(x, list):
                for y in x:
                    walk(y)
            elif x.startswith("buffer_"):
                self.q.append(tag)
        walk(ins)
        return ins

    def do(self, tag, ins):
        emit(self.A, [self.issue(tag, ins)])

    def count_after(self, tag):
        idx = max((i for i, t in enumerate(self.q) if t == tag), default=-1)
        return len(self.q) - 1 - idx, idx

    def wait(self, tag, extra=""):
        n, idx = self.count_after(tag)
        if idx < 0:
            if extra:
                self.A("s_waitcnt " + extra)
            return
        assert n <= 63, n
        self.A(f"s_waitcnt vmcnt({n}) {extra}".strip())
        self.q = self.q[idx + 1:]


STAMPSET = os.environ.get("STAMPSET", "start,xrdy,Adone,b0ld,b0ok,Urdy,Bdone,Vdrain,Vrdy,Cdone,Cdrain,Dmain,Depi,Edrain,Emain").split(",")
OPT = set(os.environ.get("OPT", "").split(","))


def stamp(A, name):
    if STAMPS and name in STAMPSET:
        i = STAMPSET.index(name)
        A(f"s_memrealtime s[{64+2*i}:{65+2*i}]")
    if STAMPS and name + "*" in STAMPSET:
        i = STAMPSET.index(name + "*")
        A(f"s_memtime s[{64+2*i}:{65+2*i}]")


def maxtree(regs, vt):
    n = len(regs)
    o = []
    if n == 4:
        o.append(f"v_max3_u32 v{vt}, v{regs[0]}, v{regs[1]}, v{regs[2]}")
        o.append(f"v_max_u32 v{vt}, v{vt}, v{regs[3]}")
    else:
        o.append(f"v_max3_u32 v{vt}, v{regs[0]}, v{regs[1]}, v{regs[2]}")
        o.append(f"v_max3_u32 v{vt+1}, v{regs[3]}, v{regs[4]}, v{regs[5]}")
        i = 6
        k = 0
        while i + 1 < n:
            o.append(f"v_max3_u32 v{vt+k}, v{vt+k}, v{regs[i]}, v{regs[i+1]}")
            i += 2
            k ^= 1
        assert i == n
        o.append(f"v_max_u32 v{vt}, v{vt}, v{vt+1}")
    o.append(f"v_cmp_eq_u32 vcc, -1, v{vt}")
    return o


class Retry:
    def __init__(self, A):
        self.A = A
        self.blocks = []

    def check(self, tag, regs, vt, reload):
        A = self.A
        emit(A, maxtree(regs, vt))
        A(f"s_cbranch_vccnz L{tag}_r")
        A.label(f"L{tag}_ok")
        self.blocks.append((tag, regs, vt, reload))

    def flush(self):
        A = self.A
        for tag, regs, vt, reload in self.blocks:
            A.label(f"L{tag}_r")
            A("s_mov_b32 s63, 0")
            A.label(f"L{tag}_r2")
            A("s_mov_b64 exec, vcc")
            emit(A, reload)
            A("s_waitcnt vmcnt(0)")
            emit(A, maxtree(regs, vt))
            A("s_add_u32 s63, s63, 1")
            A(f"s_cmp_gt_u32 s63, {SPIN}")
            A(f"s_cbranch_scc1 L{tag}_x")
            A(f"s_cbranch_vccnz L{tag}_r2")
            A.label(f"L{tag}_x")
            A("s_mov_b64 exec, -1")
            A(f"s_branch L{tag}_ok")


def rng(a, n):
    return list(range(a, a + n))


def gen_Q():
    A = Asm()
    V = VM(A)
    RT = Retry(A)
    name = NAME + "_kernel"
    kernel_header(A, name)
    R = RA(1)
    lane, g, j, gf, jf, c512, b0 = (R.get() for _ in range(7))
    t0 = R.get(4, 2)
    t1, t2, t3 = t0 + 1, t0 + 2, t0 + 3
    voV, vln, vw, vwd, l16 = (R.get() for _ in range(5))
    voHH = R.get()
    xC = R.get(4, 2)
    base = R.n

    A("s_cmp_ge_u32 s2, 256")
    A("s_cbranch_scc1 L_end")
    stamp(A, "start")
    if os.environ.get("DBGST"):
        A("s_memtime s[10:11]")
    A("s_load_dwordx16 s[16:31], s[0:1], 0")
    A("s_load_dwordx4 s[32:35], s[0:1], 64")
    RA_ = RA(base)
    xr = RA_.get(4, 4)
    xf = RA_.get(8, 4)
    tl = RA_.get(8, 2)
    Bc = [RA_.get(4, 4), RA_.get(4, 4)]
    Bs = [RA_.get(4, 4), RA_.get(4, 4)]
    twc, tws = RA_.get(8, 4), RA_.get(8, 4)
    A2, A2n = RA_.get(4, 4), RA_.get(4, 4)
    R8 = RA_.get(2, 2)
    za = RA_.get(4, 4)
    Dre = [RA_.get(4, 4), RA_.get(4, 4)]
    Dim = [RA_.get(4, 4), RA_.get(4, 4)]
    P = [RA_.get(4, 4), RA_.get(4, 4)]
    Zn = RA_.get(4, 4)
    ang = RA_.get(8, 4)
    vx, voC, voU, vwo = (RA_.get() for _ in range(4))
    lz, lzr, lw, lru = (RA_.get() for _ in range(4))
    ones = 248
    Wraw = 240
    A(f"v_and_b32 v{lane}, 63, v0")
    A(f"v_lshrrev_b32 v{t0}, 6, v0")
    A(f"v_lshrrev_b32 v{g}, 4, v{lane}")
    A(f"v_and_b32 v{j}, 15, v{lane}")
    A(f"v_readfirstlane_b32 s{sW}, v{t0}")
    A(f"s_and_b32 s{sX}, s2, 7")
    A(f"s_lshr_b32 s{sY}, s2, 3")
    A(f"s_lshl_b32 s{sLO}, s{sX}, 5")
    A(f"s_add_u32 s{sLO}, s{sLO}, s{sY}")
    A(f"v_lshlrev_b32 v{voV}, 4, v0")
    A(f"v_lshlrev_b32 v{l16}, 4, v{lane}")
    A(f"v_lshlrev_b32 v{vx}, 18, v{t0}")
    A(f"v_lshl_add_u32 v{voC}, v{j}, 5, v{vx}")
    A(f"v_lshl_add_u32 v{voC}, v{g}, 3, v{voC}")
    A(f"v_add_u32 v{vx}, v{l16}, v{vx}")
    for i in range(4):
        A(f"v_mov_b32 v{ones+i}, -1")
    A(f"v_and_b32 v{vwo}, 255, v0")
    A(f"v_mul_u32_u24 v{vwo}, {514*8}, v{vwo}")
    A(f"s_lshl_b32 s60, s{sLO}, 13")
    A(f"s_lshl_b32 s61, s{sLO}, 10")
    A(f"v_mov_b32 v{c512}, {fhex(1.0/512)}")
    A(f"v_cvt_f32_u32 v{gf}, v{g}")
    A(f"v_cvt_f32_u32 v{jf}, v{j}")
    A(f"v_mul_f32 v{gf}, 4.0, v{gf}")
    A(f"v_mul_f32 v{t1}, {fhex(1/32)}, v{jf}")
    for e in range(8):
        a_add = e if e < 4 else 12 + e
        A(f"v_add_f32 v{t2}, {fhex(float(a_add))}, v{gf}")
        A(f"v_mul_f32 v{ang+e}, v{t2}, v{t1}")
    for e in range(8):
        A(f"v_cos_f32 v{twc+e}, v{ang+e}")
        A(f"v_sin_f32 v{tws+e}, v{ang+e}")
    for q in range(4):
        A(f"v_cvt_pk_bf16_f32 v{Bc[0]+q}, v{twc+2*q}, v{twc+2*q+1}")
        A(f"v_cvt_pk_bf16_f32 v{Bs[0]+q}, -v{tws+2*q}, -v{tws+2*q+1}")
    for q in range(4):
        A(f"v_xor_b32 v{Bc[1]+q}, 0x80000000, v{Bc[0]+q}")
        A(f"v_xor_b32 v{Bs[1]+q}, 0x80000000, v{Bs[0]+q}")
    A("s_waitcnt lgkmcnt(0)")
    stamp(A, "karg")
    srd(A, WS, 34, 16 * MB)
    srd(A, SX, 16, 2 * MB)
    A(f"s_cmp_lg_u32 s{sW}, 7")
    A("s_cbranch_scc1 L_nouclr")
    for i in range(8):
        if i == 4:
            A("s_add_u32 s60, s60, 4096")
        A(f"buffer_store_dwordx4 {vr(ones,4)}, v{l16}, {S(WS)}, s60 offen offset:{1024*(i%4)} sc1")
    A("s_lshl_b32 s60, s2, 13")
    A(f"s_add_u32 s60, s60, {OFF_V}")
    for i in range(8):
        if i == 4:
            A("s_add_u32 s60, s60, 4096")
        A(f"buffer_store_dwordx4 {vr(ones,4)}, v{l16}, {S(WS)}, s60 offen offset:{1024*(i%4)} sc1")
    A.label("L_nouclr")
    V.q.append("uclr")
    V.do("x", f"buffer_load_dwordx4 {vr(xr,4)}, v{vx}, {S(SX)}, s61 offen{NT}")
    for u in range(2):
        V.do("xc", f"buffer_load_dwordx2 {vr(xC+2*u,2)}, v{voC}, {S(SX)}, s61 offen offset:{512*u}")
    A(f"s_add_u32 s62, s34, {OFF_TAG}")
    A("s_addc_u32 s63, s35, 0")
    A(f"s_load_dword s{sT}, s[62:63], 0")
    A(f"s_cmp_lt_u32 s{sW}, 4")
    A(f"s_cselect_b64 s[{SWF}:{SWF+1}], s[18:19], s[20:21]")
    A(f"s_cselect_b64 s[{SWM}:{SWM+1}], s[24:25], s[26:27]")
    A(f"s_mov_b32 s{SWF+2}, {W_BYTES:#x}")
    A(f"s_mov_b32 s{SWF+3}, 0x20000")
    A(f"s_mov_b32 s{SWM+2}, {WG_BYTES:#x}")
    A(f"s_mov_b32 s{SWM+3}, 0x20000")
    srd(A, SWD, 28, WG_BYTES)
    srd(A, SOUT, 30, 2 * MB)
    srd(A, SHH, 34, HH_BYTES, OFF_HH)
    sRT, sFT, sROT, sWSRC, sWDST, sLNB = 16, 17, 18, 19, 20, 21
    A(f"s_and_b32 s{sRT}, s{sX}, 1")
    A(f"s_lshl_b32 s{sRT}, s{sRT}, 3")
    A(f"s_and_b32 s60, s{sY}, 7")
    A(f"s_add_u32 s{sRT}, s{sRT}, s60")
    A(f"s_lshr_b32 s{sFT}, s{sX}, 1")
    A(f"s_lshl_b32 s{sFT}, s{sFT}, 2")
    A(f"s_lshr_b32 s61, s{sY}, 3")
    A(f"s_add_u32 s{sFT}, s{sFT}, s61")
    A("s_lshl_b32 s61, s61, 1")
    A(f"s_add_u32 s{sROT}, s60, s61")
    A(f"s_and_b32 s60, s{sW}, 3")
    A(f"s_mul_i32 s{sWSRC}, s60, {16*2752}")
    A(f"s_mul_i32 s61, s{sFT}, 192")
    A(f"s_add_u32 s{sWSRC}, s{sWSRC}, s61")
    A(f"s_lshl_b32 s{sWDST}, s60, 10")
    A(f"s_lshr_b32 s60, s{sW}, 2")
    A("s_mul_i32 s60, s60, 12288")
    A(f"s_add_u32 s{sWDST}, s{sWDST}, s60")
    A(f"v_lshrrev_b32 v{t0}, 2, v{lane}")
    A(f"v_mul_u32_u24 v{vw}, 2752, v{t0}")
    A(f"v_and_b32 v{t1}, 2, v{g}")
    A(f"v_and_b32 v{t2}, 3, v{lane}")
    A(f"v_xor_b32 v{t1}, v{t1}, v{t2}")
    A(f"v_lshl_add_u32 v{vw}, v{t1}, 4, v{vw}")
    A(f"v_lshrrev_b32 v{t0}, 3, v0")
    A(f"v_lshlrev_b32 v{vln}, 8, v{t0}")
    A(f"v_and_b32 v{t0}, 7, v0")
    A(f"v_lshl_add_u32 v{vln}, v{t0}, 4, v{vln}")
    A(f"s_lshr_b32 s{sLNB}, s{sLO}, 1")
    A(f"s_lshl_b32 s{sLNB}, s{sLNB}, 14")
    A(f"s_and_b32 s60, s{sLO}, 1")
    A("s_lshl_b32 s60, s60, 7")
    A(f"s_add_u32 s{sLNB}, s{sLNB}, s60")
    A(f"s_add_u32 s{sLNB}, s{sLNB}, {OFF_LN}")
    A(f"s_mul_i32 s60, s{sFT}, 6")
    A(f"s_and_b32 s61, s{sW}, 1")
    A("s_mul_i32 s61, s61, 3")
    A("s_add_u32 s60, s60, s61")
    A("s_lshl_b32 s60, s60, 16")
    A(f"s_lshl_b32 s61, s{sRT}, 2")
    A(f"s_lshr_b32 s62, s{sW}, 1")
    A("s_add_u32 s61, s61, s62")
    A("s_lshl_b32 s61, s61, 10")
    A("s_add_u32 s60, s60, s61")
    A(f"v_add_u32 v{voHH}, s60, v{l16}")

    def dma_w(p, fl=''):
        slot = p if p < 6 else p - 6
        out = []
        for cp in range(3):
            x = []
            if cp == 0:
                x += [f"s_add_u32 s22, s{sROT}, {p}", "s_and_b32 s22, s22, 7", f"s_mul_i32 s22, s22, {64*2752}",
                      f"s_add_u32 s22, s22, s{sWSRC}"]
            x.append(f"s_add_u32 m0, s{sWDST}, {slot*SLOT + cp*4096 - cp*64}")
            x.append(f"buffer_load_dwordx4 v{vw}, {S(SWM)}, s22 offen offset:{cp*64}{fl} lds")
            out.append(x)
        return out

    A("s_barrier")
    stamp(A, "bar1")
    A(f"v_lshrrev_b32 v{t1}, 3, v{lane}")
    A(f"v_mul_u32_u24 v{t1}, {514*8}, v{t1}")
    A(f"v_and_b32 v{t2}, 7, v{lane}")
    A(f"v_min_u32 v{t2}, 4, v{t2}")
    A(f"v_lshl_add_u32 v{t1}, v{t2}, 7, v{t1}")
    A(f"s_mul_i32 s60, s{sX}, 514")
    A(f"s_mul_i32 s61, s{sY}, {514*64}")
    A("s_add_u32 s61, s61, s60")
    A(f"s_and_b32 s60, s{sW}, 3")
    A("s_cmp_lg_u32 s60, 0")
    A("s_cbranch_scc1 L_notch")
    A(f"buffer_load_ushort v{Wraw+5}, v{t1}, {S(SWF)}, s61 offen{NT}")
    A.label("L_notch")
    A(f"v_lshrrev_b32 v{t2}, 1, v{j}")
    A(f"v_cvt_f32_u32 v{t2}, v{t2}")
    A(f"v_and_b32 v{t3}, 1, v{j}")
    A(f"v_cvt_f32_u32 v{t3}, v{t3}")
    A(f"v_mul_f32 v{t3}, {fhex(0.25)}, v{t3}")
    A(f"v_mul_f32 v{t1}, {fhex(1/16)}, v{t2}")
    for q in range(4):
        A(f"v_add_f32 v{ang+q}, {fhex(float(q))}, v{gf}")
        A(f"v_fma_f32 v{ang+q}, v{ang+q}, v{t1}, v{t3}")
    A(f"v_cvt_f32_u32 v{t0}, s{sLO}")
    A(f"v_mul_f32 v{t1}, {fhex(1/2048)}, v{t2}")
    A(f"v_fmamk_f32 v{t0}, v{gf}, {fhex(128.0)}, v{t0}")
    A(f"v_fma_f32 v{ang+4}, v{t0}, v{t1}, v{t3}")
    A(f"v_add_f32 v{t0}, {fhex(256.0)}, v{t0}")
    A(f"v_fma_f32 v{ang+5}, v{t0}, v{t1}, v{t3}")
    for q in range(6):
        A(f"v_cos_f32 v{twc+q}, v{ang+q}")
        A(f"v_sin_f32 v{tws+q}, v{ang+q}")
    for q in range(4):
        A(f"v_cvt_pk_bf16_f32 v{A2+q}, v{twc+q}, v{tws+q}")
    for p in range(2):
        A(f"v_cvt_pk_bf16_f32 v{R8+p}, v{twc+4+p}, v{tws+4+p}")
    for q in range(4):
        A(f"v_mov_b32 v{A2n+q}, {0x3F80 if q % 2 == 0 else 0xBF80:#x}")
    for t in range(2):
        A(f"v_add_f32 v{t1}, {fhex(16.0*t)}, v{jf}")
        A(f"v_mul_f32 v{t1}, {fhex(1/512)}, v{t1}")
        for r in range(4):
            A(f"v_add_f32 v{t2}, {fhex(float(r))}, v{gf}")
            A(f"v_mul_f32 v{ang+4*t+r}, v{t2}, v{t1}")
    for e in range(8):
        A(f"v_cos_f32 v{twc+e}, v{ang+e}")
        A(f"v_sin_f32 v{tws+e}, v{ang+e}")
    ZL = SC + 8192
    A(f"v_add_u32 v{lz}, {SC}, v{voV}")
    A(f"s_lshl_b32 s60, s{sW}, 10")
    A(f"s_add_u32 s60, s60, {SC}")
    A(f"v_lshl_add_u32 v{lzr}, v{lane}, 3, s60")
    A(f"v_lshlrev_b32 v{lw}, 8, v{g}")
    A(f"v_lshl_add_u32 v{lw}, v{j}, 2, v{lw}")
    A("s_add_u32 s60, s60, 8192")
    A(f"v_add_u32 v{lw}, s60, v{lw}")
    A(f"s_lshl_b32 s60, s{sW}, 8")
    A(f"v_lshlrev_b32 v{voU}, 11, v{g}")
    A(f"v_lshl_add_u32 v{voU}, v{j}, 4, v{voU}")
    A(f"v_add_u32 v{voU}, s60, v{voU}")
    A(f"v_add_u32 v{lru}, {ZL}, v{voU}")
    stamp(A, "const")
    A("s_waitcnt lgkmcnt(0)")
    A(f"s_add_u32 s{sT}, s{sT}, {TAG_STEP:#x}")
    A(f"s_cmp_lg_u32 s{sW}, 7")
    A("s_cbranch_scc1 L_noarr")
    V.wait("uclr")
    A(f"v_mov_b32 v{t1}, s{sT}")
    A("s_lshl_b32 s60, s2, 4")
    A(f"s_add_u32 s60, s60, {OFF_FL}")
    A(f"v_lshlrev_b32 v{t2}, 24, v{lane}")
    A(f"buffer_store_dword v{t1}, v{t2}, {S(WS)}, s60 offen sc1")
    A.label("L_noarr")
    V.wait("x")
    stamp(A, "xrdy")
    main = unpack_l(xf, xr) + ln_l(xf, tl, 24, xr, c512)
    emit(A, main)
    stamp(A, "Aln")
    A(f"s_mul_i32 s60, s{sX}, 514")
    A(f"s_lshl_b32 s61, s{sY}, 4")
    A("s_add_u32 s61, s61, s60")
    V.do("w", f"buffer_load_dwordx4 {vr(Wraw,4)}, v{vwo}, {S(SWF)}, s61 offen")
    A(f"s_cmp_lg_u32 s{sY}, 0")
    A("s_cbranch_scc1 L_nonyq")
    A(f"buffer_load_ushort v{Wraw+4}, v{vwo}, {S(SWF)}, s60 offen offset:512")
    A.label("L_nonyq")
    A(f"ds_write_b128 v{lz}, {vr(xr,4)}")
    A("s_waitcnt lgkmcnt(0)")
    A(f"ds_read_b64_tr_b16 {vr(za,2)}, v{lzr}")
    A(f"ds_read_b64_tr_b16 {vr(za+2,2)}, v{lzr} offset:512")
    A(f"v_cmp_eq_u32 vcc, 0, v{lane}")
    A("s_waitcnt lgkmcnt(0)")
    for t in range(2):
        A(f"{MF32} {vr(Dre[t],4)}, {vr(za,4)}, {vr(Bc[t],4)}, 0")
        A(f"{MF32} {vr(Dim[t],4)}, {vr(za,4)}, {vr(Bs[t],4)}, 0")
    for t in range(2):
        emit(A, cmul4_l(P[t], Dre[t], Dim[t], twc + 4 * t, tws + 4 * t, tl + 4 * t, True))
        A(f"{MF32} {vr(Dre[t],4)}, {vr(A2,4)}, {vr(P[t],4)}, 0")
        if t == 0:
            A(f"{MF32} {vr(Zn,4)}, {vr(A2n,4)}, {vr(P[0],4)}, 0")
    A(f"v_cndmask_b32 v{Dre[0]}, v{Dre[0]}, v{Zn}, vcc")
    for t in range(2):
        for q in range(2):
            A(f"v_cvt_pk_bf16_f32 v{P[t]+q}, v{Dre[t]+2*q}, v{Dre[t]+2*q+1}")
        A(f"ds_write2_b32 v{lw}, v{P[t]}, v{P[t]+1} offset0:{16*t} offset1:{16*t+32}")
    stamp(A, "Afft")
    V.wait("vclr", "lgkmcnt(0)")
    A("s_barrier")
    stamp(A, "Abar")
    A(f"s_cmp_ge_u32 s{sW}, 4")
    A("s_cbranch_scc1 L_Askip")
    L8 = xf
    A(f"ds_read_b128 {vr(L8,4)}, v{lru}")
    A(f"ds_read_b128 {vr(L8+4,4)}, v{lru} offset:1024")
    A(f"s_lshl_b32 s60, s{sLO}, 13")
    A("s_waitcnt lgkmcnt(0)")
    A(f"v_swap_b32 v{L8+1}, v{L8+4}")
    A(f"v_swap_b32 v{L8+3}, v{L8+6}")
    upos = [0, 4, 2, 6]
    Y4 = [Dre[0], Dre[1], Dim[0], Dim[1]]
    for u in range(4):
        A(f"{MF16} {vr(Y4[u],4)}, {vr(R8,2)}, {vr(L8+upos[u],2)}, 0")
    O8 = P[0]
    assert P[1] == P[0] + 4
    for p in range(2):
        for u in range(4):
            A(f"v_cvt_pk_bf16_f32 v{O8+4*p+u}, v{Y4[u]+2*p}, v{Y4[u]+2*p+1}")
        for u in range(4):
            A(f"v_min_u32 v{O8+4*p+u}, -2, v{O8+4*p+u}")
        A(f"buffer_store_dwordx4 {vr(O8+4*p,4)}, v{voU}, {S(WS)}, s60 offen offset:{1024*p} sc1")
    A("s_branch L_Adone")
    A.label("L_Askip")
    A(f"v_add_u32 v{t1}, {(OFF_FL - 4096) & 0xffffffff:#x}, v{voV}")
    A("s_mov_b32 s63, 0")
    A.label("L_b0r")
    A(f"buffer_load_dword v{b0}, v{t1}, {S(WS)}, 0 offen sc1")
    A("s_waitcnt vmcnt(0)")
    A(f"v_cmp_ne_u32 vcc, s{sT}, v{b0}")
    A("s_add_u32 s63, s63, 1")
    A(f"s_cmp_gt_u32 s63, {SPIN}")
    A("s_cbranch_scc1 L_Adone")
    A("s_cbranch_vccnz L_b0r")
    A.label("L_Adone")
    stamp(A, "Adone")

    RB = RA(base)
    In = RB.get(4, 4)
    Fre, Fim, Gre, Gim = RB.get(4, 4), RB.get(4, 4), RB.get(4, 4), RB.get(4, 4)
    twc, tws = RB.get(4, 4), RB.get(4, 4)
    Wre, Wim = RB.get(4, 4), RB.get(4, 4)
    Dre, Dim = RB.get(4, 4), RB.get(4, 4)
    tb = RB.get(4, 2)
    ang = RB.get(4)
    Ld = RB.get(4, 4)
    vul, lbw, lbr, lwr = (RB.get() for _ in range(4))
    WL = SC + 16384
    BL = SC + 32768
    A(f"v_mul_f32 v{t1}, {fhex(1/16)}, v{jf}")
    for q in range(4):
        A(f"v_add_f32 v{t2}, {fhex(float(q))}, v{gf}")
        A(f"v_mul_f32 v{ang+q}, v{t2}, v{t1}")
    for q in range(4):
        A(f"v_cos_f32 v{twc+q}, v{ang+q}")
        A(f"v_sin_f32 v{tws+q}, v{ang+q}")
    for q in range(4):
        A(f"v_cvt_pk_bf16_f32 v{Fre+q}, v{twc+q}, v{tws+q}")
        A(f"v_cvt_pk_bf16_f32 v{Fim+q}, -v{tws+q}, v{twc+q}")
        A(f"v_cvt_pk_bf16_f32 v{Gre+q}, v{twc+q}, -v{tws+q}")
        A(f"v_cvt_pk_bf16_f32 v{Gim+q}, v{tws+q}, v{twc+q}")
    for q in range(4):
        A(f"v_mul_f32 v{ang+q}, {fhex(1/16)}, v{ang+q}")
    for q in range(4):
        A(f"v_cos_f32 v{twc+q}, v{ang+q}")
        A(f"v_sin_f32 v{tws+q}, v{ang+q}")
    for i in range(4):
        A(f"v_mov_b32 v{Wre+i}, 0")
        A(f"v_mov_b32 v{Wim+i}, 0")
    A(f"v_lshrrev_b32 v{t1}, 1, v0")
    A(f"v_and_b32 v{t2}, 1, v0")
    A(f"v_lshlrev_b32 v{vul}, 13, v{t1}")
    A(f"v_lshl_add_u32 v{vul}, v{t2}, 4, v{vul}")
    A(f"s_lshl_b32 s23, s{sX}, 10")
    A(f"s_lshl_b32 s60, s{sY}, 5")
    A("s_add_u32 s23, s23, s60")
    A(f"v_and_b32 v{lbw}, 0xc0, v{t1}")
    A(f"v_and_b32 v{t3}, 15, v{t1}")
    A(f"v_lshl_add_u32 v{lbw}, v{t3}, 2, v{lbw}")
    A(f"v_bfe_u32 v{t3}, v{t1}, 4, 2")
    A(f"v_add_u32 v{lbw}, v{lbw}, v{t3}")
    A(f"v_lshl_add_u32 v{lbw}, v{t2}, 10, v{lbw}")
    A(f"v_lshlrev_b32 v{lbw}, 2, v{lbw}")
    A(f"v_add_u32 v{lbw}, {BL}, v{lbw}")
    A(f"v_add_u32 v{lbr}, {BL}, v{voV}")
    A(f"v_lshl_add_u32 v{lwr}, v{g}, 6, v{j}")
    A(f"v_lshlrev_b32 v{lwr}, 4, v{lwr}")
    A(f"s_lshl_b32 s60, s{sW}, 1")
    A(f"s_add_u32 s60, s60, {WL}")
    A(f"v_add_u32 v{lwr}, s60, v{lwr}")
    A(f"v_add_u32 v{t1}, {WL}, v{voV}")
    A("s_waitcnt vmcnt(0)")
    V.q = []
    A(f"s_cmp_lg_u32 s{sY}, 0")
    A("s_cbranch_scc1 L_nonyq2")
    A("s_mov_b32 s60, 0xffff0000")
    A(f"v_and_or_b32 v{Wraw}, v{Wraw}, s60, v{Wraw+4}")
    A.label("L_nonyq2")
    A(f"ds_write_b128 v{t1}, {vr(Wraw,4)}")
    stamp(A, "b0ld")
    A("s_waitcnt lgkmcnt(0)")
    A("s_barrier")
    stamp(A, "b0ok")
    ld = f"buffer_load_dwordx4 {vr(Ld,4)}, v{vul}, {S(WS)}, s23 offen sc1"
    V.do("u", ld)
    for r in range(4):
        A(f"ds_read_u16_d16_hi v{Wre+r}, v{lwr} offset:{256*r}")
        A(f"ds_read_u16_d16_hi v{Wim+r}, v{lwr} offset:{4096+256*r}")
    stamp(A, "Upre")
    V.wait("u")
    stamp(A, "Ufirst")
    RT.check("pu", rng(Ld, 4), t0, [ld])
    stamp(A, "Urdy")
    A(f"ds_write2st64_b32 v{lbw}, v{Ld}, v{Ld+1} offset0:0 offset1:4")
    A(f"ds_write2st64_b32 v{lbw}, v{Ld+2}, v{Ld+3} offset0:8 offset1:12")
    A("s_waitcnt lgkmcnt(0)")
    A("s_barrier")
    A(f"ds_read_b128 {vr(In,4)}, v{lbr}")
    V.do("w0", dma_w(0))
    A(f"s_or_b32 s60, s2, s{sW}")
    A("s_cmp_lg_u32 s60, 0")
    A("s_cbranch_scc1 L_notag")
    A(f"v_mov_b32 v{t1}, s{sT}")
    A(f"v_lshlrev_b32 v{t2}, 24, v{lane}")
    A(f"s_mov_b32 s60, {OFF_TAG}")
    A(f"buffer_store_dword v{t1}, v{t2}, {S(WS)}, s60 offen sc1")
    A.label("L_notag")
    A("s_waitcnt lgkmcnt(0)")
    A(f"{MF32} {vr(Dre,4)}, {vr(In,4)}, {vr(Fre,4)}, 0")
    A(f"{MF32} {vr(Dim,4)}, {vr(In,4)}, {vr(Fim,4)}, 0")
    emit(A, cmul4_l(In, Dre, Dim, twc, tws, tb, True))
    A(f"{MF32} {vr(Dre,4)}, {vr(Fre,4)}, {vr(In,4)}, 0")
    A(f"{MF32} {vr(Dim,4)}, {vr(Fim,4)}, {vr(In,4)}, 0")
    emit(A, cmul4_l(In, Dre, Dim, Wre, Wim, tb, False))
    A(f"{MF32} {vr(Dre,4)}, {vr(In,4)}, {vr(Gre,4)}, 0")
    A(f"{MF32} {vr(Dim,4)}, {vr(In,4)}, {vr(Gim,4)}, 0")
    emit(A, cmul4_l(In, Dre, Dim, twc, tws, tb, False))
    A(f"{MF32} {vr(Dre,4)}, {vr(Gre,4)}, {vr(In,4)}, 0")
    A(f"{MF32} {vr(Dim,4)}, {vr(Gim,4)}, {vr(In,4)}, 0")
    for r in range(4):
        A(f"v_cvt_pk_bf16_f32 v{In+r}, v{Dre+r}, v{Dim+r}")
    for r in range(4):
        A(f"v_min_u32 v{In+r}, -2, v{In+r}")
    A(f"ds_write_b128 v{lbr}, {vr(In,4)}")
    stamp(A, "Bfft")
    V.wait("lnclr", "lgkmcnt(0)")
    A("s_barrier")
    A(f"ds_read2st64_b32 {vr(Ld,2)}, v{lbw} offset0:0 offset1:4")
    A(f"ds_read2st64_b32 {vr(Ld+2,2)}, v{lbw} offset0:8 offset1:12")
    A("s_lshl_b32 s60, s2, 13")
    A(f"s_add_u32 s60, s60, {OFF_V}")
    A("s_waitcnt lgkmcnt(0)")
    V.do("vst", f"buffer_store_dwordx4 {vr(Ld,4)}, v{voV}, {S(WS)}, s60 offen sc1")
    stamp(A, "Bdone")

    RC = RA(base)
    B2 = [[RC.get(4, 4), RC.get(4, 4)], [RC.get(4, 4), RC.get(4, 4)]]
    twc, tws = RC.get(8, 4), RC.get(8, 4)
    ang = RC.get(8, 4)
    P = [RC.get(4, 4), RC.get(4, 4)]
    RC.n = max(RC.n, RB.hi)
    L = RC.get(4, 4)
    xf = RC.get(8, 4)
    tl = RC.get(8, 2)
    R8 = RC.get(2, 2)
    B1re, B1im = RC.get(2, 2), RC.get(2, 2)
    Dre = [RC.get(4, 4), RC.get(4, 4)]
    Dim = [RC.get(4, 4), RC.get(4, 4)]
    Y = [RC.get(4, 4), RC.get(4, 4)]
    vvl, lcw, lcr, lnw, lhw, dummy = (RC.get() for _ in range(6))
    A(f"v_lshrrev_b32 v{t2}, 1, v{j}")
    A(f"v_cvt_f32_u32 v{t2}, v{t2}")
    A(f"v_and_b32 v{t3}, 1, v{j}")
    A(f"v_cvt_f32_u32 v{t3}, v{t3}")
    A(f"v_mul_f32 v{t3}, {fhex(-0.25)}, v{t3}")
    A(f"v_cvt_f32_u32 v{t0}, s{sLO}")
    A(f"v_fmamk_f32 v{t0}, v{t2}, {fhex(256.0)}, v{t0}")
    A(f"v_mul_f32 v{t0}, {fhex(1/2048)}, v{t0}")
    A(f"v_mul_f32 v{t1}, 0.5, v{gf}")
    A(f"v_fma_f32 v{ang}, v{t1}, v{t0}, v{t3}")
    A(f"v_add_f32 v{ang+1}, v{ang}, v{t0}")
    A(f"v_mul_f32 v{t0}, {fhex(1/16)}, v{jf}")
    A(f"v_mul_f32 v{ang+2}, v{t1}, v{t0}")
    A(f"v_add_f32 v{ang+3}, v{ang+2}, v{t0}")
    A(f"v_mul_f32 v{t0}, {fhex(1/32)}, v{jf}")
    for r in range(4):
        A(f"v_add_f32 v{t2}, {fhex(float(r))}, v{gf}")
        A(f"v_mul_f32 v{ang+4+r}, v{t2}, v{t0}")
    for e in range(8):
        A(f"v_cos_f32 v{twc+e}, v{ang+e}")
        A(f"v_sin_f32 v{tws+e}, v{ang+e}")
    A(f"v_lshlrev_b32 v{vvl}, 14, v{g}")
    A(f"v_lshrrev_b32 v{t1}, 2, v{j}")
    A(f"v_lshl_add_u32 v{vvl}, v{t1}, 16, v{vvl}")
    A(f"v_and_b32 v{t1}, 3, v{j}")
    A(f"v_lshl_add_u32 v{vvl}, v{t1}, 3, v{vvl}")
    A(f"s_lshl_b32 s23, s{sW}, 18")
    A(f"s_lshl_b32 s60, s{sLO}, 5")
    A("s_add_u32 s23, s23, s60")
    A(f"s_add_u32 s23, s23, {OFF_V}")
    A("s_add_u32 s25, s23, 8192")
    for p in range(2):
        A(f"v_cvt_pk_bf16_f32 v{R8+p}, v{twc+p}, -v{tws+p}")
        A(f"v_cvt_pk_bf16_f32 v{B1re+p}, v{twc+2+p}, -v{tws+2+p}")
        A(f"v_cvt_pk_bf16_f32 v{B1im+p}, v{tws+2+p}, v{twc+2+p}")
    for r in range(4):
        A(f"v_cvt_pk_bf16_f32 v{B2[0][0]+r}, v{twc+4+r}, -v{tws+4+r}")
    A(f"v_and_b32 v{t3}, 1, v{j}")
    A(f"v_mul_u32_u24 v{t3}, 0x8000, v{t3}")
    A(f"v_lshl_or_b32 v{t3}, v{t3}, 16, v{t3}")
    for r in range(4):
        A(f"v_xor_b32 v{B2[1][0]+r}, v{t3}, v{B2[0][0]+r}")
    for t in range(2):
        for r in range(4):
            if r % 2:
                A(f"v_xor_b32 v{B2[t][1]+r}, 0x80008000, v{B2[t][0]+r}")
            else:
                A(f"v_mov_b32 v{B2[t][1]+r}, v{B2[t][0]+r}")
    V.wait("vst")
    stamp(A, "Vdrain")
    lds_ = [f"buffer_load_dwordx2 {vr(L+2*p,2)}, v{vvl}, {S(WS)}, s{23+2*p} offen sc1" for p in range(2)]
    V.do("v", lds_)
    A(f"v_mul_f32 v{t0}, {fhex(1/512)}, v{jf}")
    for t in range(2):
        for r in range(4):
            A(f"v_add_f32 v{t2}, {fhex(float(16*t+r))}, v{gf}")
            A(f"v_mul_f32 v{ang+4*t+r}, v{t2}, v{t0}")
    for e in range(8):
        A(f"v_cos_f32 v{twc+e}, v{ang+e}")
        A(f"v_sin_f32 v{tws+e}, v{ang+e}")
    A(f"v_mov_b32 v{t2}, {fhex(2.0**-19)}")
    for e in range(4):
        A(f"v_pk_mul_f32 {p2(twc+2*e)}, {p2(twc+2*e)}, {p2(t2)} op_sel_hi:[1,0]")
        A(f"v_pk_mul_f32 {p2(tws+2*e)}, {p2(tws+2*e)}, {p2(t2)} op_sel_hi:[1,0]")
    LNL, HL = SC + 8192, SC + 16384
    A(f"v_lshlrev_b32 v{lcw}, 11, v{g}")
    A(f"v_lshl_add_u32 v{lcw}, v{j}, 3, v{lcw}")
    A(f"s_lshl_b32 s60, s{sW}, 7")
    A(f"s_add_u32 s60, s60, {SC}")
    A(f"v_add_u32 v{lcw}, s60, v{lcw}")
    A(f"v_lshlrev_b32 v{lcr}, 8, v{g}")
    A(f"v_lshl_add_u32 v{lcr}, v{j}, 2, v{lcr}")
    A(f"s_lshl_b32 s60, s{sW}, 10")
    A(f"s_add_u32 s60, s60, {SC}")
    A(f"v_add_u32 v{lcr}, s60, v{lcr}")
    A(f"v_lshlrev_b32 v{lhw}, 5, v{j}")
    A(f"v_lshl_add_u32 v{lhw}, v{g}, 3, v{lhw}")
    A(f"v_add_u32 v{lhw}, s60, v{lhw}")
    A(f"v_lshlrev_b32 v{lnw}, 8, v{j}")
    A(f"v_lshrrev_b32 v{t1}, 1, v{g}")
    A(f"v_lshl_add_u32 v{lnw}, v{t1}, 7, v{lnw}")
    A(f"v_and_b32 v{t1}, 1, v{g}")
    A(f"v_lshl_add_u32 v{lnw}, v{t1}, 3, v{lnw}")
    A(f"s_lshl_b32 s60, s{sW}, 4")
    A(f"s_add_u32 s60, s60, {SC}")
    A(f"v_add_u32 v{lnw}, s60, v{lnw}")
    emit(A, unpack_l(xf, xC))
    stamp(A, "Vpre")
    V.wait("v")
    stamp(A, "Vfirst")
    RT.check("pv", rng(L, 4), t0, lds_)
    stamp(A, "Vrdy")
    A(f"v_swap_b32 v{L+1}, v{L+2}")
    for u in range(2):
        A(f"{MF16} {vr(Y[u],4)}, {vr(R8,2)}, {vr(L+2*u,2)}, 0")
    for p in range(2):
        for u in range(2):
            A(f"v_cvt_pk_bf16_f32 v{P[0]+2*p+u}, v{Y[u]+2*p}, v{Y[u]+2*p+1}")
        A(f"ds_write_b64 v{lcw}, {vr(P[0]+2*p,2)} offset:{1024*p}")
    A(f"v_cmp_ne_u32 vcc, 0, v{lane}")
    A(f"v_mov_b32 v{t2}, {fhex(2.0**-20)}")
    A("s_waitcnt lgkmcnt(0)")
    A("s_barrier")
    for t in (1, 0):
        A(f"ds_read2_b32 {vr(L+2*t,2)}, v{lcr} offset0:{16*t} offset1:{16*t+32}")
    V.do("w1", dma_w(1))
    A("s_waitcnt lgkmcnt(1)")
    A(f"{MF16} {vr(Dre[1],4)}, {vr(L+2,2)}, {vr(B1re,2)}, 0")
    A(f"{MF16} {vr(Dim[1],4)}, {vr(L+2,2)}, {vr(B1im,2)}, 0")
    A("s_waitcnt lgkmcnt(0)")
    A(f"v_readlane_b32 s24, v{L}, 0")
    A(f"v_cndmask_b32 v{L}, 0, v{L}, vcc")
    A("s_lshl_b32 s24, s24, 16")
    A(f"{MF16} {vr(Dre[0],4)}, {vr(L,2)}, {vr(B1re,2)}, 0")
    A(f"{MF16} {vr(Dim[0],4)}, {vr(L,2)}, {vr(B1im,2)}, 0")
    A(f"v_mul_f32 v{Y[0]}, s24, v{t2}")
    A(f"v_sub_f32 v{Y[0]+1}, 0, v{Y[0]}")
    A(f"v_pk_mov_b32 {p2(Y[0]+2)}, {p2(Y[0])}, {p2(Y[0])} op_sel:[0,1]")
    A(f"v_pk_mov_b32 {p2(Y[1])}, {p2(Y[0])}, {p2(Y[0])} op_sel:[0,1]")
    A(f"v_pk_mov_b32 {p2(Y[1]+2)}, {p2(Y[0])}, {p2(Y[0])} op_sel:[0,1]")
    for t in (1, 0):
        emit(A, cmul4_l(P[t], Dre[t], Dim[t], twc + 4 * t, tws + 4 * t, tl + 4 * t, False))
        for u in range(2):
            A(f"{MF32} {vr(Y[u],4)}, {vr(P[t],4)}, {vr(B2[t][u],4)}, {vr(Y[u],4)}")
        if t == 1:
            V.do("w2", dma_w(2))
    if "now" not in OPT:
        V.do("w3", dma_w(3))
    yb, hb, yf = P[0], P[1], Dre[0]
    assert Dre[1] == Dre[0] + 4
    for u in range(2):
        for q in range(2):
            A(f"v_cvt_pk_bf16_f32 v{yb+2*u+q}, v{Y[u]+2*q}, v{Y[u]+2*q+1}")
    emit(A, unpack_l(yf, yb))
    for i in range(4):
        A(f"v_pk_add_f32 {p2(xf+2*i)}, {p2(xf+2*i)}, {p2(yf+2*i)}")
    for i in range(4):
        A(f"v_cvt_pk_bf16_f32 v{hb+i}, v{xf+2*i}, v{xf+2*i+1}")
    emit(A, unpack_l(xf, hb))
    side = [f"ds_write_b64 v{lhw}, {vr(hb+2*u,2)} offset:{16384+512*u}" for u in range(2)]
    if "now" not in OPT:
        side += V.issue("w4", dma_w(4))
    interleave(A, ln_l(xf, tl, 24, yb, c512), side, start=4)
    for u in range(2):
        A(f"ds_write_b64 v{lnw}, {vr(yb+2*u,2)} offset:{8192+4096*u}")
    A(f"v_add_u32 v{t1}, {SC}, v{voV}")
    A(f"s_lshl_b32 s60, s{sLO}, 13")
    A(f"s_add_u32 s60, s60, {OFF_H}")
    V.wait("hclr", "lgkmcnt(0)")
    A("s_barrier")
    A(f"ds_read_b128 {vr(Dre[0],4)}, v{t1} offset:8192")
    A(f"ds_read_b128 {vr(Dre[1],4)}, v{t1} offset:16384")
    A("s_waitcnt lgkmcnt(1)")
    V.do("lnst", f"buffer_store_dwordx4 {vr(Dre[0],4)}, v{vln}, {S(WS)}, s{sLNB} offen sc1")
    A("s_waitcnt lgkmcnt(0)")
    V.do("hst", f"buffer_store_dwordx4 {vr(Dre[1],4)}, v{voV}, {S(WS)}, s60 offen sc1")
    stamp(A, "Cdone")

    RD = RA(base)
    rw = RD.get(3)
    l16b, vtmp = RD.get(), RD.get()
    Fw = [RD.get(24, 4), RD.get(24, 4)]
    acc = RD.get(48, 4)
    X = RD.get(128, 4)
    assert RD.hi <= 256, RD.hi
    sTM, sN0, sROTE, sG, sACT = 23, 25, 26, 27, 21
    A(f"s_lshl_b32 s{sTM}, s{sX}, 2")
    A(f"s_and_b32 s60, s{sY}, 3")
    A(f"s_add_u32 s{sTM}, s{sTM}, s60")
    A(f"s_lshr_b32 s{sN0}, s{sY}, 2")
    A("s_mul_i32 s60, s60, 3")
    A(f"s_add_u32 s{sROTE}, s60, s{sN0}")
    A(f"s_cmp_ge_u32 s{sROTE}, 11")
    A("s_cselect_b32 s60, 11, 0")
    A(f"s_sub_u32 s{sROTE}, s{sROTE}, s60")
    A(f"s_lshl_b32 s{sN0}, s{sN0}, 7")
    A(f"v_lshrrev_b32 v{t1}, 3, v{lane}")
    A(f"v_lshlrev_b32 v{vwd}, 10, v{t1}")
    A(f"v_and_b32 v{t1}, 6, v{t1}")
    A(f"v_and_b32 v{t2}, 7, v{lane}")
    A(f"v_xor_b32 v{t1}, v{t1}, v{t2}")
    A(f"v_lshl_add_u32 v{vwd}, v{t1}, 4, v{vwd}")
    A(f"s_and_b32 s60, s{sW}, 3")
    A("s_lshl_b32 s61, s60, 15")
    A(f"s_add_u32 s61, s61, s{sN0}")
    A(f"v_add_u32 v{vwd}, s61, v{vwd}")
    A(f"s_lshr_b32 s61, s{sW}, 2")
    A("s_lshl_b32 s29, s61, 14")
    A("s_lshl_b32 s61, s61, 11")
    A(f"s_mul_i32 s{sG}, s60, 12288")
    A(f"s_add_u32 s{sG}, s{sG}, s61")
    A("s_lshl_b32 s28, s60, 12")
    A("s_add_u32 s28, s28, s61")
    A(f"s_add_u32 s28, s28, {6*SLOT}")
    A("s_add_u32 s30, s29, 8192")

    def idx_of(i, sd):
        return [f"s_add_u32 s{sd}, s{sROTE}, {i}", f"s_cmp_ge_u32 s{sd}, 11", "s_cselect_b32 s62, 11, 0",
                f"s_sub_u32 s{sd}, s{sd}, s62"]

    GB = {1: 49152, 2: 98304, 3: 0}

    def dma_d(i):
        pre = idx_of(i, 22) + ["s_lshl_b32 s22, s22, 17", f"v_add_u32 v{vtmp}, s22, v{vwd}"]
        if i == 0:
            m = lambda n: f"s_add_u32 m0, s28, {1024*n}"
        else:
            grp = (i - 1) // 3 + 1
            m = lambda n: f"s_add_u32 m0, s{sG}, {GB[grp] + ((i-1)%3)*4096 + 1024*n}"
        return [pre + [m(0), f"buffer_load_dwordx4 v{vtmp}, {S(SWD)}, s29 offen lds"],
                [m(1), f"buffer_load_dwordx4 v{vtmp}, {S(SWD)}, s30 offen lds"]]

    A(f"v_lshrrev_b32 v{t0}, 1, v{g}")
    A(f"v_lshlrev_b32 v{t0}, 10, v{t0}")
    A(f"v_and_b32 v{t1}, 1, v{g}")
    A(f"v_mul_u32_u24 v{t1}, {512+32}, v{t1}")
    A(f"v_add_u32 v{t0}, v{t0}, v{t1}")
    A(f"v_lshrrev_b32 v{t1}, 2, v{j}")
    A(f"v_lshl_add_u32 v{t0}, v{t1}, 6, v{t0}")
    A(f"v_and_b32 v{t1}, 3, v{j}")
    A(f"v_lshl_add_u32 v{t0}, v{t1}, 3, v{t0}")
    A(f"s_and_b32 s60, s{sW}, 1")
    A("s_mul_i32 s60, s60, 3")
    for c in range(3):
        A(f"s_add_u32 s61, s60, {c}")
        A("s_and_b32 s62, s61, 1")
        A("s_lshl_b32 s62, s62, 5")
        A("s_lshr_b32 s61, s61, 1")
        A("s_lshl_b32 s61, s61, 12")
        A(f"v_xor_b32 v{t1}, s62, v{t0}")
        A(f"v_add_u32 v{rw+c}, s61, v{t1}")
    A(f"v_add_u32 v{l16b}, 16384, v{l16}")
    A(f"s_lshl_b32 s{sACT}, s{sRT}, 3")
    A(f"s_and_b32 s60, s{sW}, 6")
    A(f"s_add_u32 s{sACT}, s{sACT}, s60")
    A(f"s_lshl_b32 s{sACT}, s{sACT}, 14")
    A(f"s_add_u32 s{sACT}, s{sACT}, {OFF_LN}")

    def act(p):
        pre = [f"s_add_u32 s31, s{sROT}, {p}", "s_and_b32 s31, s31, 7", "s_lshl_b32 s31, s31, 11",
               f"s_add_u32 s31, s31, s{sACT}"]
        o = []
        for ks in range(2):
            for m in range(2):
                ins = f"buffer_load_dwordx4 {vr(X+16*p+8*ks+4*m,4)}, v{l16b if m else l16}, {S(WS)}, s31 offen offset:{1024*ks} sc1"
                o.append(pre + [ins] if not o else [ins])
        return o

    def wreads(p, ks, buf):
        slot = p if p < 6 else p - 6
        o = []
        if "nolds" in OPT:
            return o
        for c in range(3):
            for mat in range(2):
                for e4 in range(2):
                    off = (slot % 2) * SLOT + mat * 12288 + ks * 2048 + e4 * 256
                    o.append(f"ds_read_b64_tr_b16 {vr(Fw[buf]+(mat*3+c)*4+2*e4,2)}, v{rw+c} offset:{off}")
        return o

    def mfmas(p, ks, buf):
        o = []
        for c in range(3):
            for mat in range(2):
                for m in range(2):
                    a = acc + ((mat * 3 + c) * 2 + m) * 4
                    cc = "0" if (p == 0 and ks == 0) else vr(a, 4)
                    o.append(f"{MF32} {vr(a,4)}, {vr(Fw[buf]+(mat*3+c)*4,4)}, {vr(X+16*p+8*ks+4*m,4)}, {cc}")
        return o

    def publish_and_wait(tag, soff, spoll):
        A("s_waitcnt vmcnt(0)")
        V.q = []
        A("s_barrier")
        stamp(A, tag + "drain")
        A(f"s_cmp_lg_u32 s{sW}, 0")
        A(f"s_cbranch_scc1 L{tag}_w")
        A(f"v_mov_b32 v{t2}, s{sT}")
        A(f"v_lshlrev_b32 v{t3}, 24, v{lane}")
        A(f"buffer_store_dword v{t2}, v{t3}, {S(WS)}, s{soff} offen sc1")
        A(f"v_and_b32 v{t3}, 0xf0, v{l16}")
        A("s_mov_b32 s63, 0")
        A.label(f"L{tag}_r")
        A(f"buffer_load_dword v{t2}, v{t3}, {S(WS)}, s{spoll} offen sc1")
        A("s_waitcnt vmcnt(0)")
        A(f"v_cmp_ne_u32 vcc, s{sT}, v{t2}")
        A("s_add_u32 s63, s63, 1")
        A(f"s_cmp_gt_u32 s63, {SPIN}")
        A(f"s_cbranch_scc1 L{tag}_w")
        A(f"s_cbranch_vccnz L{tag}_r")
        A.label(f"L{tag}_w")

    A(f"s_lshl_b32 s60, s{sLO}, 4")
    A(f"s_add_u32 s60, s60, {OFF_FC}")
    A(f"s_lshl_b32 s61, s{sRT}, 8")
    A(f"s_add_u32 s61, s61, {OFF_FC}")
    publish_and_wait("C", 60, 61)
    emit(A, wreads(0, 0, 0))
    A("s_barrier")
    stamp(A, "Cflag")
    pairs = lambda l: [l[i:i + 2] for i in range(0, len(l), 2)]
    plan = {
        (0, 0): [("a2", act(2))], (0, 1): [("a3", act(3))],
        (1, 0): [("w5", dma_w(5))], (1, 1): [("a4", act(4))],
        (2, 0): [("w6", dma_w(6))], (2, 1): [("a5", act(5))],
        (3, 0): [("w7", dma_w(7))], (3, 1): [("a6", act(6))],
        (4, 0): [("a7", act(7))], (4, 1): [("d0", dma_d(0)), ("d1", dma_d(1))],
        (5, 0): [("d2", dma_d(2)), ("d3", dma_d(3))],
        (6, 0): [("d4", dma_d(4))], (6, 1): [("d5", dma_d(5))],
        (7, 0): [("d6", dma_d(6))], (7, 1): [("d7", dma_d(7))],
    }

    def extra(p, h):
        o = []
        for tag, ins in plan.get((p, h), []):
            if ("noact" in OPT and tag[0] == "a") or ("nodma" in OPT and tag[0] in "wd"):
                continue
            o += V.issue(tag, ins)
        return o
    V.do("a0", act(0))
    V.do("a1", act(1))
    for p in range(8):
        V.wait(f"a{p}")
        stamp(A, f"a{p}")
        A("s_waitcnt lgkmcnt(0)")
        interleave(A, mfmas(p, 0, 0), pairs(wreads(p, 1, 1)) + extra(p, 0))
        A("s_waitcnt lgkmcnt(0)")
        if p % 2 == 1:
            if p == 3:
                V.wait("w5")
            if p == 5:
                V.wait("w7")
            A("s_barrier")
            if p < 7:
                d = 2 * SLOT if p < 5 else -4 * SLOT
                for c in range(3):
                    A(f"v_add_u32 v{rw+c}, {d & 0xffffffff:#x}, v{rw+c}")
        interleave(A, mfmas(p, 1, 1), (pairs(wreads(p + 1, 0, 0)) if p < 7 else []) + extra(p, 1))
    stamp(A, "Dmain")
    A(f"s_mov_b32 s60, {fhex(K1)}")
    A(f"v_mov_b32 v{t2}, {fhex(K0)}")
    q = X
    for c in range(3):
        gA = acc + c * 8
        uA = acc + (3 + c) * 8
        if c < 2:
            V.do(f"d{8+c}", dma_d(8 + c))
        for i in range(4):
            A(f"v_pk_mul_f32 {p2(q+2*i)}, {p2(gA+2*i)}, {p2(gA+2*i)}")
        for i in range(4):
            A(f"v_pk_fma_f32 {p2(q+2*i)}, {p2(q+2*i)}, s[60:61], {p2(t2)} op_sel_hi:[1,0,0]")
        for i in range(4):
            A(f"v_pk_mul_f32 {p2(q+2*i)}, {p2(q+2*i)}, {p2(gA+2*i)}")
        for i in range(4):
            A(f"v_exp_f32 v{q+2*i}, v{q+2*i}")
            A(f"v_exp_f32 v{q+2*i+1}, v{q+2*i+1}")
            A(f"v_pk_mul_f32 {p2(uA+2*i)}, {p2(uA+2*i)}, {p2(gA+2*i)}")
        for i in range(4):
            A(f"v_pk_add_f32 {p2(q+2*i)}, {p2(q+2*i)}, 1.0 op_sel_hi:[1,0]")
        for i in range(8):
            A(f"v_rcp_f32 v{q+i}, v{q+i}")
        if c:
            A(f"v_add_u32 v{voHH}, 65536, v{voHH}")
        for i in range(4):
            A(f"v_pk_mul_f32 {p2(q+2*i)}, {p2(q+2*i)}, {p2(uA+2*i)}")
        for i in range(4):
            A(f"v_cvt_pk_bf16_f32 v{gA+i}, v{q+2*i}, v{q+2*i+1}")
        V.do("hhst", f"buffer_store_dwordx4 {vr(gA,4)}, v{voHH}, {S(SHH)}, 0 offen sc1")
    stamp(A, "Depi")
    A(f"s_lshl_b32 s24, s{sRT}, 4")
    A(f"s_add_u32 s24, s24, s{sFT}")
    A("s_lshl_b32 s24, s24, 4")
    A(f"s_add_u32 s24, s24, {OFF_FD}")

    RE = RA(base)
    rd = RE.get(4)
    assert vtmp >= rd + 4
    RE.n = vtmp + 1
    vh, vo, vhr, lrw = (RE.get() for _ in range(4))
    hres = RE.get(4, 4)
    Fd = [RE.get(16, 4), RE.get(16, 4)]
    RE.n = max(RE.n, acc + 48)
    ea = RE.get(32, 4)
    Hf = RE.get(88, 4)
    assert RE.hi <= 256
    A(f"s_and_b32 s60, s{sW}, 3")
    A("s_lshl_b32 s61, s60, 17")
    A(f"v_add_u32 v{vh}, s61, v{l16}")
    A(f"s_lshr_b32 s61, s{sW}, 2")
    A(f"s_lshl_b32 s16, s{sTM}, 1")
    A("s_add_u32 s16, s16, s61")
    A("s_lshl_b32 s18, s16, 5")
    A("s_lshl_b32 s16, s16, 10")
    A("s_add_u32 s17, s16, 65536")
    A(f"v_lshrrev_b32 v{t1}, 2, v{j}")
    A(f"v_lshl_add_u32 v{t1}, v{g}, 2, v{t1}")
    A(f"v_bfe_u32 v{t2}, v{t1}, 1, 2")
    A(f"v_lshlrev_b32 v{t1}, 7, v{t1}")
    A(f"v_lshl_add_u32 v{t1}, v{t2}, 5, v{t1}")
    A(f"v_and_b32 v{t2}, 3, v{j}")
    A(f"v_lshl_add_u32 v{t1}, v{t2}, 3, v{t1}")
    A("s_lshl_b32 s19, s60, 12")
    A(f"s_add_u32 s19, s19, {6*SLOT}")
    A("s_mul_i32 s20, s60, 12288")
    A(f"s_add_u32 s20, s20, {GB[1]}")
    A("s_sub_u32 s20, s20, s19")
    for c in range(4):
        A(f"v_xor_b32 v{rd+c}, {32*c}, v{t1}")
        A(f"v_add_u32 v{rd+c}, s19, v{rd+c}")
    A(f"v_and_b32 v{t1}, 1, v{g}")
    A(f"v_lshlrev_b32 v{t1}, 5, v{t1}")
    A(f"v_lshrrev_b32 v{t2}, 1, v{g}")
    A(f"v_lshl_add_u32 v{t1}, v{t2}, 4, v{t1}")
    A(f"v_lshl_add_u32 v{vhr}, v{j}, 10, v{t1}")
    A(f"v_and_b32 v{t2}, 7, v{j}")
    A(f"v_lshl_add_u32 v{vo}, v{t2}, 18, v{t1}")
    A(f"v_lshrrev_b32 v{t2}, 3, v{j}")
    A(f"v_lshl_add_u32 v{vo}, v{t2}, 10, v{vo}")
    A("s_lshr_b32 s61, s60, 1")
    A("s_lshl_b32 s61, s61, 4")
    A("s_add_u32 s18, s18, s61")
    A("s_and_b32 s61, s60, 1")
    A("s_lshl_b32 s61, s61, 6")
    A(f"s_add_u32 s61, s61, s{sN0}")
    A("s_lshl_b32 s21, s18, 10")
    A("s_add_u32 s21, s21, s61")
    A(f"s_add_u32 s21, s21, {OFF_H}")
    A("s_lshl_b32 s18, s18, 7")
    A("s_add_u32 s18, s18, s61")

    def hload(i):
        pre = idx_of(i, 31) + ["s_lshl_b32 s31, s31, 19", f"v_add_u32 v{t3}, s31, v{vh}"]
        return [pre + [f"buffer_load_dwordx4 {vr(Hf+8*i,4)}, v{t3}, {S(SHH)}, s16 offen sc1"],
                [f"buffer_load_dwordx4 {vr(Hf+8*i+4,4)}, v{t3}, {S(SHH)}, s17 offen sc1"]]

    def dreads(i, buf):
        off = 0 if i in (0, 10) else ((i - 1) % 3) * 4096
        return [f"ds_read_b64_tr_b16 {vr(Fd[buf]+4*c+2*e4,2)}, v{rd+c} offset:{off + 2048*e4}"
                for c in range(4) for e4 in range(2)]

    hl = f"buffer_load_dwordx4 {vr(hres,4)}, v{vhr}, {S(WS)}, s21 offen sc1"
    A(f"s_lshr_b32 s61, s{sTM}, 1")
    A("s_lshl_b32 s61, s61, 8")
    A(f"s_add_u32 s61, s61, {OFF_FD}")
    publish_and_wait("E", 24, 61)
    emit(A, dreads(0, 0))
    A("s_barrier")
    stamp(A, "Eflag")
    EA = int(os.environ.get("EA", "4"))
    for i in range(EA):
        V.do(f"h{i}", hload(i))
    for i in range(11):
        nxt = i + 1
        if nxt in (1, 4, 7, 10):
            for c in range(4):
                if nxt == 1:
                    A(f"v_add_u32 v{rd+c}, s20, v{rd+c}")
                elif nxt == 4:
                    A(f"v_add_u32 v{rd+c}, {GB[2]-GB[1]}, v{rd+c}")
                elif nxt == 7:
                    A(f"v_subrev_u32 v{rd+c}, {GB[2]-GB[3]}, v{rd+c}")
                else:
                    A(f"v_add_u32 v{rd+c}, {GB[1]}, v{rd+c}")
                    A(f"v_subrev_u32 v{rd+c}, s20, v{rd+c}")
        V.wait(f"h{i}")
        stamp(A, f"e{i}")
        A(f"v_swap_b32 v{Hf+8*i+2}, v{Hf+8*i+4}")
        A(f"v_swap_b32 v{Hf+8*i+3}, v{Hf+8*i+5}")
        A("s_waitcnt lgkmcnt(0)")
        ex = []
        if i == 3:
            A("s_barrier")
            pre = idx_of(10, 22) + ["s_lshl_b32 s22, s22, 17", f"v_add_u32 v{vtmp}, s22, v{vwd}"]
            for n in range(4):
                x = (pre if n == 0 else []) + [f"s_add_u32 m0, s19, {1024*n}", f"s_mov_b32 s22, {8192*n}",
                                               f"buffer_load_dwordx4 v{vtmp}, {S(SWD)}, s22 offen lds"]
                ex.append(V.issue("d10", x))
        if i + EA < 11:
            ex += V.issue(f"h{i+EA}", hload(i + EA))
        if i == 7:
            ex += [V.issue("hres", hl)]
        if i == 9:
            V.wait("d10")
        side = (pairs(dreads(nxt, nxt % 2)) if nxt < 11 else []) + ex
        mm = []
        for c in range(4):
            for m in range(2):
                a = ea + (m * 4 + c) * 4
                mm.append(f"{MF32} {vr(a,4)}, {vr(Fd[i%2]+4*c,4)}, {vr(Hf+8*i+4*m,4)}, {'0' if i == 0 else vr(a,4)}")
        interleave(A, mm, side)
    stamp(A, "Emain")
    RED = GB[1]
    own = Hf
    hf = Hf + 8
    red = Hf + 16
    A(f"s_lshr_b32 s61, s{sW}, 2")
    A("s_mul_i32 s61, s61, 24576")
    A(f"s_add_u32 s61, s61, {RED}")
    A(f"v_add_u32 v{lrw}, s61, v{l16}")
    V.wait("hres")
    emit(A, unpack_l(hf, hres))
    A(f"s_and_b32 s60, s{sW}, 3")
    for kq in range(4):
        if kq < 3:
            A(f"s_cmp_lg_u32 s60, {kq}")
            A(f"s_cbranch_scc1 L_rv{kq+1}")
        for o in range(4):
            a = ea + ((o // 2) * 4 + 2 * (o % 2)) * 4
            if o == kq:
                for k in range(4):
                    A(f"v_pk_mov_b32 {p2(own+2*k)}, {p2(a+2*k)}, {p2(a+2*k)} op_sel:[0,1]")
            else:
                sl = (kq - o - 1) & 3
                for u in range(2):
                    A(f"ds_write_b128 v{lrw}, {vr(a+4*u,4)} offset:{o*6144 + sl*2048 + u*1024}")
        if kq < 3:
            A("s_branch L_rvd")
            A.label(f"L_rv{kq+1}")
    A.label("L_rvd")
    A("s_mul_i32 s60, s60, 6144")
    A(f"v_add_u32 v{lrw}, s60, v{lrw}")
    A("s_waitcnt lgkmcnt(0)")
    A("s_barrier")
    for k in range(6):
        A(f"ds_read_b128 {vr(red+4*k,4)}, v{lrw} offset:{1024*k}")
    for sl in range(3):
        A(f"s_waitcnt lgkmcnt({2*(2-sl)})")
        for k in range(4):
            A(f"v_pk_add_f32 {p2(own+2*k)}, {p2(own+2*k)}, {p2(red+8*sl+2*k)}")
    o = red
    for k in range(4):
        A(f"v_cvt_pk_bf16_f32 v{o+k}, v{own+2*k}, v{own+2*k+1}")
    A(f"v_permlane16_swap_b32 v{o}, v{o+2}")
    A(f"v_permlane16_swap_b32 v{o+1}, v{o+3}")
    emit(A, unpack_l(own, o))
    for k in range(4):
        A(f"v_pk_add_f32 {p2(own+2*k)}, {p2(own+2*k)}, {p2(hf+2*k)}")
    for k in range(4):
        A(f"v_cvt_pk_bf16_f32 v{o+k}, v{own+2*k}, v{own+2*k+1}")
    A(f"buffer_store_dwordx4 {vr(o,4)}, v{vo}, {S(SOUT)}, s18 offen")
    if os.environ.get("DBGST"):
        A("s_load_dwordx2 s[34:35], s[0:1], 64")
        A("s_waitcnt vmcnt(0) lgkmcnt(0)")
        A("s_memrealtime s[94:95]")
        A("s_memtime s[8:9]")
        A("s_waitcnt lgkmcnt(0)")
        A(f"s_cmp_lg_u32 s2, {os.environ['DBGST']}")
        A("s_cbranch_scc1 L_end")
        A(f"s_cmp_lg_u32 s{sW}, 0")
        A("s_cbranch_scc1 L_end")
        srd(A, 96, 34, 256)
        A(f"v_mov_b32 v{t0}, 0")
        A("s_mov_b64 exec, 1")
        for i in range(16):
            if i == 0:
                A("s_sub_u32 s100, s8, s10")
            else:
                A(f"s_sub_u32 s100, s{64+2*i}, s64")
            A(f"v_mov_b32 v{t1}, s100")
            A(f"buffer_store_dword v{t1}, v{t0}, s[96:99], 0 offen offset:{4*i}")
        A("s_waitcnt vmcnt(0)")
    elif STAMPS:
        A("s_load_dwordx2 s[34:35], s[0:1], 72")
        A("s_waitcnt vmcnt(0) lgkmcnt(0)")
        A("s_memrealtime s[94:95]")
        A("s_waitcnt lgkmcnt(0)")
        srd(A, 96, 34, 16 * MB, 32 * MB)
        A(f"v_and_b32 v{t0}, 0x1c0, v0")
        A("s_lshl_b32 s100, s2, 9")
        A("s_mov_b64 exec, 1")
        for i in range(16):
            A(f"v_mov_b32 v{t1}, s{64+2*i}")
            A(f"buffer_store_dword v{t1}, v{t0}, s[96:99], s100 offen offset:{4*i}")
        A("s_waitcnt vmcnt(0)")
    A.label("L_end")
    A("s_endpgm")
    RT.flush()
    return name, A.finalize(), 256, (256, 512, 163840), 0


def build_q(as_list=False):
    name, body, nv, (gx, bx, lds), ag = gen_Q()
    out = HEADER
    if STAMPS:
        out += "; STAMPSET " + ",".join(STAMPSET) + "\n"
    if as_list:
        out += f"; @launch kernel={name} grid=({gx},1,1) block=({bx},1,1) lds={lds}\n"
    else:
        out += f"; @launch grid=({gx},1,1) block=({bx},1,1) lds={lds}\n"
    out += '.amdgcn_target "amdgcn-amd-amdhsa--gfx950"\n' + body + kernel_desc(name, nv, agprs=ag)
    return out


if __name__ == "__main__":
    path = sys.argv[1] if len(sys.argv) > 1 else f"cdna_kernels/{NAME}.s"
    s = build_q(as_list=len(sys.argv) > 2)
    open(path, "w").write(s)
    print("lines", s.count("\n"))
```

```python
import sys, math, os
sys.path.insert(0, "work")
from asmlib import Asm, fhex
from gen import RA, vr, srd, kernel_header, kernel_desc, NAME, MB, W_BYTES, WG_BYTES, STAMPS
from gen_p import emit, zipl, unpack_l, ln_l, cmul4_l, S, K0, K1, MF32, MF16, HEADER
from gen_q import VM, Retry, maxtree, rng, stamp, STAMPSET, OPT, SPIN

E = os.environ.get
OFF_U, OFF_V, OFF_H, OFF_LN, OFF_HH = 16 * MB, 20 * MB, 4 * MB, 6 * MB, 8 * MB
OFF_TAG = 14 * MB + 8192
OFF_FC = 14 * MB + 65536
TAG_STEP = 0x9E3779B9
HH_BYTES = 86 * 65536
PSL = int(E("PSL", "2"))
RSL = int(E("RSL", "0"))
PRE = [int(x) for x in E("PRE", "0,0,0,0").split(",")]
NT = " nt" if "nt" in OPT else ""
WSOFF = int(E("WSOFF", "0")) * MB
WS, SWI, SX, SWF, SWM, SWD, SOUT, SHH = 4, 8, 36, 40, 44, 48, 52, 56
sT, sW, sX, sY, sLO = 3, 12, 13, 14, 15
sTP, sFT, sROT, sWSRC, sWDST, sLNB = 16, 17, 18, 19, 20, 21
MF3 = "v_mfma_f32_32x32x16_bf16"
UB = 49152 + 128
G0B = 114688
SC = 122880
CNT = 98432
p2 = lambda a: vr(a, 2)


class RetryT(Retry):
    def check_tag(self, tag, tregs, vt, reload):
        self.blocks.append((tag, ("tag", tregs), vt, reload))
        emit(self.A, self.test(("tag", tregs), vt))
        self.A(f"s_cbranch_vccnz L{tag}_r")
        self.A.label(f"L{tag}_ok")

    @staticmethod
    def test(regs, vt):
        if regs[0] == "tag":
            a, b = regs[1]
            return [f"v_cmp_ne_u32 vcc, s{sT}, v{a}", f"v_cmp_ne_u32 s[62:63], s{sT}, v{b}", "s_or_b64 vcc, vcc, s[62:63]"]
        return maxtree(regs, vt)

    def flush(self):
        A = self.A
        for tag, regs, vt, reload in self.blocks:
            A.label(f"L{tag}_r")
            A("s_mov_b32 s35, 0")
            A.label(f"L{tag}_r2")
            A("s_mov_b64 exec, vcc")
            if RSL:
                A(f"s_sleep {RSL}")
            emit(A, reload)
            A("s_waitcnt vmcnt(0)")
            emit(A, self.test(regs, vt))
            A("s_add_u32 s35, s35, 1")
            A(f"s_cmp_gt_u32 s35, {SPIN}")
            A(f"s_cbranch_scc1 L{tag}_x")
            A(f"s_cbranch_vccnz L{tag}_r2")
            A.label(f"L{tag}_x")
            A("s_mov_b64 exec, -1")
            A(f"s_branch L{tag}_ok")


def gen_S():
    A = Asm()
    V = VM(A)
    RT = RetryT(A)
    name = NAME + "_kernel"
    kernel_header(A, name)
    R = RA(1)
    lane, g, j, gf, jf, c512, junk = (R.get() for _ in range(7))
    t0 = R.get(4, 2)
    t1, t2, t3 = t0 + 1, t0 + 2, t0 + 3
    voV, vln, vwd, l16, voHH = (R.get() for _ in range(5))
    vw = R.get(3)
    xC = R.get(4, 4)
    base = R.n
    ones = 252

    def poll_flags(tag, vaddr, soff, first=True):
        A("s_mov_b32 s63, 0")
        if not first:
            A(f"s_branch L_{tag}_c")
        A.label(f"L_{tag}_r")
        A(f"buffer_load_dword v{t2}, v{vaddr}, {S(WS)}, {soff} offen sc1")
        A("s_waitcnt vmcnt(0)")
        A.label(f"L_{tag}_c")
        A(f"v_cmp_ne_u32 vcc, s{sT}, v{t2}")
        A(f"s_cbranch_vccz L_{tag}_x")
        A("s_mov_b64 exec, vcc")
        A("s_add_u32 s63, s63, 1")
        A(f"s_cmp_gt_u32 s63, {SPIN}")
        A(f"s_cbranch_scc1 L_{tag}_x")
        if PSL:
            A(f"s_sleep {PSL}")
        A(f"s_branch L_{tag}_r")
        A.label(f"L_{tag}_x")
        A("s_mov_b64 exec, -1")

    def flag_store(soff):
        return [f"v_mov_b32 v{t2}, s{sT}", f"v_lshlrev_b32 v{t3}, 25, v{lane}",
                f"buffer_store_dword v{t2}, v{t3}, {S(WS)}, {soff} offen sc1"]

    A("s_cmp_ge_u32 s2, 256")
    A("s_cbranch_scc1 L_end")
    stamp(A, "start")
    if E("DBGST"):
        A("s_memtime s[98:99]")
    A(f"s_load_dwordx2 s[{WS}:{WS+1}], s[0:1], 72")
    A(f"s_load_dwordx2 s[{SX}:{SX+1}], s[0:1], 0")
    A(f"v_lshrrev_b32 v{t0}, 6, v0")
    A(f"v_and_b32 v{lane}, 63, v0")
    A(f"v_readfirstlane_b32 s{sW}, v{t0}")
    A(f"s_and_b32 s{sX}, s2, 7")
    A(f"s_lshr_b32 s{sY}, s2, 3")
    A("s_getpc_b64 s[60:61]")
    A.label("L_pc")
    A(f"s_lshl_b32 s62, s{sY}, 3")
    A(f"v_add_lshl_u32 v{t2}, v0, s62, 7")
    A.raw(f"    v_min_u32 v{t2}, L_codeend-L_pc-4, v{t2}")
    A(f"v_mov_b32 v{t3}, s61")
    A(f"v_add_co_u32 v{t2}, vcc, s60, v{t2}")
    A(f"v_addc_co_u32 v{t3}, vcc, 0, v{t3}, vcc")
    A("v_cmp_gt_u32 vcc, 8, v0")
    A("s_and_saveexec_b64 s[62:63], vcc")
    A("s_cbranch_execz L_nocp")
    A(f"global_load_dword v{junk}, {p2(t2)}, off")
    A.label("L_nocp")
    A("s_mov_b64 exec, -1")
    A(f"s_and_b32 s60, s{sW}, 4")
    A("s_lshl_b32 s60, s60, 1")
    A("s_add_u32 s61, s60, 8")
    A("s_add_u32 s62, s60, 32")
    A(f"s_load_dwordx2 s[{SWF}:{SWF+1}], s[0:1], s61")
    A(f"s_load_dwordx2 s[{SWM}:{SWM+1}], s[0:1], s62")
    A(f"s_load_dwordx2 s[{SWD}:{SWD+1}], s[0:1], 48")
    A(f"s_load_dwordx2 s[{SOUT}:{SOUT+1}], s[0:1], 56")
    for d, n in ((WS, 32 * MB), (SX, 2 * MB), (SWF, W_BYTES), (SWM, WG_BYTES), (SWD, WG_BYTES),
                 (SOUT, 2 * MB), (SHH, HH_BYTES)):
        A(f"s_mov_b32 s{d+2}, {n:#x}")
        A(f"s_mov_b32 s{d+3}, 0x20000")
    RA_ = RA(base)
    xr = RA_.get(4, 4)
    xf = RA_.get(8, 4)
    tl = RA_.get(8, 2)
    Bc = [RA_.get(4, 4), RA_.get(4, 4)]
    Bs = [RA_.get(4, 4), RA_.get(4, 4)]
    twc, tws = RA_.get(8, 4), RA_.get(8, 4)
    A2, A2n = RA_.get(4, 4), RA_.get(4, 4)
    R8 = RA_.get(2, 2)
    za = RA_.get(4, 4)
    Dre = [RA_.get(4, 4), RA_.get(4, 4)]
    Dim = [RA_.get(4, 4), RA_.get(4, 4)]
    P = [RA_.get(4, 4), RA_.get(4, 4)]
    Zn = RA_.get(4, 4)
    ang = RA_.get(8, 4)
    vx, voC, voU, vcnt, vone = (RA_.get() for _ in range(5))
    lz, lzr, lw, lru = (RA_.get() for _ in range(4))
    A(f"v_lshrrev_b32 v{g}, 4, v{lane}")
    A(f"v_and_b32 v{j}, 15, v{lane}")
    A(f"s_lshl_b32 s{sLO}, s{sX}, 5")
    A(f"s_add_u32 s{sLO}, s{sLO}, s{sY}")
    A(f"v_lshlrev_b32 v{voV}, 4, v0")
    A(f"v_lshlrev_b32 v{l16}, 4, v{lane}")
    A(f"v_lshlrev_b32 v{vx}, 18, v{t0}")
    A(f"v_and_b32 v{voC}, 1, v{g}")
    A(f"v_lshlrev_b32 v{voC}, 9, v{voC}")
    A(f"v_lshl_add_u32 v{voC}, v{j}, 5, v{voC}")
    A(f"v_lshrrev_b32 v{t1}, 1, v{g}")
    A(f"v_lshl_add_u32 v{voC}, v{t1}, 4, v{voC}")
    A(f"v_add_u32 v{vx}, v{voC}, v{vx}")
    for i in range(4):
        A(f"v_mov_b32 v{ones+i}, -1")
    A(f"v_lshrrev_b32 v{t0}, 3, v0")
    A(f"v_lshlrev_b32 v{vln}, 9, v{t0}")
    A(f"v_and_b32 v{t0}, 7, v0")
    A(f"v_lshl_add_u32 v{vln}, v{t0}, 4, v{vln}")
    A(f"s_lshr_b32 s{sLNB}, s{sLO}, 2")
    A(f"s_lshl_b32 s{sLNB}, s{sLNB}, 15")
    A(f"s_and_b32 s60, s{sLO}, 3")
    A("s_lshl_b32 s60, s60, 7")
    A(f"s_add_u32 s{sLNB}, s{sLNB}, s60")
    A(f"s_add_u32 s{sLNB}, s{sLNB}, {OFF_LN}")
    A(f"s_lshl_b32 s22, s{sLO}, 14")
    A(f"s_add_u32 s22, s22, {OFF_U}")
    A(f"s_lshl_b32 s23, s{sLO}, 10")
    A("s_lshl_b32 s24, s2, 14")
    A(f"s_add_u32 s24, s24, {OFF_V}")
    A(f"v_mov_b32 v{vcnt}, {CNT}")
    A(f"v_mov_b32 v{vone}, 0")
    A(f"ds_write_b32 v{vcnt}, v{vone}")
    A(f"v_mov_b32 v{c512}, {fhex(1.0/512)}")
    A(f"v_cvt_f32_u32 v{gf}, v{g}")
    A(f"v_cvt_f32_u32 v{jf}, v{j}")
    A(f"v_mul_f32 v{gf}, 4.0, v{gf}")
    A(f"v_mul_f32 v{t1}, {fhex(1/32)}, v{jf}")
    for e in range(8):
        a_add = e if e < 4 else 12 + e
        A(f"v_add_f32 v{t2}, {fhex(float(a_add))}, v{gf}")
        A(f"v_mul_f32 v{ang+e}, v{t2}, v{t1}")
    A("s_waitcnt lgkmcnt(0)")
    stamp(A, "karg")
    clr = [f"buffer_store_dwordx4 {vr(ones,4)}, v{voV}, {S(WS)}, s22 offen sc1",
           f"buffer_store_dwordx4 {vr(ones,4)}, v{voV}, {S(WS)}, s24 offen sc1",
           f"buffer_store_dwordx4 {vr(ones,4)}, v{vln}, {S(WS)}, s{sLNB} offen sc1"]
    V.do("x", f"buffer_load_dwordx4 {vr(xC,4)}, v{vx}, {S(SX)}, s23 offen{NT}")
    if WSOFF:
        A(f"s_add_u32 s{WS}, s{WS}, {WSOFF}")
        A(f"s_addc_u32 s{WS+1}, s{WS+1}, 0")
    A(f"s_add_u32 s62, s{WS}, {OFF_TAG}")
    A(f"s_addc_u32 s63, s{WS+1}, 0")
    A(f"s_load_dword s{sT}, s[62:63], 0")
    A(f"s_add_u32 s{SHH}, s{WS}, {OFF_HH}")
    A(f"s_addc_u32 s{SHH+1}, s{WS+1}, 0")
    A(f"v_lshrrev_b32 v{t1}, 3, v{lane}")
    A(f"v_mul_u32_u24 v{t1}, {514*8}, v{t1}")
    A(f"v_and_b32 v{t2}, 7, v{lane}")
    A(f"v_min_u32 v{t2}, 4, v{t2}")
    A(f"v_lshl_add_u32 v{t1}, v{t2}, 7, v{t1}")
    A(f"s_mul_i32 s60, s{sX}, 514")
    A(f"s_mul_i32 s61, s{sY}, {514*64}")
    A("s_add_u32 s61, s61, s60")
    A(f"s_and_b32 s60, s{sW}, 3")
    A("s_barrier")
    stamp(A, "bar1")
    if "noclr" not in OPT:
        V.do("lnclr", clr[2])
    A("s_cmp_lg_u32 s60, 0")
    A("s_cbranch_scc1 L_notch")
    A(f"buffer_load_ushort v{junk}, v{t1}, {S(SWF)}, s61 offen{NT}")
    A.label("L_notch")
    A(f"s_and_b32 s{sTP}, s{sX}, 1")
    A(f"s_lshl_b32 s{sTP}, s{sTP}, 2")
    A(f"s_and_b32 s60, s{sY}, 3")
    A(f"s_add_u32 s{sTP}, s{sTP}, s60")
    A(f"s_lshl_b32 s{sTP}, s{sTP}, 3")
    A(f"s_add_u32 s{sTP}, s{sTP}, s{sW}")
    A(f"s_lshr_b32 s{sFT}, s{sX}, 1")
    A(f"s_lshl_b32 s{sFT}, s{sFT}, 3")
    A(f"s_lshr_b32 s{sROT}, s{sY}, 2")
    A(f"s_add_u32 s{sFT}, s{sFT}, s{sROT}")
    A(f"s_and_b32 s60, s{sW}, 3")
    A(f"s_mul_i32 s{sWSRC}, s60, {32*2752}")
    A(f"s_mul_i32 s61, s{sFT}, 96")
    A(f"s_add_u32 s{sWSRC}, s{sWSRC}, s61")
    A(f"s_mul_i32 s{sWDST}, s60, 3072")
    A(f"s_lshr_b32 s60, s{sW}, 2")
    A(f"s_mul_i32 s60, s60, {UB}")
    A(f"s_add_u32 s{sWDST}, s{sWDST}, s60")
    for i in range(3):
        A(f"v_add_u32 v{t0}, {64*i}, v{lane}")
        A(f"v_mul_u32_u24 v{t1}, 171, v{t0}")
        A(f"v_lshrrev_b32 v{t1}, 10, v{t1}")
        A(f"v_mul_u32_u24 v{vw+i}, {2752-96}, v{t1}")
        A(f"v_add_u32 v{vw+i}, v{vw+i}, v{l16}")
    A(f"s_mul_i32 s60, s{sFT}, {3*65536}")
    A(f"s_lshl_b32 s61, s{sTP}, 10")
    A("s_add_u32 s60, s60, s61")
    A(f"v_add_u32 v{voHH}, s60, v{l16}")

    def dma_w(q):
        out = []
        if "nowt" in OPT:
            return out
        for i in range(3):
            x = []
            if i == 0:
                x += [f"s_add_u32 s32, s{sY}, {q}", "s_and_b32 s32, s32, 3", f"s_mul_i32 s33, s32, {128*96}",
                      f"s_add_u32 s33, s33, s{sWDST}", f"s_mul_i32 s32, s32, {128*2752}",
                      f"s_add_u32 s32, s32, s{sWSRC}"]
            x.append("s_mov_b32 m0, s33")
            x.append(f"buffer_load_dwordx4 v{vw+i}, {S(SWM)}, s32 offen offset:{1024*i} lds")
            out.append(x)
        return out

    def hhclr(c):
        if "noclr" in OPT:
            return []
        return [f"v_add_u32 v{junk}, {65536*c}, v{voHH}",
                f"buffer_store_dwordx4 {vr(ones,4)}, v{junk}, {S(SHH)}, 0 offen sc1"]

    V.do("w0", dma_w(0))
    for e in range(8):
        A(f"v_cos_f32 v{twc+e}, v{ang+e}")
        A(f"v_sin_f32 v{tws+e}, v{ang+e}")
    for q in range(4):
        A(f"v_cvt_pk_bf16_f32 v{Bc[0]+q}, v{twc+2*q}, v{twc+2*q+1}")
        A(f"v_cvt_pk_bf16_f32 v{Bs[0]+q}, -v{tws+2*q}, -v{tws+2*q+1}")
    for q in range(4):
        A(f"v_xor_b32 v{Bc[1]+q}, 0x80000000, v{Bc[0]+q}")
        A(f"v_xor_b32 v{Bs[1]+q}, 0x80000000, v{Bs[0]+q}")
    A(f"v_lshrrev_b32 v{t2}, 1, v{j}")
    A(f"v_cvt_f32_u32 v{t2}, v{t2}")
    A(f"v_and_b32 v{t3}, 1, v{j}")
    A(f"v_cvt_f32_u32 v{t3}, v{t3}")
    A(f"v_mul_f32 v{t3}, {fhex(0.25)}, v{t3}")
    A(f"v_mul_f32 v{t1}, {fhex(1/16)}, v{t2}")
    for q in range(4):
        A(f"v_add_f32 v{ang+q}, {fhex(float(q))}, v{gf}")
        A(f"v_fma_f32 v{ang+q}, v{ang+q}, v{t1}, v{t3}")
    A(f"v_cvt_f32_u32 v{t0}, s{sLO}")
    A(f"v_mul_f32 v{t1}, {fhex(1/2048)}, v{t2}")
    A(f"v_fmamk_f32 v{t0}, v{gf}, {fhex(128.0)}, v{t0}")
    A(f"v_fma_f32 v{ang+4}, v{t0}, v{t1}, v{t3}")
    A(f"v_add_f32 v{t0}, {fhex(256.0)}, v{t0}")
    A(f"v_fma_f32 v{ang+5}, v{t0}, v{t1}, v{t3}")
    for q in range(6):
        A(f"v_cos_f32 v{twc+q}, v{ang+q}")
        A(f"v_sin_f32 v{tws+q}, v{ang+q}")
    for q in range(4):
        A(f"v_cvt_pk_bf16_f32 v{A2+q}, v{twc+q}, v{tws+q}")
    for p in range(2):
        A(f"v_cvt_pk_bf16_f32 v{R8+p}, v{twc+4+p}, v{tws+4+p}")
    for q in range(4):
        A(f"v_mov_b32 v{A2n+q}, {0x3F80 if q % 2 == 0 else 0xBF80:#x}")
    for t in range(2):
        A(f"v_add_f32 v{t1}, {fhex(16.0*t)}, v{jf}")
        A(f"v_mul_f32 v{t1}, {fhex(1/512)}, v{t1}")
        for r in range(4):
            A(f"v_add_f32 v{t2}, {fhex(float(r))}, v{gf}")
            A(f"v_mul_f32 v{ang+4*t+r}, v{t2}, v{t1}")
    for e in range(8):
        A(f"v_cos_f32 v{twc+e}, v{ang+e}")
        A(f"v_sin_f32 v{tws+e}, v{ang+e}")
    ZL = SC + 8192
    ZP = 1024 + 64
    A(f"s_lshl_b32 s60, s{sW}, 10")
    A(f"s_add_u32 s60, s60, {SC}")
    A(f"v_add_u32 v{lz}, s60, v{voC}")
    A(f"v_lshl_add_u32 v{lzr}, v{lane}, 3, s60")
    A(f"v_lshlrev_b32 v{lw}, 8, v{g}")
    A(f"v_lshl_add_u32 v{lw}, v{j}, 2, v{lw}")
    A(f"s_mul_i32 s60, s{sW}, {ZP}")
    A(f"s_add_u32 s60, s60, {ZL - 4}")
    A(f"v_add_u32 v{lw}, s60, v{lw}")
    A(f"s_lshl_b32 s60, s{sW}, 8")
    A(f"v_lshlrev_b32 v{voU}, 12, v{g}")
    A(f"v_lshl_add_u32 v{voU}, v{j}, 4, v{voU}")
    A(f"v_add_u32 v{voU}, s60, v{voU}")
    A(f"v_mul_u32_u24 v{lru}, {2*ZP}, v{g}")
    A(f"v_lshl_add_u32 v{lru}, v{j}, 3, v{lru}")
    A(f"s_lshl_b32 s60, s{sW}, 7")
    A(f"s_add_u32 s60, s60, {ZL}")
    A(f"v_add_u32 v{lru}, s60, v{lru}")
    A(f"v_cmp_eq_u32 vcc, 0, v{lane}")
    A(f"v_add_u32 v{vone}, 1024, v{lw}")
    A(f"v_cndmask_b32 v{vone}, v{lw}, v{vone}, vcc")
    stamp(A, "const")
    A("s_waitcnt lgkmcnt(0)")
    A(f"s_add_u32 s{sT}, s{sT}, {TAG_STEP:#x}")

    V.wait("x")
    stamp(A, "xrdy")

    emit(A, unpack_l(xf, xC) + ln_l(xf, tl, 27, xr, c512))
    stamp(A, "Aln")
    A(f"ds_write_b128 v{lz}, {vr(xr,4)}")
    A("s_waitcnt lgkmcnt(0)")
    A(f"ds_read_b64_tr_b16 {vr(za,2)}, v{lzr}")
    A(f"ds_read_b64_tr_b16 {vr(za+2,2)}, v{lzr} offset:512")
    A("s_waitcnt lgkmcnt(0)")
    for t in range(2):
        A(f"{MF32} {vr(Dre[t],4)}, {vr(za,4)}, {vr(Bc[t],4)}, 0")
        A(f"{MF32} {vr(Dim[t],4)}, {vr(za,4)}, {vr(Bs[t],4)}, 0")
    for t in range(2):
        emit(A, cmul4_l(P[t], Dre[t], Dim[t], twc + 4 * t, tws + 4 * t, tl + 4 * t, True))
        A(f"{MF32} {vr(Dre[t],4)}, {vr(A2,4)}, {vr(P[t],4)}, 0")
        if t == 0:
            A(f"{MF32} {vr(Zn,4)}, {vr(A2n,4)}, {vr(P[0],4)}, 0")
    A(f"v_cndmask_b32 v{Dre[0]}, v{Dre[0]}, v{Zn}, vcc")
    for t in range(2):
        for q in range(2):
            A(f"v_cvt_pk_bf16_f32 v{P[t]+q}, v{Dre[t]+2*q}, v{Dre[t]+2*q+1}")
        if t == 0:
            A(f"ds_write_b32 v{vone}, v{P[0]}")
            A(f"ds_write_b32 v{lw}, v{P[0]+1} offset:128")
        else:
            A(f"ds_write2_b32 v{lw}, v{P[t]}, v{P[t]+1} offset0:{16*t} offset1:{16*t+32}")
    stamp(A, "Afft")
    A(f"v_mov_b32 v{xf+2}, s{sT}")
    A(f"v_mov_b32 v{xf+6}, s{sT}")
    A("s_waitcnt lgkmcnt(0)")
    A("s_barrier")
    stamp(A, "Abar")
    A(f"ds_read_b64 {vr(za,2)}, v{lru}")
    A(f"ds_read_b64 {vr(za+2,2)}, v{lru} offset:{ZP}")
    A("s_waitcnt lgkmcnt(0)")
    A(f"v_swap_b32 v{za+1}, v{za+2}")
    for u in range(2):
        A(f"{MF16} {vr(Dre[u],4)}, {vr(R8,2)}, {vr(za+2*u,2)}, 0")
    for p in range(2):
        for u in range(2):
            A(f"v_cvt_pk_bf16_f32 v{xf+4*p+u}, v{Dre[u]+2*p}, v{Dre[u]+2*p+1}")
        V.do("ust", f"buffer_store_dwordx4 {vr(xf+4*p,4)}, v{voU}, {S(WS)}, s22 offen offset:{2048*p} sc1")
    stamp(A, "Adone")

    RB = RA(base)
    In = RB.get(4, 4)
    Fre, Fim, Gre, Gim = RB.get(4, 4), RB.get(4, 4), RB.get(4, 4), RB.get(4, 4)
    twc, tws = RB.get(4, 4), RB.get(4, 4)
    Wre, Wim = RB.get(4, 4), RB.get(4, 4)
    Dre, Dim = RB.get(4, 4), RB.get(4, 4)
    tb = RB.get(4, 2)
    ang = RB.get(4)
    Ld = RB.get(8, 4)
    Wraw = RB.get(5, 4)
    vul, lbw, lbr, lwr, vwo = (RB.get() for _ in range(5))
    WL = G0B - 16128
    BL = SC + 32768
    A(f"v_and_b32 v{vwo}, 255, v0")
    A(f"v_mul_u32_u24 v{vwo}, {514*8}, v{vwo}")
    A(f"s_mul_i32 s26, s{sX}, 514")
    A(f"s_lshl_b32 s27, s{sY}, 4")
    A("s_add_u32 s27, s27, s26")
    A("s_add_u32 s27, s27, 2")
    A("s_and_b32 s28, s27, 2")
    A("s_and_b32 s27, s27, 0xfffffffc")
    A("s_barrier")
    if "nofil" not in OPT:
        V.do("w", f"buffer_load_dwordx4 {vr(Wraw,4)}, v{vwo}, {S(SWF)}, s27 offen")
        V.do("w", f"buffer_load_dword v{Wraw+4}, v{vwo}, {S(SWF)}, s27 offen offset:16")
    A(f"v_lshrrev_b32 v{t1}, 2, v0")
    A(f"v_and_b32 v{t2}, 3, v0")
    A(f"v_lshlrev_b32 v{vul}, 14, v{t1}")
    A(f"v_lshl_add_u32 v{vul}, v{t2}, 4, v{vul}")
    A(f"s_lshl_b32 s23, s{sX}, 11")
    A(f"s_lshl_b32 s60, s{sY}, 6")
    A("s_add_u32 s23, s23, s60")
    A(f"s_add_u32 s23, s23, {OFF_U}")
    A(f"s_add_u32 s25, s23, {2*MB}")
    A(f"v_and_b32 v{lbw}, 0x40, v{t1}")
    A(f"v_and_b32 v{t3}, 15, v{t1}")
    A(f"v_lshl_add_u32 v{lbw}, v{t3}, 2, v{lbw}")
    A(f"v_bfe_u32 v{t3}, v{t1}, 4, 2")
    A(f"v_add_u32 v{lbw}, v{lbw}, v{t3}")
    A(f"v_lshl_add_u32 v{lbw}, v{t2}, 9, v{lbw}")
    A(f"v_lshlrev_b32 v{lbw}, 2, v{lbw}")
    A(f"v_add_u32 v{lbw}, {BL}, v{lbw}")
    A(f"v_add_u32 v{lbr}, {BL}, v{voV}")
    for i in range(4):
        A(f"v_mov_b32 v{Wre+i}, 0")
        A(f"v_mov_b32 v{Wim+i}, 0")
    A(f"v_lshl_add_u32 v{lwr}, v{g}, 6, v{j}")
    A(f"v_mul_f32 v{t1}, {fhex(1/16)}, v{jf}")
    for q in range(4):
        A(f"v_add_f32 v{t2}, {fhex(float(q))}, v{gf}")
        A(f"v_mul_f32 v{ang+q}, v{t2}, v{t1}")
    for q in range(4):
        A(f"v_cos_f32 v{twc+q}, v{ang+q}")
        A(f"v_sin_f32 v{tws+q}, v{ang+q}")
    for q in range(4):
        A(f"v_cvt_pk_bf16_f32 v{Fre+q}, v{twc+q}, v{tws+q}")
        A(f"v_cvt_pk_bf16_f32 v{Fim+q}, -v{tws+q}, v{twc+q}")
        A(f"v_cvt_pk_bf16_f32 v{Gre+q}, v{twc+q}, -v{tws+q}")
        A(f"v_cvt_pk_bf16_f32 v{Gim+q}, v{tws+q}, v{twc+q}")
    for q in range(4):
        A(f"v_mul_f32 v{ang+q}, {fhex(1/16)}, v{ang+q}")
    for q in range(4):
        A(f"v_cos_f32 v{twc+q}, v{ang+q}")
        A(f"v_sin_f32 v{tws+q}, v{ang+q}")
    A(f"v_lshlrev_b32 v{lwr}, 5, v{lwr}")
    A(f"s_lshl_b32 s60, s{sW}, 1")
    A("s_add_u32 s60, s60, s28")
    A(f"s_add_u32 s60, s60, {WL}")
    A(f"v_add_u32 v{lwr}, s60, v{lwr}")
    A(f"v_lshlrev_b32 v{t1}, 5, v0")
    A(f"v_add_u32 v{t1}, {WL}, v{t1}")
    V.wait("ust")
    stamp(A, "Udrain")
    if PRE[0]:
        A(f"s_sleep {PRE[0]}")
    ld = [f"buffer_load_dwordx4 {vr(Ld+4*i,4)}, v{vul}, {S(WS)}, s{23+2*i} offen sc1" for i in range(2)]
    V.do("u", ld)
    V.wait("w")
    A(f"ds_write_b128 v{t1}, {vr(Wraw,4)}")
    A(f"ds_write_b32 v{t1}, v{Wraw+4} offset:16")
    V.wait("u")
    stamp(A, "Ufirst")
    RT.check_tag("pu", (Ld + 2, Ld + 6), t0, ld)
    stamp(A, "Urdy")
    A(f"ds_write2st64_b32 v{lbw}, v{Ld}, v{Ld+1} offset0:0 offset1:4")
    A(f"ds_write2st64_b32 v{lbw}, v{Ld+4}, v{Ld+5} offset0:2 offset1:6")
    A("s_waitcnt lgkmcnt(0)")
    A("s_barrier")
    A(f"ds_read_b128 {vr(In,4)}, v{lbr}")
    for r in range(4):
        A(f"ds_read_u16_d16_hi v{Wre+r}, v{lwr} offset:{512*r}")
        A(f"ds_read_u16_d16_hi v{Wim+r}, v{lwr} offset:{8192+512*r}")
    A("s_waitcnt lgkmcnt(8)")
    A(f"{MF32} {vr(Dre,4)}, {vr(In,4)}, {vr(Fre,4)}, 0")
    A(f"{MF32} {vr(Dim,4)}, {vr(In,4)}, {vr(Fim,4)}, 0")
    V.do("hhclr", hhclr(0))
    emit(A, cmul4_l(In, Dre, Dim, twc, tws, tb, True))
    A(f"{MF32} {vr(Dre,4)}, {vr(Fre,4)}, {vr(In,4)}, 0")
    A(f"{MF32} {vr(Dim,4)}, {vr(Fim,4)}, {vr(In,4)}, 0")
    A("s_waitcnt lgkmcnt(0)")
    emit(A, cmul4_l(In, Dre, Dim, Wre, Wim, tb, False))
    A(f"{MF32} {vr(Dre,4)}, {vr(In,4)}, {vr(Gre,4)}, 0")
    A(f"{MF32} {vr(Dim,4)}, {vr(In,4)}, {vr(Gim,4)}, 0")
    emit(A, cmul4_l(In, Dre, Dim, twc, tws, tb, False))
    A(f"{MF32} {vr(Dre,4)}, {vr(Gre,4)}, {vr(In,4)}, 0")
    A(f"{MF32} {vr(Dim,4)}, {vr(Gim,4)}, {vr(In,4)}, 0")
    for r in range(4):
        A(f"v_cvt_pk_bf16_f32 v{In+r}, v{Dre+r}, v{Dim+r}")
    A(f"ds_write_b128 v{lbr}, {vr(In,4)}")
    stamp(A, "Bfft")
    V.wait("lnclr", "lgkmcnt(0)")
    A("s_barrier")
    A(f"ds_read2st64_b32 {vr(Ld,2)}, v{lbw} offset0:0 offset1:4")
    A(f"ds_read2st64_b32 {vr(Ld+4,2)}, v{lbw} offset0:2 offset1:6")
    A("s_add_u32 s60, s24, 8192")
    A("s_waitcnt lgkmcnt(1)")
    V.do("vst", f"buffer_store_dwordx4 {vr(Ld,4)}, v{voV}, {S(WS)}, s24 offen sc1")
    A("s_waitcnt lgkmcnt(0)")
    V.do("vst", f"buffer_store_dwordx4 {vr(Ld+4,4)}, v{voV}, {S(WS)}, s60 offen sc1")
    stamp(A, "Bdone")
    A("s_barrier")
    NV = int(E("NV", "6"))
    wrest = dma_w(1) + dma_w(2) + dma_w(3)
    V.do("wv", wrest[:NV])
    A(f"s_or_b32 s60, s2, s{sW}")
    A("s_cmp_lg_u32 s60, 0")
    A("s_cbranch_scc1 L_notag")
    A(f"s_mov_b32 s60, {OFF_TAG}")
    emit(A, flag_store("s60"))
    A.label("L_notag")

    RC = RA(base)
    B2 = [[RC.get(4, 4), RC.get(4, 4)], [RC.get(4, 4), RC.get(4, 4)]]
    twc, tws = RC.get(8, 4), RC.get(8, 4)
    ang = RC.get(8, 4)
    P = [RC.get(4, 4), RC.get(4, 4)]
    RC.n = max(RC.n, RB.hi)
    L = RC.get(8, 4)
    xf = RC.get(8, 4)
    tl = RC.get(8, 2)
    R8 = RC.get(2, 2)
    B1re, B1im = RC.get(2, 2), RC.get(2, 2)
    Dre = [RC.get(4, 4), RC.get(4, 4)]
    Dim = [RC.get(4, 4), RC.get(4, 4)]
    Y = [RC.get(4, 4), RC.get(4, 4)]
    vvl, lcw, lcr, lcr0, lnw, lnr = (RC.get() for _ in range(6))
    A(f"v_lshrrev_b32 v{t2}, 1, v{j}")
    A(f"v_cvt_f32_u32 v{t2}, v{t2}")
    A(f"v_and_b32 v{t3}, 1, v{j}")
    A(f"v_cvt_f32_u32 v{t3}, v{t3}")
    A(f"v_mul_f32 v{t3}, {fhex(-0.25)}, v{t3}")
    A(f"v_cvt_f32_u32 v{t0}, s{sLO}")
    A(f"v_fmamk_f32 v{t0}, v{t2}, {fhex(256.0)}, v{t0}")
    A(f"v_mul_f32 v{t0}, {fhex(1/2048)}, v{t0}")
    A(f"v_mul_f32 v{t1}, 0.5, v{gf}")
    A(f"v_fma_f32 v{ang}, v{t1}, v{t0}, v{t3}")
    A(f"v_add_f32 v{ang+1}, v{ang}, v{t0}")
    A(f"v_mul_f32 v{t0}, {fhex(1/16)}, v{jf}")
    A(f"v_mul_f32 v{ang+2}, v{t1}, v{t0}")
    A(f"v_add_f32 v{ang+3}, v{ang+2}, v{t0}")
    A(f"v_mul_f32 v{t0}, {fhex(1/32)}, v{jf}")
    for r in range(4):
        A(f"v_add_f32 v{t2}, {fhex(float(r))}, v{gf}")
        A(f"v_mul_f32 v{ang+4+r}, v{t2}, v{t0}")
    for e in range(8):
        A(f"v_cos_f32 v{twc+e}, v{ang+e}")
        A(f"v_sin_f32 v{tws+e}, v{ang+e}")
    A(f"v_lshlrev_b32 v{vvl}, 15, v{g}")
    A(f"v_lshrrev_b32 v{t1}, 2, v{j}")
    A(f"v_lshl_add_u32 v{vvl}, v{t1}, 17, v{vvl}")
    A(f"v_and_b32 v{t1}, 3, v{j}")
    A(f"v_lshl_add_u32 v{vvl}, v{t1}, 4, v{vvl}")
    A(f"s_lshl_b32 s23, s{sW}, 19")
    A(f"s_lshl_b32 s60, s{sLO}, 6")
    A("s_add_u32 s23, s23, s60")
    A(f"s_add_u32 s23, s23, {OFF_V}")
    A("s_add_u32 s25, s23, 16384")
    for p in range(2):
        A(f"v_cvt_pk_bf16_f32 v{R8+p}, v{twc+p}, -v{tws+p}")
        A(f"v_cvt_pk_bf16_f32 v{B1re+p}, v{twc+2+p}, -v{tws+2+p}")
        A(f"v_cvt_pk_bf16_f32 v{B1im+p}, v{tws+2+p}, v{twc+2+p}")
    for r in range(4):
        A(f"v_cvt_pk_bf16_f32 v{B2[0][0]+r}, v{twc+4+r}, -v{tws+4+r}")
    A(f"v_and_b32 v{t3}, 1, v{j}")
    A(f"v_mul_u32_u24 v{t3}, 0x8000, v{t3}")
    A(f"v_lshl_or_b32 v{t3}, v{t3}, 16, v{t3}")
    for r in range(4):
        A(f"v_xor_b32 v{B2[1][0]+r}, v{t3}, v{B2[0][0]+r}")
    for t in range(2):
        for r in range(4):
            if r % 2:
                A(f"v_xor_b32 v{B2[t][1]+r}, 0x80008000, v{B2[t][0]+r}")
            else:
                A(f"v_mov_b32 v{B2[t][1]+r}, v{B2[t][0]+r}")
    V.wait("vst")
    stamp(A, "Vdrain")
    if PRE[1]:
        A(f"s_sleep {PRE[1]}")
    lds_ = [f"buffer_load_dwordx4 {vr(L+4*p,4)}, v{vvl}, {S(WS)}, s{23+2*p} offen sc1" for p in range(2)]
    V.do("v", lds_)
    A(f"v_mul_f32 v{t0}, {fhex(1/512)}, v{jf}")
    for t in range(2):
        for r in range(4):
            A(f"v_add_f32 v{t2}, {fhex(float(16*t+r))}, v{gf}")
            A(f"v_mul_f32 v{ang+4*t+r}, v{t2}, v{t0}")
    bg = [[], [], [], hhclr(1), hhclr(2)]

    def bgone():
        if bg:
            V.do("bg", bg.pop(0))
    for e in range(8):
        A(f"v_cos_f32 v{twc+e}, v{ang+e}")
        A(f"v_sin_f32 v{tws+e}, v{ang+e}")
    bgone()
    A(f"v_mov_b32 v{t2}, {fhex(2.0**-19)}")
    for e in range(4):
        A(f"v_pk_mul_f32 {p2(twc+2*e)}, {p2(twc+2*e)}, {p2(t2)} op_sel_hi:[1,0]")
        A(f"v_pk_mul_f32 {p2(tws+2*e)}, {p2(tws+2*e)}, {p2(t2)} op_sel_hi:[1,0]")
    LNL = SC + 8192
    A(f"v_lshlrev_b32 v{lcw}, 11, v{g}")
    A(f"v_lshl_add_u32 v{lcw}, v{j}, 3, v{lcw}")
    A(f"s_lshl_b32 s60, s{sW}, 7")
    A(f"s_add_u32 s60, s60, {SC}")
    A(f"v_add_u32 v{lcw}, s60, v{lcw}")
    A(f"v_lshlrev_b32 v{lcr}, 8, v{g}")
    A(f"v_lshl_add_u32 v{lcr}, v{j}, 2, v{lcr}")
    A(f"s_lshl_b32 s60, s{sW}, 10")
    A(f"s_add_u32 s60, s60, {SC - 4}")
    A(f"v_add_u32 v{lcr}, s60, v{lcr}")
    A(f"v_cmp_eq_u32 vcc, 0, v{lane}")
    A(f"v_add_u32 v{lcr0}, 1024, v{lcr}")
    A(f"v_cndmask_b32 v{lcr0}, v{lcr}, v{lcr0}, vcc")
    bgone()
    A(f"v_lshlrev_b32 v{lnw}, 8, v{j}")
    A(f"v_lshrrev_b32 v{t1}, 1, v{g}")
    A(f"v_lshl_add_u32 v{lnw}, v{t1}, 7, v{lnw}")
    A(f"v_and_b32 v{t1}, 1, v{g}")
    A(f"v_lshl_add_u32 v{lnw}, v{t1}, 12, v{lnw}")
    A(f"v_xor_b32 v{t1}, s{sW}, v{j}")
    A(f"v_and_b32 v{t1}, 7, v{t1}")
    A(f"v_lshl_add_u32 v{lnw}, v{t1}, 4, v{lnw}")
    A(f"v_add_u32 v{lnw}, {LNL}, v{lnw}")
    A(f"v_and_b32 v{lnr}, 0x70, v0")
    A(f"v_xor_b32 v{lnr}, v{lnr}, v{voV}")
    A(f"v_add_u32 v{lnr}, {LNL}, v{lnr}")
    emit(A, unpack_l(xf, xC))
    bgone()
    V.wait("v")
    stamp(A, "Vfirst")
    RT.check_tag("pv", (L + 2, L + 6), t0, lds_)
    stamp(A, "Vrdy")
    A(f"v_swap_b32 v{L+1}, v{L+4}")
    for u in range(2):
        A(f"{MF16} {vr(Y[u],4)}, {vr(R8,2)}, {vr(L+4*u,2)}, 0")
    A(f"v_cmp_ne_u32 vcc, 0, v{lane}")
    A(f"v_mov_b32 v{t2}, {fhex(2.0**-20)}")
    for p in range(2):
        for u in range(2):
            A(f"v_cvt_pk_bf16_f32 v{P[0]+2*p+u}, v{Y[u]+2*p}, v{Y[u]+2*p+1}")
        A(f"ds_write_b64 v{lcw}, {vr(P[0]+2*p,2)} offset:{1024*p}")
    A("s_waitcnt lgkmcnt(0)")
    A("s_barrier")
    stamp(A, "Cbar")
    A(f"ds_read2_b32 {vr(L+2,2)}, v{lcr} offset0:16 offset1:48")
    A(f"ds_read_b32 v{L}, v{lcr0}")
    A(f"ds_read_b32 v{L+1}, v{lcr} offset:128")
    bgone()
    A("s_waitcnt lgkmcnt(2)")
    A(f"{MF16} {vr(Dre[1],4)}, {vr(L+2,2)}, {vr(B1re,2)}, 0")
    A(f"{MF16} {vr(Dim[1],4)}, {vr(L+2,2)}, {vr(B1im,2)}, 0")
    A("s_waitcnt lgkmcnt(0)")
    A(f"v_readlane_b32 s26, v{L}, 0")
    A(f"v_cndmask_b32 v{L}, 0, v{L}, vcc")
    A("s_lshl_b32 s26, s26, 16")
    A(f"{MF16} {vr(Dre[0],4)}, {vr(L,2)}, {vr(B1re,2)}, 0")
    A(f"{MF16} {vr(Dim[0],4)}, {vr(L,2)}, {vr(B1im,2)}, 0")
    A(f"v_mul_f32 v{Y[0]}, s26, v{t2}")
    A(f"v_sub_f32 v{Y[0]+1}, 0, v{Y[0]}")
    A(f"v_pk_mov_b32 {p2(Y[0]+2)}, {p2(Y[0])}, {p2(Y[0])} op_sel:[0,1]")
    A(f"v_pk_mov_b32 {p2(Y[1])}, {p2(Y[0])}, {p2(Y[0])} op_sel:[0,1]")
    A(f"v_pk_mov_b32 {p2(Y[1]+2)}, {p2(Y[0])}, {p2(Y[0])} op_sel:[0,1]")
    for t in (1, 0):
        emit(A, cmul4_l(P[t], Dre[t], Dim[t], twc + 4 * t, tws + 4 * t, tl + 4 * t, False))
        for u in range(2):
            A(f"{MF32} {vr(Y[u],4)}, {vr(P[t],4)}, {vr(B2[t][u],4)}, {vr(Y[u],4)}")
        bgone()
    yb, hb, yf = P[0], P[1], Dre[0]
    assert Dre[1] == Dre[0] + 4
    for u in range(2):
        for q in range(2):
            A(f"v_cvt_pk_bf16_f32 v{yb+2*u+q}, v{Y[u]+2*q}, v{Y[u]+2*q+1}")
    A(f"v_permlane16_swap_b32 v{yb}, v{yb+2}")
    A(f"v_permlane16_swap_b32 v{yb+1}, v{yb+3}")
    emit(A, unpack_l(yf, yb))
    for i in range(4):
        A(f"v_pk_add_f32 {p2(xf+2*i)}, {p2(xf+2*i)}, {p2(yf+2*i)}")
    for i in range(4):
        A(f"v_cvt_pk_bf16_f32 v{hb+i}, v{xf+2*i}, v{xf+2*i+1}")
    bgone()
    emit(A, unpack_l(xf, hb))
    for i, m in enumerate(ln_l(xf, tl, 26, yb, c512)):
        A(m)
        if i % 11 == 5:
            bgone()
    for i in range(4):
        A(f"v_min_u32 v{yb+i}, -2, v{yb+i}")
    A(f"ds_write_b128 v{lnw}, {vr(yb,4)}")
    while bg:
        bgone()
    A(f"s_lshl_b32 s60, s{sLO}, 13")
    A(f"s_add_u32 s60, s60, {OFF_H}")
    stamp(A, "Cln")
    A("s_waitcnt lgkmcnt(0)")
    A("s_barrier")
    A(f"ds_read_b128 {vr(Dre[0],4)}, v{lnr}")
    A("s_waitcnt lgkmcnt(0)")
    V.do("lnst", f"buffer_store_dwordx4 {vr(Dre[0],4)}, v{vln}, {S(WS)}, s{sLNB} offen sc1")
    hst = f"buffer_store_dwordx4 {vr(hb,4)}, v{voV}, {S(WS)}, s60 offen sc1"
    stamp(A, "Cdone")
    A("s_barrier")
    V.do("wc", wrest[NV:])

    RD = RA(base)
    rw0, rw, vtmp, hh_ = RD.get(), RD.get(), RD.get(), RD.get()
    Fw = [RD.get(12, 4), RD.get(12, 4), RD.get(12, 4)]
    acc = RD.get(48, 4)
    X = RD.get(128, 4)
    assert RD.hi <= 256, RD.hi
    assert acc <= hb < acc + 48 - 3
    sTM, sN0, sROTE, sG, sACT = 23, 25, 26, 27, 21
    A(f"v_lshrrev_b32 v{hh_}, 5, v{lane}")
    A(f"s_lshl_b32 s{sTM}, s{sX}, 2")
    A(f"s_and_b32 s61, s{sY}, 3")
    A(f"s_add_u32 s{sTM}, s{sTM}, s61")
    A(f"s_lshr_b32 s{sN0}, s{sY}, 2")
    A("s_mul_i32 s61, s61, 3")
    A(f"s_add_u32 s{sROTE}, s61, s{sN0}")
    A(f"s_cmp_ge_u32 s{sROTE}, 11")
    A("s_cselect_b32 s61, 11, 0")
    A(f"s_sub_u32 s{sROTE}, s{sROTE}, s61")
    A(f"s_lshl_b32 s{sN0}, s{sN0}, 7")
    A(f"v_lshrrev_b32 v{t1}, 3, v{lane}")
    A(f"v_lshlrev_b32 v{vwd}, 10, v{t1}")
    A(f"v_and_b32 v{t1}, 2, v{t1}")
    A(f"v_lshlrev_b32 v{t1}, 1, v{t1}")
    A(f"v_and_b32 v{t2}, 7, v{lane}")
    A(f"v_xor_b32 v{t1}, v{t1}, v{t2}")
    A(f"v_lshl_add_u32 v{vwd}, v{t1}, 4, v{vwd}")
    A(f"s_and_b32 s62, s{sW}, 3")
    A(f"s_mul_i32 s61, s62, {11*32768}")
    A(f"s_add_u32 s61, s61, s{sN0}")
    A(f"v_add_u32 v{vwd}, s61, v{vwd}")
    A(f"s_lshr_b32 s61, s{sW}, 2")
    A("s_lshl_b32 s29, s61, 14")
    A("s_lshl_b32 s61, s61, 11")
    A(f"s_mul_i32 s{sG}, s62, {7*4096}")
    A(f"s_add_u32 s{sG}, s{sG}, s61")
    A(f"s_mul_i32 s28, s62, {3*4096}")
    A("s_add_u32 s28, s28, s61")
    A(f"s_add_u32 s28, s28, {G0B}")
    A("s_add_u32 s30, s29, 8192")

    def idx_of(i, sd):
        return [f"s_add_u32 s{sd}, s{sROTE}, {i}", f"s_cmp_ge_u32 s{sd}, 11", "s_cselect_b32 s62, 11, 0",
                f"s_sub_u32 s{sd}, s{sd}, s62"]

    def dma_d(i):
        if "nowt" in OPT:
            return []
        pre = idx_of(i, 22) + ["s_lshl_b32 s22, s22, 15", f"v_add_u32 v{vtmp}, s22, v{vwd}"]
        if i < 3:
            m = lambda n: f"s_add_u32 m0, s28, {4096*i + 1024*n}"
        else:
            m = lambda n: f"s_add_u32 m0, s{sG}, {4096*(i-3) + 1024*n}"
        return [pre + [m(0), f"buffer_load_dwordx4 v{vtmp}, {S(SWD)}, s29 offen lds"],
                [m(1), f"buffer_load_dwordx4 v{vtmp}, {S(SWD)}, s30 offen lds"]]

    A(f"v_and_b32 v{t0}, 1, v{g}")
    A(f"v_mul_u32_u24 v{rw0}, {UB}, v{t0}")
    A(f"v_lshrrev_b32 v{t1}, 2, v{j}")
    A(f"v_lshl_add_u32 v{t1}, v{hh_}, 3, v{t1}")
    A(f"v_mul_u32_u24 v{t1}, 96, v{t1}")
    A(f"v_add_u32 v{rw0}, v{rw0}, v{t1}")
    A(f"v_and_b32 v{t1}, 3, v{j}")
    A(f"v_lshl_add_u32 v{rw0}, v{t1}, 3, v{rw0}")
    A(f"s_lshl_b32 s{sACT}, s{sTP}, 15")
    A(f"s_add_u32 s{sACT}, s{sACT}, {OFF_LN}")

    def act(p):
        pre = [f"s_add_u32 s31, s{sROT}, {p}", "s_and_b32 s31, s31, 7", "s_lshl_b32 s31, s31, 12",
               f"s_add_u32 s31, s31, s{sACT}"]
        o = []
        for kk in range(4):
            ins = f"buffer_load_dwordx4 {vr(X+16*p+4*kk,4)}, v{l16}, {S(WS)}, s31 offen offset:{1024*kk} sc1"
            o.append(pre + [ins] if not o else [ins])
        return o

    def act_retry(p):
        return [[y.replace("s31", "s33") for y in x] for x in act(p)]

    def wreads(n):
        o = []
        for c in range(3):
            x = [f"ds_read_b64_tr_b16 {vr(Fw[n%3]+4*c+2*e4,2)}, v{rw} offset:{(n%4)*1536 + e4*384 + 32*c}" for e4 in range(2)]
            if c == 0 and n % 4 == 0:
                x = [f"s_add_u32 s32, s{sROT}, {n//4}", "s_and_b32 s32, s32, 7", "s_mul_i32 s32, s32, 6144",
                     f"v_add_u32 v{rw}, s32, v{rw0}"] + x
            o.append(x)
        return o

    V.wait("lnst")
    V.wait("wc")
    A("s_barrier")
    stamp(A, "Cdrain")
    if PRE[2]:
        A(f"s_sleep {PRE[2]}")
    V.do("a0", act(0))
    emit(A, wreads(0))
    emit(A, wreads(1))
    A("s_barrier")
    V.do("hst", hst)
    AH = int(E("AH", "3"))
    for p in range(1, AH):
        V.do(f"a{p}", act(p))
    DP = int(E("DP", "2"))
    bgq = []
    for n in range(32):
        p = n // 4
        if n % 4 == 0:
            for tag, x in [y for y in bgq if y[0] == f"a{p}"]:
                raise AssertionError
            V.wait(f"a{p}")
            RT.check(f"pa{p}", rng(X + 16 * p, 16), t0, act_retry(p))
            stamp(A, f"a{p}")
            if p + AH < 8:
                bgq += [(f"a{p+AH}", x) for x in act(p + AH)]
            if p == DP:
                for i in range(3):
                    bgq += [(f"d{i}", x) for x in dma_d(i)]
            if p == 2:
                A(f"v_mov_b32 v{t2}, {CNT}")
                A(f"v_mov_b32 v{junk}, 1")
                A("s_mov_b64 exec, 1")
                A(f"ds_add_rtn_u32 v{junk}, v{t2}, v{junk}")
                A("s_mov_b64 exec, -1")
            if p == 3:
                A(f"v_readfirstlane_b32 s60, v{junk}")
                A("s_cmp_lg_u32 s60, 7")
                A("s_cbranch_scc1 L_nofc")
                A("s_lshl_b32 s60, s2, 7")
                A(f"s_add_u32 s60, s60, {OFF_FC}")
                emit(A, flag_store("s60"))
                A.label("L_nofc")
        nx = wreads(n + 2) if n + 2 < 32 else [[], [], []]
        for c in range(3):
            younger = 2 * (2 - c) + (6 if n + 1 < 32 else 0) + (2 * c if n + 2 < 32 else 0)
            A(f"s_waitcnt lgkmcnt({younger})")
            a = acc + 16 * c
            A(f"{MF3} {vr(a,16)}, {vr(Fw[n%3]+4*c,4)}, {vr(X+4*n,4)}, {'0' if n == 0 else vr(a,16)}")
            emit(A, nx[c])
            if (c == 1 or (c == 2 and len(bgq) > 3)) and bgq:
                tag, x = bgq.pop(0)
                V.do(tag, x)
    assert not bgq
    stamp(A, "Dmain")
    A("s_barrier")
    stamp(A, "Dbar")
    RE = RA(base)
    rd = RE.get(2)
    RE.n = hh_ + 1
    vh, vo, vhr, lrw, vfl, vflv = (RE.get() for _ in range(6))
    hres = RE.get(4, 4)
    RE.n = max(RE.n, acc + 48 + 8)
    Fd = [RE.get(8, 4), RE.get(8, 4), RE.get(8, 4)]
    Hf = RE.get(88, 4)
    ea = acc
    assert RE.hi <= 256 and hres + 4 <= acc
    A(f"s_and_b32 s60, s{sW}, 3")
    A(f"s_lshr_b32 s61, s{sW}, 2")
    A(f"s_lshl_b32 s16, s{sTM}, 1")
    A("s_add_u32 s16, s16, s61")
    A("s_mul_i32 s61, s60, 22")
    A("s_mul_i32 s61, s61, 43691")
    A("s_lshr_b32 s61, s61, 17")
    A(f"v_and_b32 v{t1}, 7, v{lane}")
    A(f"v_add_u32 v{t1}, s61, v{t1}")
    A(f"v_min_u32 v{t1}, 28, v{t1}")
    A(f"v_lshrrev_b32 v{vfl}, 3, v{t1}")
    A(f"v_lshlrev_b32 v{vfl}, 1, v{vfl}")
    A(f"v_and_b32 v{t1}, 7, v{t1}")
    A(f"v_lshl_add_u32 v{vfl}, v{t1}, 5, v{vfl}")
    A("s_lshr_b32 s61, s16, 5")
    A("s_and_b32 s62, s16, 24")
    A("s_add_u32 s61, s61, s62")
    A(f"v_add_u32 v{vfl}, s61, v{vfl}")
    A("s_lshr_b32 s61, s16, 3")
    A("s_and_b32 s62, s16, 7")
    A("s_lshl_b32 s62, s62, 5")
    A("s_add_u32 s61, s61, s62")
    A(f"v_and_b32 v{t1}, 3, v{lane}")
    A(f"v_lshl_add_u32 v{t1}, v{t1}, 3, s61")
    A(f"v_cmp_gt_u32 vcc, 8, v{lane}")
    A(f"v_cndmask_b32 v{vfl}, v{t1}, v{vfl}, vcc")
    A(f"v_lshlrev_b32 v{vfl}, 7, v{vfl}")
    A(f"s_mov_b32 s24, {OFF_FC}")
    V.do("fl", f"buffer_load_dword v{vflv}, v{vfl}, {S(WS)}, s24 offen sc1")
    bgq = []
    for i in range(3, 10):
        bgq += [(f"d{i}", x) for x in dma_d(i)]
    ep = [f"s_mov_b32 s60, {fhex(K1)}", f"v_mov_b32 v{t2}, {fhex(K0)}"]
    q = X
    for c in range(3):
        gA = acc + c * 16
        uA = gA + 8
        for i in range(4):
            ep.append(f"v_pk_mul_f32 {p2(q+2*i)}, {p2(gA+2*i)}, {p2(gA+2*i)}")
        for i in range(4):
            ep.append(f"v_pk_fma_f32 {p2(q+2*i)}, {p2(q+2*i)}, s[60:61], {p2(t2)} op_sel_hi:[1,0,0]")
        for i in range(4):
            ep.append(f"v_pk_mul_f32 {p2(q+2*i)}, {p2(q+2*i)}, {p2(gA+2*i)}")
        for i in range(4):
            ep.append(f"v_exp_f32 v{q+2*i}, v{q+2*i}")
            ep.append(f"v_exp_f32 v{q+2*i+1}, v{q+2*i+1}")
            ep.append(f"v_pk_mul_f32 {p2(uA+2*i)}, {p2(uA+2*i)}, {p2(gA+2*i)}")
        for i in range(4):
            ep.append(f"v_pk_add_f32 {p2(q+2*i)}, {p2(q+2*i)}, 1.0 op_sel_hi:[1,0]")
        for i in range(8):
            ep.append(f"v_rcp_f32 v{q+i}, v{q+i}")
        if c:
            ep.append(f"v_add_u32 v{voHH}, 65536, v{voHH}")
        for i in range(4):
            ep.append(f"v_pk_mul_f32 {p2(q+2*i)}, {p2(q+2*i)}, {p2(uA+2*i)}")
        for i in range(4):
            ep.append(f"v_cvt_pk_bf16_f32 v{gA+i}, v{q+2*i}, v{q+2*i+1}")
        for i in range(4):
            ep.append(f"v_min_u32 v{gA+i}, -2, v{gA+i}")
        ep.append(f"buffer_store_dwordx4 {vr(gA,4)}, v{voHH}, {S(SHH)}, 0 offen sc1")
    EPS = int(E("EPS", "16"))
    for i, m in enumerate(ep):
        if i % EPS == 0 and bgq:
            tag, x = bgq.pop(0)
            V.do(tag, x)
        V.do("hhst", m)
    stamp(A, "Depi")
    while bgq:
        tag, x = bgq.pop(0)
        V.do(tag, x)

    A(f"s_and_b32 s60, s{sW}, 3")
    A(f"s_mul_i32 s61, s60, {22*65536}")
    A(f"v_add_u32 v{vh}, s61, v{l16}")
    A("s_lshl_b32 s18, s16, 12")
    A("s_lshl_b32 s21, s16, 15")
    A("s_lshl_b32 s16, s16, 10")
    A("s_add_u32 s17, s16, 65536")
    A(f"v_lshrrev_b32 v{t1}, 2, v{j}")
    A(f"v_lshl_add_u32 v{t1}, v{hh_}, 2, v{t1}")
    A(f"v_lshlrev_b32 v{t1}, 7, v{t1}")
    A(f"v_and_b32 v{t2}, 1, v{g}")
    A(f"v_lshl_add_u32 v{t1}, v{t2}, 5, v{t1}")
    A(f"v_and_b32 v{t2}, 1, v{j}")
    A(f"v_lshl_add_u32 v{t1}, v{t2}, 4, v{t1}")
    A(f"v_bfe_u32 v{t2}, v{j}, 1, 1")
    A(f"v_lshl_add_u32 v{t1}, v{t2}, 3, v{t1}")
    A(f"v_lshrrev_b32 v{t2}, 3, v{j}")
    A(f"v_lshl_add_u32 v{t1}, v{t2}, 6, v{t1}")
    A(f"s_mul_i32 s19, s60, {3*4096}")
    A(f"s_add_u32 s19, s19, {G0B}")
    A(f"s_mul_i32 s20, s60, {7*4096}")
    A("s_sub_u32 s20, s19, s20")
    A(f"v_add_u32 v{rd}, s19, v{t1}")
    A(f"v_xor_b32 v{rd+1}, 64, v{rd}")
    A(f"v_and_b32 v{t1}, 31, v{lane}")
    A(f"v_lshlrev_b32 v{vhr}, 10, v{t1}")
    A(f"v_lshl_add_u32 v{vhr}, v{hh_}, 9, v{vhr}")
    A(f"s_lshr_b32 s61, s{sY}, 4")
    A("s_lshl_b32 s61, s61, 8")
    A("s_add_u32 s21, s21, s61")
    A(f"s_and_b32 s61, s{sY}, 12")
    A("s_add_u32 s61, s61, s60")
    A("s_lshl_b32 s61, s61, 4")
    A("s_add_u32 s21, s21, s61")
    A(f"s_add_u32 s21, s21, {OFF_H}")
    A(f"v_and_b32 v{t2}, 7, v{lane}")
    A(f"v_lshlrev_b32 v{vo}, 18, v{t2}")
    A(f"v_lshrrev_b32 v{t2}, 3, v{t1}")
    A(f"v_lshl_add_u32 v{vo}, v{t2}, 10, v{vo}")
    A(f"v_lshl_add_u32 v{vo}, v{hh_}, 4, v{vo}")
    A("s_lshl_b32 s61, s60, 5")
    A("s_add_u32 s18, s18, s61")
    A(f"s_add_u32 s18, s18, s{sN0}")
    A(f"s_lshr_b32 s61, s{sW}, 2")
    A("s_lshl_b32 s61, s61, 11")
    A(f"v_add_u32 v{lrw}, s61, v{l16}")

    def hload(i, va=None, sg=31):
        va = t3 if va is None else va
        pre = idx_of(i, sg) + [f"s_lshl_b32 s{sg}, s{sg}, 17", f"v_add_u32 v{va}, s{sg}, v{vh}"]
        return [pre + [f"buffer_load_dwordx4 {vr(Hf+8*i,4)}, v{va}, {S(SHH)}, s16 offen sc1"],
                [f"buffer_load_dwordx4 {vr(Hf+8*i+4,4)}, v{va}, {S(SHH)}, s17 offen sc1"]]

    def dreads(n):
        i, Tl = n // 2, n % 2
        off = (0 if i == 10 else (i if i < 3 else i - 3)) * 4096 + Tl * 2048
        o = []
        for ct in range(2):
            x = [f"ds_read_b64_tr_b16 {vr(Fd[n%3]+4*ct+2*e4,2)}, v{rd+ct} offset:{off + 1024*e4}" for e4 in range(2)]
            if n == 6:
                x = [f"v_subrev_u32 v{rd+ct}, s20, v{rd+ct}"] + x
            if n == 20:
                x = [f"v_add_u32 v{rd+ct}, s20, v{rd+ct}"] + x
            o.append(x)
        return o

    A("s_waitcnt vmcnt(0)")
    V.q = []
    A(f"v_mov_b32 v{t2}, v{vflv}")
    poll_flags("fc", vfl, "s24", first=False)
    A("s_barrier")
    stamp(A, "Edrain")
    if PRE[3]:
        A(f"s_sleep {PRE[3]}")
    EA = int(E("EA", "4"))
    for i in range(EA):
        V.do(f"h{i}", hload(i))
        if i == 0:
            emit(A, dreads(0))
            emit(A, dreads(1))
    bgq = []
    for n in range(22):
        i = n // 2
        if n % 2 == 0:
            V.wait(f"h{i}")
            RT.check(f"pe{i}", rng(Hf + 8 * i, 8), t0, hload(i, t2, 33))
            stamp(A, f"e{i}")
            if i + EA < 11:
                bgq += [(f"h{i+EA}", x) for x in hload(i + EA)]
            if i + EA == 11:
                bgq += [("hres", f"buffer_load_dwordx4 {vr(hres,4)}, v{vhr}, {S(WS)}, s21 offen sc1")]
        if n == 8:
            A("s_barrier")
            pre = idx_of(10, 22) + ["s_lshl_b32 s22, s22, 15", f"v_add_u32 v{vtmp}, s22, v{vwd}"]
            for k in range(4):
                x = (pre if k == 0 else []) + [f"s_add_u32 m0, s19, {1024*k}", f"s_mov_b32 s22, {8192*k}",
                                               f"buffer_load_dwordx4 v{vtmp}, {S(SWD)}, s22 offen lds"]
                V.do("d10", x)
        if n == 18:
            V.wait("d10")
        nx = dreads(n + 2) if n + 2 < 22 else [[], []]
        for ct in range(2):
            younger = 2 * (1 - ct) + (4 if n + 1 < 22 else 0) + (2 * ct if n + 2 < 22 else 0)
            A(f"s_waitcnt lgkmcnt({younger})")
            a = ea + 16 * ct
            A(f"{MF3} {vr(a,16)}, {vr(Fd[n%3]+4*ct,4)}, {vr(Hf+4*n,4)}, {'0' if n == 0 else vr(a,16)}")
            emit(A, nx[ct])
            if ct == 0 and bgq:
                tag, x = bgq.pop(0)
                V.do(tag, x)
    stamp(A, "Emain")
    own = Hf
    hf = Hf + 8
    red = Hf + 16
    lhi, lmid = vh, vfl
    A(f"v_add_u32 v{lhi}, {G0B}, v{lrw}")
    A(f"v_add_u32 v{lmid}, {2*28672}, v{lrw}")
    V.wait("hres")
    emit(A, unpack_l(hf, hres))
    A(f"s_and_b32 s60, s{sW}, 3")

    def raddr(o, sl):
        if sl < 2:
            return lhi, o * 12288 + (sl + 1) * 4096
        return (lrw, o * 28672) if o < 2 else (lmid, (o - 2) * 28672)
    for kq in range(4):
        if kq < 3:
            A(f"s_cmp_lg_u32 s60, {kq}")
            A(f"s_cbranch_scc1 L_rv{kq+1}")
        for o in range(4):
            a = ea + 8 * o
            if o != kq:
                reg, off = raddr(o, (kq - o - 1) & 3)
                for u in range(2):
                    A(f"ds_write_b128 v{reg}, {vr(a+4*u,4)} offset:{off + u*1024}")
        a = ea + 8 * kq
        for k in range(4):
            A(f"v_pk_mov_b32 {p2(own+2*k)}, {p2(a+2*k)}, {p2(a+2*k)} op_sel:[0,1]")
        A("s_waitcnt lgkmcnt(0)")
        A("s_barrier")
        for sl in range(3):
            reg, off = raddr(kq, sl)
            for u in range(2):
                A(f"ds_read_b128 {vr(red+8*sl+4*u,4)}, v{reg} offset:{off + u*1024}")
        if kq < 3:
            A("s_branch L_rvd")
            A.label(f"L_rv{kq+1}")
    A.label("L_rvd")
    for sl in range(3):
        A(f"s_waitcnt lgkmcnt({2*(2-sl)})")
        for k in range(4):
            A(f"v_pk_add_f32 {p2(own+2*k)}, {p2(own+2*k)}, {p2(red+8*sl+2*k)}")
    o = red
    for k in range(4):
        A(f"v_cvt_pk_bf16_f32 v{o+k}, v{own+2*k}, v{own+2*k+1}")
    emit(A, unpack_l(own, o))
    for k in range(4):
        A(f"v_pk_add_f32 {p2(own+2*k)}, {p2(own+2*k)}, {p2(hf+2*k)}")
    for k in range(4):
        A(f"v_cvt_pk_bf16_f32 v{o+k}, v{own+2*k}, v{own+2*k+1}")
    A(f"buffer_store_dwordx4 {vr(o,4)}, v{vo}, {S(SOUT)}, s18 offen")
    stamp(A, "Eout")
    if E("DBGST"):
        A("s_load_dwordx2 s[34:35], s[0:1], 64")
        A("s_waitcnt vmcnt(0) lgkmcnt(0)")
        A("s_memrealtime s[94:95]")
        A("s_memtime s[96:97]")
        A("s_waitcnt lgkmcnt(0)")
        A(f"s_cmp_lg_u32 s2, {E('DBGST')}")
        A("s_cbranch_scc1 L_end")
        A(f"s_cmp_lg_u32 s{sW}, 0")
        A("s_cbranch_scc1 L_end")
        srd(A, 28, 34, 256)
        A(f"v_mov_b32 v{t0}, 0")
        A("s_mov_b64 exec, 1")
        for i in range(16):
            A("s_sub_u32 s100, s96, s98" if i == 0 else f"s_sub_u32 s100, s{64+2*i}, s64")
            A(f"v_mov_b32 v{t1}, s100")
            A(f"buffer_store_dword v{t1}, v{t0}, s[28:31], 0 offen offset:{4*i}")
        A("s_waitcnt vmcnt(0)")
    elif STAMPS:
        A("s_load_dwordx2 s[34:35], s[0:1], 72")
        A("s_waitcnt vmcnt(0) lgkmcnt(0)")
        A("s_memrealtime s[94:95]")
        A("s_waitcnt lgkmcnt(0)")
        srd(A, 96, 34, 16 * MB, 32 * MB)
        A(f"v_and_b32 v{t0}, 0x1c0, v0")
        A("s_lshl_b32 s100, s2, 9")
        A("s_mov_b64 exec, 1")
        for i in range(16):
            A(f"v_mov_b32 v{t1}, s{64+2*i}")
            A(f"buffer_store_dword v{t1}, v{t0}, s[96:99], s100 offen offset:{4*i}")
        A("s_waitcnt vmcnt(0)")
    A.label("L_end")
    A("s_endpgm")
    RT.flush()
    A.label("L_codeend")
    return name, A.finalize(), 256, (256, 512, 163840), 0


def build_s(as_list=False):
    name, body, nv, (gx, bx, lds), ag = gen_S()
    out = HEADER
    if STAMPS:
        out += "; STAMPSET " + ",".join(STAMPSET) + "\n"
    if as_list:
        out += f"; @launch kernel={name} grid=({gx},1,1) block=({bx},1,1) lds={lds}\n"
    else:
        out += f"; @launch grid=({gx},1,1) block=({bx},1,1) lds={lds}\n"
    out += '.amdgcn_target "amdgcn-amd-amdhsa--gfx950"\n' + body + kernel_desc(name, nv, agprs=ag)
    return out


if __name__ == "__main__":
    path = sys.argv[1] if len(sys.argv) > 1 else f"cdna_kernels/{NAME}.s"
    s = build_s(as_list=len(sys.argv) > 2)
    open(path, "w").write(s)
    print("lines", s.count("\n"))
```

```python
import os, sys
os.environ.setdefault("RSL", "4")
from gen import *
import gen_s
from gen_s import gen_S

def gen_P(name, mode, fl, kb, off):
    A = Asm(); kernel_header(A, name)
    A("s_cmp_ge_u32 s2, 256"); A(f"s_cbranch_scc1 L{name}_end")
    A("s_load_dwordx2 s[6:7], s[0:1], 72")
    A("v_lshlrev_b32 v1, 4, v0")
    A(f"s_mul_i32 s3, s2, {kb*1024}")
    for k in range(4):
        A(f"v_mov_b32 v{4+k}, 0")
    A("s_waitcnt lgkmcnt(0)")
    srd(A, 8, 6, 128 * MB, off * MB)
    for i in range(kb // 8):
        if mode == "r":
            A(f"buffer_load_dwordx4 v[{8+4*i}:{11+4*i}], v1, s[8:11], s3 offen {fl}")
        else:
            A(f"buffer_store_dwordx4 v[4:7], v1, s[8:11], s3 offen {fl}")
        A("s_add_u32 s3, s3, 8192")
    A("s_waitcnt vmcnt(0)")
    A.label(f"L{name}_end")
    A("s_endpgm")
    return name, A.finalize(), 128, (256, 512, 0)
q = gen_S(); m = q[0]
for nm, mode, fl, kb, off in (("f1", "r", "", 0, 64), ("f2", "r", "", 128, 64), ("f3", "r", "nt", 128, 64), ("f4", "w", "sc1", 128, 64), ("f5", "r", "", 128, 220), ("f6", "w", "sc1", 128, 220)):
    p = gen_P("kp_kernel", mode, fl, kb, off)
    open(nm + ".s", "w").write(build([q, p], [m, "kp_kernel"]))
```

```python
import sys, math, os
sys.path.insert(0, "work")
from asmlib import Asm, fhex
from gen import RA, vr, srd, kernel_header, kernel_desc, NAME, MB, W_BYTES, WG_BYTES, STAMPS
from gen_p import emit, zipl, unpack_l, ln_l, cmul4_l, S, K0, K1, MF32, MF16, HEADER
from gen_q import VM, Retry, maxtree, rng, stamp, STAMPSET, OPT, SPIN

E = os.environ.get
OFF_U, OFF_V, OFF_H, OFF_LN, OFF_HH = 16 * MB, 20 * MB, 4 * MB, 6 * MB, 8 * MB
OFF_TAG = 14 * MB + 8192
OFF_FC = 14 * MB + 65536
TAG_STEP = 0x9E3779B9
HH_BYTES = 86 * 65536
PSL = int(E("PSL", "2"))
RSL = int(E("RSL", "0"))
PRE = [int(x) for x in E("PRE", "0,0,0,0").split(",")]
NT = " nt" if "nt" in OPT else ""
WSOFF = int(E("WSOFF", "0")) * MB
WS, SWI, SX, SWF, SWM, SWD, SOUT, SHH = 4, 8, 36, 40, 44, 48, 52, 56
sT, sW, sX, sY, sLO = 3, 12, 13, 14, 15
sTP, sFT, sROT, sWSRC, sWDST, sLNB = 16, 17, 18, 19, 20, 21
MF3 = "v_mfma_f32_32x32x16_bf16"
UB = 49152
G0B = 98304
SC = 122880
CNT = 98432
p2 = lambda a: vr(a, 2)


class RetryT(Retry):
    def check_tag(self, tag, tregs, vt, reload):
        self.blocks.append((tag, ("tag", tregs), vt, reload))
        emit(self.A, self.test(("tag", tregs), vt))
        self.A(f"s_cbranch_vccnz L{tag}_r")
        self.A.label(f"L{tag}_ok")

    @staticmethod
    def test(regs, vt):
        if regs[0] == "tag":
            a, b = regs[1]
            return [f"v_cmp_ne_u32 vcc, s{sT}, v{a}", f"v_cmp_ne_u32 s[62:63], s{sT}, v{b}", "s_or_b64 vcc, vcc, s[62:63]"]
        return maxtree(regs, vt)

    def flush(self):
        A = self.A
        for tag, regs, vt, reload in self.blocks:
            A.label(f"L{tag}_r")
            A("s_mov_b32 s35, 0")
            A.label(f"L{tag}_r2")
            A("s_mov_b64 exec, vcc")
            if RSL:
                A(f"s_sleep {RSL}")
            emit(A, reload)
            A("s_waitcnt vmcnt(0)")
            emit(A, self.test(regs, vt))
            A("s_add_u32 s35, s35, 1")
            A(f"s_cmp_gt_u32 s35, {SPIN}")
            A(f"s_cbranch_scc1 L{tag}_x")
            A(f"s_cbranch_vccnz L{tag}_r2")
            A.label(f"L{tag}_x")
            A("s_mov_b64 exec, -1")
            A(f"s_branch L{tag}_ok")


def gen_S():
    A = Asm()
    V = VM(A)
    RT = RetryT(A)
    name = NAME + "_kernel"
    kernel_header(A, name)
    R = RA(1)
    lane, g, j, gf, jf, c512, junk = (R.get() for _ in range(7))
    t0 = R.get(4, 2)
    t1, t2, t3 = t0 + 1, t0 + 2, t0 + 3
    voV, vln, vwd, l16, voHH = (R.get() for _ in range(5))
    vw = R.get(3)
    xC = R.get(4, 4)
    base = R.n
    ones = 252

    def poll_flags(tag, vaddr, soff, first=True):
        A("s_mov_b32 s63, 0")
        if not first:
            A(f"s_branch L_{tag}_c")
        A.label(f"L_{tag}_r")
        A(f"buffer_load_dword v{t2}, v{vaddr}, {S(WS)}, {soff} offen sc1")
        A("s_waitcnt vmcnt(0)")
        A.label(f"L_{tag}_c")
        A(f"v_cmp_ne_u32 vcc, s{sT}, v{t2}")
        A(f"s_cbranch_vccz L_{tag}_x")
        A("s_mov_b64 exec, vcc")
        A("s_add_u32 s63, s63, 1")
        A(f"s_cmp_gt_u32 s63, {SPIN}")
        A(f"s_cbranch_scc1 L_{tag}_x")
        if PSL:
            A(f"s_sleep {PSL}")
        A(f"s_branch L_{tag}_r")
        A.label(f"L_{tag}_x")
        A("s_mov_b64 exec, -1")

    def flag_store(soff):
        return [f"v_mov_b32 v{t2}, s{sT}", f"v_lshlrev_b32 v{t3}, 25, v{lane}",
                f"buffer_store_dword v{t2}, v{t3}, {S(WS)}, {soff} offen sc1"]

    A("s_cmp_ge_u32 s2, 256")
    A("s_cbranch_scc1 L_end")
    stamp(A, "start")
    if E("DBGST"):
        A("s_memtime s[98:99]")
    A(f"s_load_dwordx2 s[{WS}:{WS+1}], s[0:1], 72")
    A(f"s_load_dwordx2 s[{SX}:{SX+1}], s[0:1], 0")
    A(f"v_lshrrev_b32 v{t0}, 6, v0")
    A(f"v_and_b32 v{lane}, 63, v0")
    A(f"v_readfirstlane_b32 s{sW}, v{t0}")
    A(f"s_and_b32 s{sX}, s2, 7")
    A(f"s_lshr_b32 s{sY}, s2, 3")
    A("s_getpc_b64 s[60:61]")
    A.label("L_pc")
    A(f"s_lshl_b32 s62, s{sY}, 3")
    A(f"v_add_lshl_u32 v{t2}, v0, s62, 7")
    A.raw(f"    v_min_u32 v{t2}, L_codeend-L_pc-4, v{t2}")
    A(f"v_mov_b32 v{t3}, s61")
    A(f"v_add_co_u32 v{t2}, vcc, s60, v{t2}")
    A(f"v_addc_co_u32 v{t3}, vcc, 0, v{t3}, vcc")
    A("v_cmp_gt_u32 vcc, 8, v0")
    A("s_and_saveexec_b64 s[62:63], vcc")
    A("s_cbranch_execz L_nocp")
    A(f"global_load_dword v{junk}, {p2(t2)}, off")
    A.label("L_nocp")
    A("s_mov_b64 exec, -1")
    A(f"s_and_b32 s60, s{sW}, 4")
    A("s_lshl_b32 s60, s60, 1")
    A("s_add_u32 s61, s60, 8")
    A("s_add_u32 s62, s60, 32")
    A(f"s_load_dwordx2 s[{SWF}:{SWF+1}], s[0:1], s61")
    A(f"s_load_dwordx2 s[{SWM}:{SWM+1}], s[0:1], s62")
    A(f"s_load_dwordx2 s[{SWD}:{SWD+1}], s[0:1], 48")
    A(f"s_load_dwordx2 s[{SOUT}:{SOUT+1}], s[0:1], 56")
    for d, n in ((WS, 32 * MB), (SX, 2 * MB), (SWF, W_BYTES), (SWM, WG_BYTES), (SWD, WG_BYTES),
                 (SOUT, 2 * MB), (SHH, HH_BYTES)):
        A(f"s_mov_b32 s{d+2}, {n:#x}")
        A(f"s_mov_b32 s{d+3}, 0x20000")
    RA_ = RA(base)
    xr = RA_.get(4, 4)
    xf = RA_.get(8, 4)
    tl = RA_.get(8, 2)
    Bc = [RA_.get(4, 4), RA_.get(4, 4)]
    Bs = [RA_.get(4, 4), RA_.get(4, 4)]
    twc, tws = RA_.get(8, 4), RA_.get(8, 4)
    A2, A2n = RA_.get(4, 4), RA_.get(4, 4)
    R8 = RA_.get(2, 2)
    za = RA_.get(4, 4)
    Dre = [RA_.get(4, 4), RA_.get(4, 4)]
    Dim = [RA_.get(4, 4), RA_.get(4, 4)]
    P = [RA_.get(4, 4), RA_.get(4, 4)]
    Zn = RA_.get(4, 4)
    ang = RA_.get(8, 4)
    vx, voC, voU, vcnt, vone = (RA_.get() for _ in range(5))
    lz, lzr, lw, lru = (RA_.get() for _ in range(4))
    A(f"v_lshrrev_b32 v{g}, 4, v{lane}")
    A(f"v_and_b32 v{j}, 15, v{lane}")
    A(f"s_lshl_b32 s{sLO}, s{sX}, 5")
    A(f"s_add_u32 s{sLO}, s{sLO}, s{sY}")
    A(f"v_lshlrev_b32 v{voV}, 4, v0")
    A(f"v_lshlrev_b32 v{l16}, 4, v{lane}")
    A(f"v_lshlrev_b32 v{vx}, 18, v{t0}")
    A(f"v_and_b32 v{voC}, 1, v{g}")
    A(f"v_lshlrev_b32 v{voC}, 9, v{voC}")
    A(f"v_lshl_add_u32 v{voC}, v{j}, 5, v{voC}")
    A(f"v_lshrrev_b32 v{t1}, 1, v{g}")
    A(f"v_lshl_add_u32 v{voC}, v{t1}, 4, v{voC}")
    A(f"v_add_u32 v{vx}, v{voC}, v{vx}")
    for i in range(4):
        A(f"v_mov_b32 v{ones+i}, -1")
    A(f"v_lshrrev_b32 v{t0}, 3, v0")
    A(f"v_lshlrev_b32 v{vln}, 9, v{t0}")
    A(f"v_and_b32 v{t0}, 7, v0")
    A(f"v_lshl_add_u32 v{vln}, v{t0}, 4, v{vln}")
    A(f"s_lshr_b32 s{sLNB}, s{sLO}, 2")
    A(f"s_lshl_b32 s{sLNB}, s{sLNB}, 15")
    A(f"s_and_b32 s60, s{sLO}, 3")
    A("s_lshl_b32 s60, s60, 7")
    A(f"s_add_u32 s{sLNB}, s{sLNB}, s60")
    A(f"s_add_u32 s{sLNB}, s{sLNB}, {OFF_LN}")
    A(f"s_lshl_b32 s22, s{sLO}, 14")
    A(f"s_add_u32 s22, s22, {OFF_U}")
    A(f"s_lshl_b32 s23, s{sLO}, 10")
    A("s_lshl_b32 s24, s2, 14")
    A(f"s_add_u32 s24, s24, {OFF_V}")
    A(f"v_mov_b32 v{c512}, {fhex(1.0/512)}")
    A(f"v_cvt_f32_u32 v{gf}, v{g}")
    A(f"v_cvt_f32_u32 v{jf}, v{j}")
    A(f"v_mul_f32 v{gf}, 4.0, v{gf}")
    A(f"v_mul_f32 v{t1}, {fhex(1/32)}, v{jf}")
    for e in range(8):
        a_add = e if e < 4 else 12 + e
        A(f"v_add_f32 v{t2}, {fhex(float(a_add))}, v{gf}")
        A(f"v_mul_f32 v{ang+e}, v{t2}, v{t1}")
    A("s_waitcnt lgkmcnt(0)")
    stamp(A, "karg")
    clr = [f"buffer_store_dwordx4 {vr(ones,4)}, v{voV}, {S(WS)}, s22 offen sc1",
           f"buffer_store_dwordx4 {vr(ones,4)}, v{voV}, {S(WS)}, s24 offen sc1",
           f"buffer_store_dwordx4 {vr(ones,4)}, v{vln}, {S(WS)}, s{sLNB} offen sc1"]
    V.do("x", f"buffer_load_dwordx4 {vr(xC,4)}, v{vx}, {S(SX)}, s23 offen{NT}")
    if WSOFF:
        A(f"s_add_u32 s{WS}, s{WS}, {WSOFF}")
        A(f"s_addc_u32 s{WS+1}, s{WS+1}, 0")
    A(f"s_add_u32 s62, s{WS}, {OFF_TAG}")
    A(f"s_addc_u32 s63, s{WS+1}, 0")
    A(f"s_load_dword s{sT}, s[62:63], 0")
    A(f"s_add_u32 s{SHH}, s{WS}, {OFF_HH}")
    A(f"s_addc_u32 s{SHH+1}, s{WS+1}, 0")
    A(f"v_lshrrev_b32 v{t1}, 3, v{lane}")
    A(f"v_mul_u32_u24 v{t1}, {514*8}, v{t1}")
    A(f"v_and_b32 v{t2}, 7, v{lane}")
    A(f"v_min_u32 v{t2}, 4, v{t2}")
    A(f"v_lshl_add_u32 v{t1}, v{t2}, 7, v{t1}")
    A(f"s_mul_i32 s60, s{sX}, 514")
    A(f"s_mul_i32 s61, s{sY}, {514*64}")
    A("s_add_u32 s61, s61, s60")
    A(f"s_and_b32 s60, s{sW}, 3")
    A("s_barrier")
    stamp(A, "bar1")
    if "noclr" not in OPT:
        V.do("lnclr", clr[2])
    A("s_cmp_lg_u32 s60, 0")
    A("s_cbranch_scc1 L_notch")
    A(f"buffer_load_ushort v{junk}, v{t1}, {S(SWF)}, s61 offen{NT}")
    A.label("L_notch")
    if "mtouch" in OPT:
        A(f"s_cmp_lg_u32 s{sW}, 2")
        A("s_cbranch_scc1 L_notch3")
        A(f"v_min_u32 v{t1}, 42, v{lane}")
        A(f"v_lshlrev_b32 v{t1}, 7, v{t1}")
        A(f"s_mul_i32 s61, s2, {43*128}")
        A(f"buffer_load_dword v{junk}, v{t1}, {S(SWD)}, s61 offen")
        A.label("L_notch3")
    A(f"s_and_b32 s{sTP}, s{sX}, 1")
    A(f"s_lshl_b32 s{sTP}, s{sTP}, 2")
    A(f"s_and_b32 s60, s{sY}, 3")
    A(f"s_add_u32 s{sTP}, s{sTP}, s60")
    A(f"s_lshl_b32 s{sTP}, s{sTP}, 3")
    A(f"s_add_u32 s{sTP}, s{sTP}, s{sW}")
    A(f"s_lshr_b32 s{sFT}, s{sX}, 1")
    A(f"s_add_u32 s61, s{sFT}, 28")
    A(f"s_mul_i32 s{sFT}, s{sFT}, 7")
    A(f"s_lshr_b32 s{sROT}, s{sY}, 2")
    A(f"s_add_u32 s{sFT}, s{sFT}, s{sROT}")
    A(f"s_cmp_eq_u32 s{sROT}, 7")
    A(f"s_cselect_b32 s{sFT}, s61, s{sFT}")
    A(f"s_and_b32 s60, s{sW}, 3")
    A(f"s_mul_i32 s{sWSRC}, s60, {32*2752}")
    A(f"s_mul_i32 s61, s{sFT}, 96")
    A(f"s_add_u32 s{sWSRC}, s{sWSRC}, s61")
    A(f"s_mul_i32 s{sWDST}, s60, 3072")
    A(f"s_lshr_b32 s60, s{sW}, 2")
    A(f"s_mul_i32 s60, s60, {UB}")
    A(f"s_add_u32 s{sWDST}, s{sWDST}, s60")
    A(f"s_and_b32 s61, s{sW}, 4")
    for i in range(3):
        A(f"v_add_u32 v{t0}, {64*i}, v{lane}")
        A(f"v_mul_u32_u24 v{t1}, 171, v{t0}")
        A(f"v_lshrrev_b32 v{t1}, 10, v{t1}")
        A(f"v_xor_b32 v{t2}, s61, v{t1}")
        A(f"v_mul_u32_u24 v{vw+i}, 2752, v{t2}")
        A(f"v_mul_u32_u24 v{t1}, 96, v{t1}")
        A(f"v_sub_u32 v{vw+i}, v{vw+i}, v{t1}")
        A(f"v_add_u32 v{vw+i}, v{vw+i}, v{l16}")
    A(f"s_mul_i32 s60, s{sFT}, {3*65536}")
    A(f"s_lshl_b32 s61, s{sTP}, 10")
    A("s_add_u32 s60, s60, s61")
    A(f"v_add_u32 v{voHH}, s60, v{l16}")

    def dma_w(q):
        out = []
        if "nowt" in OPT:
            return out
        for i in range(3):
            x = []
            if i == 0:
                x += [f"s_add_u32 s32, s{sY}, {q}", "s_and_b32 s32, s32, 3", f"s_mul_i32 s33, s32, {128*96}",
                      f"s_add_u32 s33, s33, s{sWDST}", f"s_mul_i32 s32, s32, {128*2752}",
                      f"s_add_u32 s32, s32, s{sWSRC}"]
            x.append("s_mov_b32 m0, s33")
            x.append(f"buffer_load_dwordx4 v{vw+i}, {S(SWM)}, s32 offen offset:{1024*i} lds")
            out.append(x)
        return out

    def hhclr(c):
        if "noclr" in OPT:
            return []
        return [f"v_add_u32 v{junk}, {65536*c}, v{voHH}",
                f"buffer_store_dwordx4 {vr(ones,4)}, v{junk}, {S(SHH)}, 0 offen sc1"]

    V.do("w0", dma_w(0))
    for e in range(8):
        A(f"v_cos_f32 v{twc+e}, v{ang+e}")
        A(f"v_sin_f32 v{tws+e}, v{ang+e}")
    for q in range(4):
        A(f"v_cvt_pk_bf16_f32 v{Bc[0]+q}, v{twc+2*q}, v{twc+2*q+1}")
        A(f"v_cvt_pk_bf16_f32 v{Bs[0]+q}, -v{tws+2*q}, -v{tws+2*q+1}")
    for q in range(4):
        A(f"v_xor_b32 v{Bc[1]+q}, 0x80000000, v{Bc[0]+q}")
        A(f"v_xor_b32 v{Bs[1]+q}, 0x80000000, v{Bs[0]+q}")
    A(f"v_lshrrev_b32 v{t2}, 1, v{j}")
    A(f"v_cvt_f32_u32 v{t2}, v{t2}")
    A(f"v_and_b32 v{t3}, 1, v{j}")
    A(f"v_cvt_f32_u32 v{t3}, v{t3}")
    A(f"v_mul_f32 v{t3}, {fhex(0.25)}, v{t3}")
    A(f"v_mul_f32 v{t1}, {fhex(1/16)}, v{t2}")
    for q in range(4):
        A(f"v_add_f32 v{ang+q}, {fhex(float(q))}, v{gf}")
        A(f"v_fma_f32 v{ang+q}, v{ang+q}, v{t1}, v{t3}")
    A(f"v_cvt_f32_u32 v{t0}, s{sLO}")
    A(f"v_mul_f32 v{t1}, {fhex(1/2048)}, v{t2}")
    A(f"v_fmamk_f32 v{t0}, v{gf}, {fhex(128.0)}, v{t0}")
    A(f"v_fma_f32 v{ang+4}, v{t0}, v{t1}, v{t3}")
    A(f"v_add_f32 v{t0}, {fhex(256.0)}, v{t0}")
    A(f"v_fma_f32 v{ang+5}, v{t0}, v{t1}, v{t3}")
    for q in range(6):
        A(f"v_cos_f32 v{twc+q}, v{ang+q}")
        A(f"v_sin_f32 v{tws+q}, v{ang+q}")
    for q in range(4):
        A(f"v_cvt_pk_bf16_f32 v{A2+q}, v{twc+q}, v{tws+q}")
    for p in range(2):
        A(f"v_cvt_pk_bf16_f32 v{R8+p}, v{twc+4+p}, v{tws+4+p}")
    for q in range(4):
        A(f"v_mov_b32 v{A2n+q}, {0x3F80 if q % 2 == 0 else 0xBF80:#x}")
    for t in range(2):
        A(f"v_add_f32 v{t1}, {fhex(16.0*t)}, v{jf}")
        A(f"v_mul_f32 v{t1}, {fhex(1/512)}, v{t1}")
        for r in range(4):
            A(f"v_add_f32 v{t2}, {fhex(float(r))}, v{gf}")
            A(f"v_mul_f32 v{ang+4*t+r}, v{t2}, v{t1}")
    for e in range(8):
        A(f"v_cos_f32 v{twc+e}, v{ang+e}")
        A(f"v_sin_f32 v{tws+e}, v{ang+e}")
    ZL = SC + 8192
    ZP = 1024 + 64
    A(f"s_lshl_b32 s60, s{sW}, 10")
    A(f"s_add_u32 s60, s60, {SC}")
    A(f"v_add_u32 v{lz}, s60, v{voC}")
    A(f"v_lshl_add_u32 v{lzr}, v{lane}, 3, s60")
    A(f"v_lshlrev_b32 v{lw}, 8, v{g}")
    A(f"v_lshl_add_u32 v{lw}, v{j}, 2, v{lw}")
    A(f"s_mul_i32 s60, s{sW}, {ZP}")
    A(f"s_add_u32 s60, s60, {ZL - 4}")
    A(f"v_add_u32 v{lw}, s60, v{lw}")
    A(f"s_lshl_b32 s60, s{sW}, 8")
    A(f"v_lshlrev_b32 v{voU}, 12, v{g}")
    A(f"v_lshl_add_u32 v{voU}, v{j}, 4, v{voU}")
    A(f"v_add_u32 v{voU}, s60, v{voU}")
    A(f"v_mul_u32_u24 v{lru}, {2*ZP}, v{g}")
    A(f"v_lshl_add_u32 v{lru}, v{j}, 3, v{lru}")
    A(f"s_lshl_b32 s60, s{sW}, 7")
    A(f"s_add_u32 s60, s60, {ZL}")
    A(f"v_add_u32 v{lru}, s60, v{lru}")
    A(f"v_cmp_eq_u32 vcc, 0, v{lane}")
    A(f"v_add_u32 v{vone}, 1024, v{lw}")
    A(f"v_cndmask_b32 v{vone}, v{lw}, v{vone}, vcc")
    stamp(A, "const")
    A("s_waitcnt lgkmcnt(0)")
    A(f"s_add_u32 s{sT}, s{sT}, {TAG_STEP:#x}")

    V.wait("x")
    stamp(A, "xrdy")

    emit(A, unpack_l(xf, xC) + ln_l(xf, tl, 27, xr, c512))
    stamp(A, "Aln")
    A(f"ds_write_b128 v{lz}, {vr(xr,4)}")
    A("s_waitcnt lgkmcnt(0)")
    A(f"ds_read_b64_tr_b16 {vr(za,2)}, v{lzr}")
    A(f"ds_read_b64_tr_b16 {vr(za+2,2)}, v{lzr} offset:512")
    A("s_waitcnt lgkmcnt(0)")
    for t in range(2):
        A(f"{MF32} {vr(Dre[t],4)}, {vr(za,4)}, {vr(Bc[t],4)}, 0")
        A(f"{MF32} {vr(Dim[t],4)}, {vr(za,4)}, {vr(Bs[t],4)}, 0")
    for t in range(2):
        emit(A, cmul4_l(P[t], Dre[t], Dim[t], twc + 4 * t, tws + 4 * t, tl + 4 * t, True))
        A(f"{MF32} {vr(Dre[t],4)}, {vr(A2,4)}, {vr(P[t],4)}, 0")
        if t == 0:
            A(f"{MF32} {vr(Zn,4)}, {vr(A2n,4)}, {vr(P[0],4)}, 0")
    A(f"v_cndmask_b32 v{Dre[0]}, v{Dre[0]}, v{Zn}, vcc")
    for t in range(2):
        for q in range(2):
            A(f"v_cvt_pk_bf16_f32 v{P[t]+q}, v{Dre[t]+2*q}, v{Dre[t]+2*q+1}")
        if t == 0:
            A(f"ds_write_b32 v{vone}, v{P[0]}")
            A(f"ds_write_b32 v{lw}, v{P[0]+1} offset:128")
        else:
            A(f"ds_write2_b32 v{lw}, v{P[t]}, v{P[t]+1} offset0:{16*t} offset1:{16*t+32}")
    stamp(A, "Afft")
    A(f"v_mov_b32 v{xf+2}, s{sT}")
    A(f"v_mov_b32 v{xf+6}, s{sT}")
    A("s_waitcnt lgkmcnt(0)")
    A("s_barrier")
    stamp(A, "Abar")
    A(f"ds_read_b64 {vr(za,2)}, v{lru}")
    A(f"ds_read_b64 {vr(za+2,2)}, v{lru} offset:{ZP}")
    A("s_waitcnt lgkmcnt(0)")
    A(f"v_swap_b32 v{za+1}, v{za+2}")
    for u in range(2):
        A(f"{MF16} {vr(Dre[u],4)}, {vr(R8,2)}, {vr(za+2*u,2)}, 0")
    for p in range(2):
        for u in range(2):
            A(f"v_cvt_pk_bf16_f32 v{xf+4*p+u}, v{Dre[u]+2*p}, v{Dre[u]+2*p+1}")
        V.do("ust", f"buffer_store_dwordx4 {vr(xf+4*p,4)}, v{voU}, {S(WS)}, s22 offen offset:{2048*p} sc1")
    stamp(A, "Adone")

    RB = RA(base)
    In = RB.get(4, 4)
    Fre, Fim, Gre, Gim = RB.get(4, 4), RB.get(4, 4), RB.get(4, 4), RB.get(4, 4)
    twc, tws = RB.get(4, 4), RB.get(4, 4)
    Wre, Wim = RB.get(4, 4), RB.get(4, 4)
    Dre, Dim = RB.get(4, 4), RB.get(4, 4)
    tb = RB.get(4, 2)
    ang = RB.get(4)
    Ld = RB.get(8, 4)
    Wraw = RB.get(5, 4)
    vul, lbw, lbr, lwr, vwo = (RB.get() for _ in range(5))
    WL = G0B
    BL = SC + 32768
    A(f"v_and_b32 v{vwo}, 255, v0")
    A(f"v_mul_u32_u24 v{vwo}, {514*8}, v{vwo}")
    A(f"s_mul_i32 s26, s{sX}, 514")
    A(f"s_lshl_b32 s27, s{sY}, 4")
    A("s_add_u32 s27, s27, s26")
    A("s_add_u32 s27, s27, 2")
    A("s_and_b32 s28, s27, 2")
    A("s_and_b32 s27, s27, 0xfffffffc")
    A("s_barrier")
    if "nofil" not in OPT:
        V.do("w", f"buffer_load_dwordx4 {vr(Wraw,4)}, v{vwo}, {S(SWF)}, s27 offen")
        V.do("w", f"buffer_load_dword v{Wraw+4}, v{vwo}, {S(SWF)}, s27 offen offset:16")
    A(f"v_lshrrev_b32 v{t1}, 2, v0")
    A(f"v_and_b32 v{t2}, 3, v0")
    A(f"v_lshlrev_b32 v{vul}, 14, v{t1}")
    A(f"v_lshl_add_u32 v{vul}, v{t2}, 4, v{vul}")
    A(f"s_lshl_b32 s23, s{sX}, 11")
    A(f"s_lshl_b32 s60, s{sY}, 6")
    A("s_add_u32 s23, s23, s60")
    A(f"s_add_u32 s23, s23, {OFF_U}")
    A(f"s_add_u32 s25, s23, {2*MB}")
    A(f"v_and_b32 v{lbw}, 0x40, v{t1}")
    A(f"v_and_b32 v{t3}, 15, v{t1}")
    A(f"v_lshl_add_u32 v{lbw}, v{t3}, 2, v{lbw}")
    A(f"v_bfe_u32 v{t3}, v{t1}, 4, 2")
    A(f"v_add_u32 v{lbw}, v{lbw}, v{t3}")
    A(f"v_lshl_add_u32 v{lbw}, v{t2}, 9, v{lbw}")
    A(f"v_lshlrev_b32 v{lbw}, 2, v{lbw}")
    A(f"v_add_u32 v{lbw}, {BL}, v{lbw}")
    A(f"v_add_u32 v{lbr}, {BL}, v{voV}")
    for i in range(4):
        A(f"v_mov_b32 v{Wre+i}, 0")
        A(f"v_mov_b32 v{Wim+i}, 0")
    A(f"v_lshl_add_u32 v{lwr}, v{g}, 6, v{j}")
    A(f"v_mul_f32 v{t1}, {fhex(1/16)}, v{jf}")
    for q in range(4):
        A(f"v_add_f32 v{t2}, {fhex(float(q))}, v{gf}")
        A(f"v_mul_f32 v{ang+q}, v{t2}, v{t1}")
    for q in range(4):
        A(f"v_cos_f32 v{twc+q}, v{ang+q}")
        A(f"v_sin_f32 v{tws+q}, v{ang+q}")
    for q in range(4):
        A(f"v_cvt_pk_bf16_f32 v{Fre+q}, v{twc+q}, v{tws+q}")
        A(f"v_cvt_pk_bf16_f32 v{Fim+q}, -v{tws+q}, v{twc+q}")
        A(f"v_cvt_pk_bf16_f32 v{Gre+q}, v{twc+q}, -v{tws+q}")
        A(f"v_cvt_pk_bf16_f32 v{Gim+q}, v{tws+q}, v{twc+q}")
    for q in range(4):
        A(f"v_mul_f32 v{ang+q}, {fhex(1/16)}, v{ang+q}")
    for q in range(4):
        A(f"v_cos_f32 v{twc+q}, v{ang+q}")
        A(f"v_sin_f32 v{tws+q}, v{ang+q}")
    A(f"v_lshlrev_b32 v{lwr}, 5, v{lwr}")
    A(f"s_lshl_b32 s60, s{sW}, 1")
    A("s_add_u32 s60, s60, s28")
    A(f"s_add_u32 s60, s60, {WL}")
    A(f"v_add_u32 v{lwr}, s60, v{lwr}")
    A(f"v_lshlrev_b32 v{t1}, 5, v0")
    A(f"v_add_u32 v{t1}, {WL}, v{t1}")
    V.wait("ust")
    stamp(A, "Udrain")
    if PRE[0]:
        A(f"s_sleep {PRE[0]}")
    ld = [f"buffer_load_dwordx4 {vr(Ld+4*i,4)}, v{vul}, {S(WS)}, s{23+2*i} offen sc1" for i in range(2)]
    V.do("u", ld)
    V.wait("w")
    A(f"ds_write_b128 v{t1}, {vr(Wraw,4)}")
    A(f"ds_write_b32 v{t1}, v{Wraw+4} offset:16")
    V.wait("u")
    stamp(A, "Ufirst")
    RT.check_tag("pu", (Ld + 2, Ld + 6), t0, ld)
    stamp(A, "Urdy")
    A(f"ds_write2st64_b32 v{lbw}, v{Ld}, v{Ld+1} offset0:0 offset1:4")
    A(f"ds_write2st64_b32 v{lbw}, v{Ld+4}, v{Ld+5} offset0:2 offset1:6")
    A("s_waitcnt lgkmcnt(0)")
    A("s_barrier")
    A(f"ds_read_b128 {vr(In,4)}, v{lbr}")
    for r in range(4):
        A(f"ds_read_u16_d16_hi v{Wre+r}, v{lwr} offset:{512*r}")
        A(f"ds_read_u16_d16_hi v{Wim+r}, v{lwr} offset:{8192+512*r}")
    A("s_waitcnt lgkmcnt(8)")
    A(f"{MF32} {vr(Dre,4)}, {vr(In,4)}, {vr(Fre,4)}, 0")
    A(f"{MF32} {vr(Dim,4)}, {vr(In,4)}, {vr(Fim,4)}, 0")
    V.do("hhclr", hhclr(0))
    if "dtouch" in OPT:
        A(f"v_min_u32 v{t1}, 343, v0")
        A(f"v_lshlrev_b32 v{t1}, 7, v{t1}")
        A(f"s_mul_i32 s60, s{sY}, {43*1024}")
        V.do("dt", f"buffer_load_dword v{junk}, v{t1}, {S(SWD)}, s60 offen")
    emit(A, cmul4_l(In, Dre, Dim, twc, tws, tb, True))
    A(f"{MF32} {vr(Dre,4)}, {vr(Fre,4)}, {vr(In,4)}, 0")
    A(f"{MF32} {vr(Dim,4)}, {vr(Fim,4)}, {vr(In,4)}, 0")
    A("s_waitcnt lgkmcnt(0)")
    emit(A, cmul4_l(In, Dre, Dim, Wre, Wim, tb, False))
    A(f"{MF32} {vr(Dre,4)}, {vr(In,4)}, {vr(Gre,4)}, 0")
    A(f"{MF32} {vr(Dim,4)}, {vr(In,4)}, {vr(Gim,4)}, 0")
    emit(A, cmul4_l(In, Dre, Dim, twc, tws, tb, False))
    A(f"{MF32} {vr(Dre,4)}, {vr(Gre,4)}, {vr(In,4)}, 0")
    A(f"{MF32} {vr(Dim,4)}, {vr(Gim,4)}, {vr(In,4)}, 0")
    for r in range(4):
        A(f"v_cvt_pk_bf16_f32 v{In+r}, v{Dre+r}, v{Dim+r}")
    A(f"ds_write_b128 v{lbr}, {vr(In,4)}")
    stamp(A, "Bfft")
    V.wait("lnclr", "lgkmcnt(0)")
    A("s_barrier")
    A(f"ds_read2st64_b32 {vr(Ld,2)}, v{lbw} offset0:0 offset1:4")
    A(f"ds_read2st64_b32 {vr(Ld+4,2)}, v{lbw} offset0:2 offset1:6")
    A("s_add_u32 s60, s24, 8192")
    A("s_waitcnt lgkmcnt(1)")
    V.do("vst", f"buffer_store_dwordx4 {vr(Ld,4)}, v{voV}, {S(WS)}, s24 offen sc1")
    A("s_waitcnt lgkmcnt(0)")
    V.do("vst", f"buffer_store_dwordx4 {vr(Ld+4,4)}, v{voV}, {S(WS)}, s60 offen sc1")
    stamp(A, "Bdone")
    A("s_barrier")
    NV = int(E("NV", "6"))
    wrest = dma_w(1) + dma_w(2) + dma_w(3)
    V.do("wv", wrest[:NV])
    A(f"s_or_b32 s60, s2, s{sW}")
    A("s_cmp_lg_u32 s60, 0")
    A("s_cbranch_scc1 L_notag")
    A(f"s_mov_b32 s60, {OFF_TAG}")
    emit(A, flag_store("s60"))
    A.label("L_notag")

    RC = RA(base)
    B2 = [[RC.get(4, 4), RC.get(4, 4)], [RC.get(4, 4), RC.get(4, 4)]]
    twc, tws = RC.get(8, 4), RC.get(8, 4)
    ang = RC.get(8, 4)
    P = [RC.get(4, 4), RC.get(4, 4)]
    RC.n = max(RC.n, RB.hi)
    L = RC.get(8, 4)
    xf = RC.get(8, 4)
    tl = RC.get(8, 2)
    R8 = RC.get(2, 2)
    B1re, B1im = RC.get(2, 2), RC.get(2, 2)
    Dre = [RC.get(4, 4), RC.get(4, 4)]
    Dim = [RC.get(4, 4), RC.get(4, 4)]
    Y = [RC.get(4, 4), RC.get(4, 4)]
    vvl, lcw, lcr, lcr0, lnw, lnr = (RC.get() for _ in range(6))
    A(f"v_lshrrev_b32 v{t2}, 1, v{j}")
    A(f"v_cvt_f32_u32 v{t2}, v{t2}")
    A(f"v_and_b32 v{t3}, 1, v{j}")
    A(f"v_cvt_f32_u32 v{t3}, v{t3}")
    A(f"v_mul_f32 v{t3}, {fhex(-0.25)}, v{t3}")
    A(f"v_cvt_f32_u32 v{t0}, s{sLO}")
    A(f"v_fmamk_f32 v{t0}, v{t2}, {fhex(256.0)}, v{t0}")
    A(f"v_mul_f32 v{t0}, {fhex(1/2048)}, v{t0}")
    A(f"v_mul_f32 v{t1}, 0.5, v{gf}")
    A(f"v_fma_f32 v{ang}, v{t1}, v{t0}, v{t3}")
    A(f"v_add_f32 v{ang+1}, v{ang}, v{t0}")
    A(f"v_mul_f32 v{t0}, {fhex(1/16)}, v{jf}")
    A(f"v_mul_f32 v{ang+2}, v{t1}, v{t0}")
    A(f"v_add_f32 v{ang+3}, v{ang+2}, v{t0}")
    A(f"v_mul_f32 v{t0}, {fhex(1/32)}, v{jf}")
    for r in range(4):
        A(f"v_add_f32 v{t2}, {fhex(float(r))}, v{gf}")
        A(f"v_mul_f32 v{ang+4+r}, v{t2}, v{t0}")
    for e in range(8):
        A(f"v_cos_f32 v{twc+e}, v{ang+e}")
        A(f"v_sin_f32 v{tws+e}, v{ang+e}")
    A(f"v_lshlrev_b32 v{vvl}, 15, v{g}")
    A(f"v_lshrrev_b32 v{t1}, 2, v{j}")
    A(f"v_lshl_add_u32 v{vvl}, v{t1}, 17, v{vvl}")
    A(f"v_and_b32 v{t1}, 3, v{j}")
    A(f"v_lshl_add_u32 v{vvl}, v{t1}, 4, v{vvl}")
    A(f"s_lshl_b32 s23, s{sW}, 19")
    A(f"s_lshl_b32 s60, s{sLO}, 6")
    A("s_add_u32 s23, s23, s60")
    A(f"s_add_u32 s23, s23, {OFF_V}")
    A("s_add_u32 s25, s23, 16384")
    for p in range(2):
        A(f"v_cvt_pk_bf16_f32 v{R8+p}, v{twc+p}, -v{tws+p}")
        A(f"v_cvt_pk_bf16_f32 v{B1re+p}, v{twc+2+p}, -v{tws+2+p}")
        A(f"v_cvt_pk_bf16_f32 v{B1im+p}, v{tws+2+p}, v{twc+2+p}")
    for r in range(4):
        A(f"v_cvt_pk_bf16_f32 v{B2[0][0]+r}, v{twc+4+r}, -v{tws+4+r}")
    A(f"v_and_b32 v{t3}, 1, v{j}")
    A(f"v_mul_u32_u24 v{t3}, 0x8000, v{t3}")
    A(f"v_lshl_or_b32 v{t3}, v{t3}, 16, v{t3}")
    for r in range(4):
        A(f"v_xor_b32 v{B2[1][0]+r}, v{t3}, v{B2[0][0]+r}")
    for t in range(2):
        for r in range(4):
            if r % 2:
                A(f"v_xor_b32 v{B2[t][1]+r}, 0x80008000, v{B2[t][0]+r}")
            else:
                A(f"v_mov_b32 v{B2[t][1]+r}, v{B2[t][0]+r}")
    V.wait("vst")
    stamp(A, "Vdrain")
    if PRE[1]:
        A(f"s_sleep {PRE[1]}")
    lds_ = [f"buffer_load_dwordx4 {vr(L+4*p,4)}, v{vvl}, {S(WS)}, s{23+2*p} offen sc1" for p in range(2)]
    V.do("v", lds_)
    A(f"v_mul_f32 v{t0}, {fhex(1/512)}, v{jf}")
    for t in range(2):
        for r in range(4):
            A(f"v_add_f32 v{t2}, {fhex(float(16*t+r))}, v{gf}")
            A(f"v_mul_f32 v{ang+4*t+r}, v{t2}, v{t0}")
    bg = [[], [], [], hhclr(1)] + wrest[NV:NV+1] + [hhclr(2)] + wrest[NV+1:] if "w3c" in OPT else [[], [], [], hhclr(1), hhclr(2)]

    def bgone():
        if bg:
            V.do("bg", bg.pop(0))
    for e in range(8):
        A(f"v_cos_f32 v{twc+e}, v{ang+e}")
        A(f"v_sin_f32 v{tws+e}, v{ang+e}")
    bgone()
    A(f"v_mov_b32 v{t2}, {fhex(2.0**-19)}")
    for e in range(4):
        A(f"v_pk_mul_f32 {p2(twc+2*e)}, {p2(twc+2*e)}, {p2(t2)} op_sel_hi:[1,0]")
        A(f"v_pk_mul_f32 {p2(tws+2*e)}, {p2(tws+2*e)}, {p2(t2)} op_sel_hi:[1,0]")
    LNL = SC + 8192
    A(f"v_lshlrev_b32 v{lcw}, 11, v{g}")
    A(f"v_lshl_add_u32 v{lcw}, v{j}, 3, v{lcw}")
    A(f"s_lshl_b32 s60, s{sW}, 7")
    A(f"s_add_u32 s60, s60, {SC}")
    A(f"v_add_u32 v{lcw}, s60, v{lcw}")
    A(f"v_lshlrev_b32 v{lcr}, 8, v{g}")
    A(f"v_lshl_add_u32 v{lcr}, v{j}, 2, v{lcr}")
    A(f"s_lshl_b32 s60, s{sW}, 10")
    A(f"s_add_u32 s60, s60, {SC - 4}")
    A(f"v_add_u32 v{lcr}, s60, v{lcr}")
    A(f"v_cmp_eq_u32 vcc, 0, v{lane}")
    A(f"v_add_u32 v{lcr0}, 1024, v{lcr}")
    A(f"v_cndmask_b32 v{lcr0}, v{lcr}, v{lcr0}, vcc")
    bgone()
    A(f"v_lshlrev_b32 v{lnw}, 8, v{j}")
    A(f"v_lshrrev_b32 v{t1}, 1, v{g}")
    A(f"v_lshl_add_u32 v{lnw}, v{t1}, 7, v{lnw}")
    A(f"v_and_b32 v{t1}, 1, v{g}")
    A(f"v_lshl_add_u32 v{lnw}, v{t1}, 12, v{lnw}")
    A(f"v_xor_b32 v{t1}, s{sW}, v{j}")
    A(f"v_and_b32 v{t1}, 7, v{t1}")
    A(f"v_lshl_add_u32 v{lnw}, v{t1}, 4, v{lnw}")
    A(f"v_add_u32 v{lnw}, {LNL}, v{lnw}")
    A(f"v_and_b32 v{lnr}, 0x70, v0")
    A(f"v_xor_b32 v{lnr}, v{lnr}, v{voV}")
    A(f"v_add_u32 v{lnr}, {LNL}, v{lnr}")
    emit(A, unpack_l(xf, xC))
    bgone()
    V.wait("v")
    stamp(A, "Vfirst")
    RT.check_tag("pv", (L + 2, L + 6), t0, lds_)
    stamp(A, "Vrdy")
    A(f"v_swap_b32 v{L+1}, v{L+4}")
    for u in range(2):
        A(f"{MF16} {vr(Y[u],4)}, {vr(R8,2)}, {vr(L+4*u,2)}, 0")
    A(f"v_cmp_ne_u32 vcc, 0, v{lane}")
    A(f"v_mov_b32 v{t2}, {fhex(2.0**-20)}")
    for p in range(2):
        for u in range(2):
            A(f"v_cvt_pk_bf16_f32 v{P[0]+2*p+u}, v{Y[u]+2*p}, v{Y[u]+2*p+1}")
        A(f"ds_write_b64 v{lcw}, {vr(P[0]+2*p,2)} offset:{1024*p}")
    A("s_waitcnt lgkmcnt(0)")
    A("s_barrier")
    stamp(A, "Cbar")
    A(f"ds_read2_b32 {vr(L+2,2)}, v{lcr} offset0:16 offset1:48")
    A(f"ds_read_b32 v{L}, v{lcr0}")
    A(f"ds_read_b32 v{L+1}, v{lcr} offset:128")
    bgone()
    A("s_waitcnt lgkmcnt(2)")
    A(f"{MF16} {vr(Dre[1],4)}, {vr(L+2,2)}, {vr(B1re,2)}, 0")
    A(f"{MF16} {vr(Dim[1],4)}, {vr(L+2,2)}, {vr(B1im,2)}, 0")
    A("s_waitcnt lgkmcnt(0)")
    A(f"v_readlane_b32 s26, v{L}, 0")
    A(f"v_cndmask_b32 v{L}, 0, v{L}, vcc")
    A("s_lshl_b32 s26, s26, 16")
    A(f"{MF16} {vr(Dre[0],4)}, {vr(L,2)}, {vr(B1re,2)}, 0")
    A(f"{MF16} {vr(Dim[0],4)}, {vr(L,2)}, {vr(B1im,2)}, 0")
    A(f"v_mul_f32 v{Y[0]}, s26, v{t2}")
    A(f"v_sub_f32 v{Y[0]+1}, 0, v{Y[0]}")
    A(f"v_pk_mov_b32 {p2(Y[0]+2)}, {p2(Y[0])}, {p2(Y[0])} op_sel:[0,1]")
    A(f"v_pk_mov_b32 {p2(Y[1])}, {p2(Y[0])}, {p2(Y[0])} op_sel:[0,1]")
    A(f"v_pk_mov_b32 {p2(Y[1]+2)}, {p2(Y[0])}, {p2(Y[0])} op_sel:[0,1]")
    for t in (1, 0):
        emit(A, cmul4_l(P[t], Dre[t], Dim[t], twc + 4 * t, tws + 4 * t, tl + 4 * t, False))
        for u in range(2):
            A(f"{MF32} {vr(Y[u],4)}, {vr(P[t],4)}, {vr(B2[t][u],4)}, {vr(Y[u],4)}")
        bgone()
    yb, hb, yf = P[0], P[1], Dre[0]
    assert Dre[1] == Dre[0] + 4
    for u in range(2):
        for q in range(2):
            A(f"v_cvt_pk_bf16_f32 v{yb+2*u+q}, v{Y[u]+2*q}, v{Y[u]+2*q+1}")
    A(f"v_permlane16_swap_b32 v{yb}, v{yb+2}")
    A(f"v_permlane16_swap_b32 v{yb+1}, v{yb+3}")
    emit(A, unpack_l(yf, yb))
    for i in range(4):
        A(f"v_pk_add_f32 {p2(xf+2*i)}, {p2(xf+2*i)}, {p2(yf+2*i)}")
    for i in range(4):
        A(f"v_cvt_pk_bf16_f32 v{hb+i}, v{xf+2*i}, v{xf+2*i+1}")
    bgone()
    A(f"ds_write_b128 v{lnw}, {vr(hb,4)} offset:8192")
    emit(A, unpack_l(xf, hb))
    for i, m in enumerate(ln_l(xf, tl, 26, yb, c512)):
        A(m)
        if i % 11 == 5:
            bgone()
    for i in range(4):
        A(f"v_min_u32 v{yb+i}, -2, v{yb+i}")
    A(f"ds_write_b128 v{lnw}, {vr(yb,4)}")
    while bg:
        bgone()
    stamp(A, "Cln")
    A("s_waitcnt lgkmcnt(0)")
    A("s_barrier")
    A(f"ds_read_b128 {vr(Dre[0],4)}, v{lnr}")
    A(f"ds_read_b128 {vr(Dre[1],4)}, v{lnr} offset:8192")
    A(f"s_sub_u32 s60, s{sLNB}, {OFF_LN - OFF_H}")
    A("s_waitcnt lgkmcnt(1)")
    V.do("lnst", f"buffer_store_dwordx4 {vr(Dre[0],4)}, v{vln}, {S(WS)}, s{sLNB} offen sc1")
    stamp(A, "Cdone")
    A("s_waitcnt lgkmcnt(0)")
    A("s_barrier")
    V.do("hst", f"buffer_store_dwordx4 {vr(Dre[1],4)}, v{vln}, {S(WS)}, s60 offen sc1")
    if "w3c" not in OPT:
        V.do("wc", wrest[NV:])

    RD = RA(base)
    rw0, rwa, rwb, vtmp, hh_ = (RD.get() for _ in range(5))
    Fw = [RD.get(12, 4), RD.get(12, 4), RD.get(12, 4)]
    acc = RD.get(48, 4)
    X = RD.get(128, 4)
    assert RD.hi <= 256, RD.hi
    rd, vh, vo, rd0, lrw, vfl, vflv = xC, xC + 2, xC + 3, gf, jf, c512, junk
    sROTE, sACT, sH0, sOO, sHO, sG0, sZ, sTH, sRH, sRL = 26, 21, 23, 25, 27, 19, 20, 24, 28, 29
    A(f"v_lshrrev_b32 v{hh_}, 5, v{lane}")
    A(f"s_lshr_b32 s{sRH}, s{sROT}, 1")
    A(f"s_and_b32 s{sRL}, s{sROT}, 1")
    A(f"s_and_b32 s60, s{sW}, 3")
    A(f"s_and_b32 s61, s{sY}, 3")
    A(f"s_lshl_b32 s35, s{sX}, 3")
    A("s_add_u32 s35, s35, s61")
    A(f"s_and_b32 s62, s{sW}, 4")
    A("s_add_u32 s35, s35, s62")
    A(f"s_lshl_b32 s{sTH}, s62, 8")
    A(f"s_lshr_b32 s34, s{sY}, 2")
    A("s_mul_i32 s61, s61, 6")
    A(f"s_mul_i32 s{sROTE}, s34, 3")
    A(f"s_add_u32 s{sROTE}, s{sROTE}, s61")
    A(f"s_add_u32 s{sROTE}, s{sROTE}, s{sX}")
    for _ in range(2):
        A(f"s_cmp_ge_u32 s{sROTE}, 22")
        A("s_cselect_b32 s61, 22, 0")
        A(f"s_sub_u32 s{sROTE}, s{sROTE}, s61")
    A("s_lshl_b32 s34, s34, 7")
    A(f"v_lshrrev_b32 v{t1}, 3, v{lane}")
    A(f"v_lshlrev_b32 v{vwd}, 10, v{t1}")
    A(f"v_and_b32 v{t1}, 2, v{t1}")
    A(f"v_lshlrev_b32 v{t1}, 1, v{t1}")
    A(f"v_and_b32 v{t2}, 7, v{lane}")
    A(f"v_xor_b32 v{t1}, v{t1}, v{t2}")
    A(f"v_lshl_add_u32 v{vwd}, v{t1}, 4, v{vwd}")
    A(f"s_mul_i32 s61, s60, {22*16384}")
    A("s_add_u32 s61, s61, s34")
    A(f"v_add_u32 v{vwd}, s61, v{vwd}")
    A(f"s_lshl_b32 s{sG0}, s60, 14")
    A(f"s_add_u32 s{sG0}, s{sG0}, {G0B}")
    A("s_lshr_b32 s61, s60, 1")
    A(f"s_mul_i32 s{sZ}, s61, {UB}")
    A("s_and_b32 s61, s60, 1")
    A("s_mul_i32 s61, s61, 6144")
    A(f"s_add_u32 s{sZ}, s{sZ}, s61")
    A(f"s_lshl_b32 s30, s{sTH}, 3")
    A(f"v_and_b32 v{t0}, 1, v{g}")
    A(f"v_mul_u32_u24 v{rw0}, {UB + 384}, v{t0}")
    A(f"v_lshrrev_b32 v{t1}, 2, v{j}")
    A(f"v_lshl_add_u32 v{t1}, v{hh_}, 3, v{t1}")
    A(f"v_mul_u32_u24 v{t1}, 96, v{t1}")
    A(f"v_add_u32 v{rw0}, v{rw0}, v{t1}")
    A(f"v_and_b32 v{t1}, 3, v{j}")
    A(f"v_lshl_add_u32 v{rw0}, v{t1}, 3, v{rw0}")
    A(f"v_mul_u32_u24 v{vln}, 768, v{t0}")
    A(f"v_sub_u32 v{vln}, 384, v{vln}")
    A(f"s_lshl_b32 s{sACT}, s{sTP}, 15")
    A(f"s_add_u32 s{sACT}, s{sACT}, {OFF_LN}")
    A("s_mul_i32 s61, s60, 22")
    A("s_mul_i32 s61, s61, 43691")
    A("s_lshr_b32 s61, s61, 17")
    A(f"v_and_b32 v{t1}, 7, v{lane}")
    A(f"v_add_u32 v{t1}, s61, v{t1}")
    A(f"v_min_u32 v{t1}, 28, v{t1}")
    A(f"v_mul_u32_u24 v{t2}, 37, v{t1}")
    A(f"v_lshrrev_b32 v{t2}, 8, v{t2}")
    A(f"v_mul_u32_u24 v{vfl}, {7*32-2}, v{t2}")
    A(f"v_lshlrev_b32 v{t2}, 5, v{t1}")
    A(f"v_sub_u32 v{vfl}, v{t2}, v{vfl}")
    A(f"v_cmp_eq_u32 vcc, 28, v{t1}")
    A(f"v_mov_b32 v{t2}, {7*32}")
    A(f"v_cndmask_b32 v{vfl}, v{vfl}, v{t2}, vcc")
    A("s_lshr_b32 s61, s35, 5")
    A("s_and_b32 s62, s35, 24")
    A("s_add_u32 s61, s61, s62")
    A(f"v_add_u32 v{vfl}, s61, v{vfl}")
    A("s_lshr_b32 s61, s35, 3")
    A("s_and_b32 s62, s35, 7")
    A("s_lshl_b32 s62, s62, 5")
    A("s_add_u32 s61, s61, s62")
    A(f"v_and_b32 v{t1}, 3, v{lane}")
    A(f"v_lshl_add_u32 v{t1}, v{t1}, 3, s61")
    A(f"v_cmp_gt_u32 vcc, 8, v{lane}")
    A(f"v_cndmask_b32 v{vfl}, v{t1}, v{vfl}, vcc")
    A(f"v_lshlrev_b32 v{vfl}, 7, v{vfl}")
    A(f"v_add_u32 v{vfl}, {OFF_FC}, v{vfl}")
    A(f"s_mul_i32 s61, s60, {22*65536}")
    A(f"v_add_u32 v{vh}, s61, v{l16}")
    A(f"s_lshl_b32 s{sOO}, s35, 12")
    A(f"s_lshl_b32 s{sHO}, s35, 15")
    A(f"s_lshl_b32 s{sH0}, s35, 10")
    A(f"v_lshrrev_b32 v{t1}, 2, v{j}")
    A(f"v_lshl_add_u32 v{t1}, v{hh_}, 2, v{t1}")
    A(f"v_lshlrev_b32 v{t1}, 7, v{t1}")
    A(f"v_and_b32 v{t2}, 1, v{g}")
    A(f"v_lshl_add_u32 v{t1}, v{t2}, 5, v{t1}")
    A(f"v_and_b32 v{t2}, 1, v{j}")
    A(f"v_lshl_add_u32 v{t1}, v{t2}, 4, v{t1}")
    A(f"v_bfe_u32 v{t2}, v{j}, 1, 1")
    A(f"v_lshl_add_u32 v{t1}, v{t2}, 3, v{t1}")
    A(f"v_lshrrev_b32 v{t2}, 3, v{j}")
    A(f"v_lshl_add_u32 v{rd0}, v{t2}, 6, v{t1}")
    A("s_lshl_b32 s61, s34, 5")
    A(f"s_add_u32 s{sHO}, s{sHO}, s61")
    A("s_lshl_b32 s61, s60, 10")
    A(f"s_add_u32 s{sHO}, s{sHO}, s61")
    A(f"s_add_u32 s{sHO}, s{sHO}, {OFF_H}")
    A(f"v_and_b32 v{t2}, 7, v{lane}")
    A(f"v_lshlrev_b32 v{vo}, 18, v{t2}")
    A(f"v_bfe_u32 v{t2}, v{lane}, 3, 2")
    A(f"v_lshl_add_u32 v{vo}, v{t2}, 10, v{vo}")
    A(f"v_lshl_add_u32 v{vo}, v{hh_}, 4, v{vo}")
    A("s_lshl_b32 s61, s60, 5")
    A(f"s_add_u32 s{sOO}, s{sOO}, s61")
    A(f"s_add_u32 s{sOO}, s{sOO}, s34")
    A(f"s_lshl_b32 s61, s{sTH}, 1")
    A(f"s_add_u32 s61, s61, {G0B + 4096}")
    A(f"v_add_u32 v{lrw}, s61, v{l16}")

    def idx_of(n, sd):
        return [f"s_add_u32 s{sd}, s{sROTE}, {n}", f"s_cmp_ge_u32 s{sd}, 22", "s_cselect_b32 s62, 22, 0",
                f"s_sub_u32 s{sd}, s{sd}, s62"]

    def zbase(z, sd):
        return [f"s_add_u32 s{sd}, s{sRH}, {z}", f"s_and_b32 s{sd}, s{sd}, 3", f"s_mul_i32 s{sd}, s{sd}, 12288",
                f"s_add_u32 s{sd}, s{sd}, s{sZ}"]

    def dma_d(n, both=False):
        if "nowt" in OPT:
            return []
        pre = idx_of(n, 22) + ["s_lshl_b32 s22, s22, 14", f"v_add_u32 v{vtmp}, s22, v{vwd}"]
        if n < 8 or n >= 20:
            pre += [f"s_add_u32 s22, s{sG0}, {2048*(n%20)}"]
        else:
            pre += zbase((n - 8) // 3, 22) + [f"s_add_u32 s22, s22, {2048*((n-8)%3)}"]
        if both:
            return pre + ["s_mov_b32 m0, s22", "s_movk_i32 s22, 7168",
                          f"buffer_load_dwordx4 v{vtmp}, {S(SWD)}, 0 offen lds",
                          f"buffer_load_dwordx4 v{vtmp}, {S(SWD)}, s22 offen offset:1024 lds"]
        return pre + [f"s_add_u32 m0, s22, s{sTH}", f"buffer_load_dwordx4 v{vtmp}, {S(SWD)}, s30 offen lds"]

    def chunk(p, sd):
        return [f"s_add_u32 s{sd}, s{sRH}, {p >> 1}", f"s_and_b32 s{sd}, s{sd}, 3", f"s_lshl_b32 s{sd}, s{sd}, 1",
                f"s_add_u32 s{sd}, s{sd}, s{sRL}"] + ([f"s_xor_b32 s{sd}, s{sd}, 1"] if p & 1 else [])

    def act(p):
        pre = chunk(p, 31) + ["s_lshl_b32 s31, s31, 12", f"s_add_u32 s31, s31, s{sACT}"]
        o = []
        for kk in range(4):
            ins = f"buffer_load_dwordx4 {vr(X+16*p+4*kk,4)}, v{l16}, {S(WS)}, s31 offen offset:{1024*kk} sc1"
            o.append(pre + [ins] if not o else [ins])
        return o

    def act_retry(p):
        return [[y.replace("s31", "s33") for y in x] for x in act(p)]

    def wreads(n):
        o = []
        for c in range(3):
            x = [f"ds_read_b64_tr_b16 {vr(Fw[n%3]+4*c+2*e4,2)}, v{rwb if e4 else rwa} offset:{(n%4)*1536 + 32*c}" for e4 in range(2)]
            if c == 0 and n % 4 == 0:
                x = chunk(n // 4, 32) + ["s_mul_i32 s32, s32, 6144", f"v_add_u32 v{rwa}, s32, v{rw0}",
                                         f"v_add_u32 v{rwb}, v{rwa}, v{vln}"] + x
            o.append(x)
        return o

    A("s_waitcnt vmcnt(0)")
    V.q = []
    A("s_barrier")
    stamp(A, "Cdrain")
    if PRE[2]:
        A(f"s_sleep {PRE[2]}")
    A(f"s_cmp_lg_u32 s{sW}, 7")
    A("s_cbranch_scc1 L_nofc")
    A("s_lshl_b32 s60, s2, 7")
    A(f"s_add_u32 s60, s60, {OFF_FC}")
    emit(A, flag_store("s60"))
    A.label("L_nofc")
    A(f"s_cmp_lt_u32 s{sFT}, 29")
    A("s_cbranch_scc1 L_dgo")
    for n in range(8 if "bar0" in OPT else 17):
        emit(A, dma_d(n))
    A("s_waitcnt vmcnt(0)")
    A("s_branch L_dskip")
    A.label("L_dgo")
    allact = [(f"a{p}_{kk}", x) for p in range(8) for kk, x in enumerate(act(p))]
    A0 = int(E("A0", "4"))
    AHL = int(E("AHL", "12"))
    G0AT = int(E("G0AT", "8"))
    nis = 0

    def issue_act():
        nonlocal nis
        tag, x = allact[nis]
        V.do(tag, x)
        nis += 1
    for i in range(A0):
        issue_act()
        if i == 1:
            emit(A, wreads(0))
            emit(A, wreads(1))
    dq = []
    for n in range(32):
        p, kk = n // 4, n % 4
        assert nis > n
        V.wait(f"a{p}_{kk}")
        rl = act_retry(p)
        RT.check(f"pa{n}", rng(X + 4 * n, 4), t0, [rl[0][:-1]] + [rl[k][-1] for k in range(kk, 4) if 4 * p + k < nis])
        if kk == 0:
            stamp(A, f"a{p}")
        if n == G0AT:
            dq += list(range(8))
        if "bar0" in OPT:
            pass
        elif "bar1" in OPT:
            if n == 24:
                A("s_barrier")
                dq += list(range(8, 17))
        else:
            if n == 16:
                A("s_barrier")
                dq += list(range(8, 14))
            if n == 24:
                A("s_barrier")
                dq += list(range(14, 17))
        nx = wreads(n + 2) if n + 2 < 32 else [[], [], []]
        for c in range(3):
            younger = 2 * (2 - c) + (6 if n + 1 < 32 else 0) + (2 * c if n + 2 < 32 else 0)
            A(f"s_waitcnt lgkmcnt({younger})")
            a = acc + 16 * c
            A(f"{MF3} {vr(a,16)}, {vr(Fw[n%3]+4*c,4)}, {vr(X+4*n,4)}, {'0' if n == 0 else vr(a,16)}")
            emit(A, nx[c])
            if c < 2 and nis < 32 and nis <= n + AHL:
                issue_act()
            if (c == 2 or (c == 0 and len(dq) > 31 - n)) and dq:
                k = dq.pop(0)
                V.do(f"d{k}", dma_d(k))
    assert not dq
    V.wait("d1")
    A.label("L_dskip")
    stamp(A, "Dmain")
    A("s_barrier")
    stamp(A, "Dbar")
    RE = RA(hh_ + 1)
    hres = RE.get(4, 4)
    Fd = [RE.get(8, 4), RE.get(8, 4), RE.get(8, 4)]
    assert RE.hi <= acc
    Hf = X + 8
    ea = acc
    V.do("fl", f"buffer_load_dword v{vflv}, v{vfl}, {S(WS)}, 0 offen sc1")
    dq = list(range(8 if "bar0" in OPT else 17, 20))
    A_real = A

    class Spread:
        n = 0

        def __call__(self, x):
            if self.n % int(E("EPS", "12")) == 0 and dq:
                k = dq.pop(0)
                V.do(f"d{k}", dma_d(k))
            self.n += 1
            A_real(x)
    B = Spread()
    B(f"s_mov_b32 s60, {fhex(K1)}")
    B(f"v_mov_b32 v{t2}, {fhex(K0)}")
    q = X
    for c in range(3):
        gA = acc + c * 16
        uA = gA + 8
        for i in range(4):
            B(f"v_pk_mul_f32 {p2(q+2*i)}, {p2(gA+2*i)}, {p2(gA+2*i)}")
        for i in range(4):
            B(f"v_pk_fma_f32 {p2(q+2*i)}, {p2(q+2*i)}, s[60:61], {p2(t2)} op_sel_hi:[1,0,0]")
        for i in range(4):
            B(f"v_pk_mul_f32 {p2(q+2*i)}, {p2(q+2*i)}, {p2(gA+2*i)}")
        for i in range(4):
            B(f"v_exp_f32 v{q+2*i}, v{q+2*i}")
            B(f"v_exp_f32 v{q+2*i+1}, v{q+2*i+1}")
            B(f"v_pk_mul_f32 {p2(uA+2*i)}, {p2(uA+2*i)}, {p2(gA+2*i)}")
        for i in range(4):
            B(f"v_pk_add_f32 {p2(q+2*i)}, {p2(q+2*i)}, 1.0 op_sel_hi:[1,0]")
        for i in range(8):
            B(f"v_rcp_f32 v{q+i}, v{q+i}")
        if c:
            B(f"v_add_u32 v{voHH}, 65536, v{voHH}")
        for i in range(4):
            B(f"v_pk_mul_f32 {p2(q+2*i)}, {p2(q+2*i)}, {p2(uA+2*i)}")
        for i in range(4):
            B(f"v_cvt_pk_bf16_f32 v{gA+i}, v{q+2*i}, v{q+2*i+1}")
        for i in range(4):
            B(f"v_min_u32 v{gA+i}, -2, v{gA+i}")
        V.do("hhst", f"buffer_store_dwordx4 {vr(gA,4)}, v{voHH}, {S(SHH)}, 0 offen sc1")
    while dq:
        k = dq.pop(0)
        V.do(f"d{k}", dma_d(k))
    stamp(A, "Depi")

    def hload(n, va=None, sg=31):
        va = t3 if va is None else va
        return idx_of(n, sg) + [f"s_lshl_b32 s{sg}, s{sg}, 16", f"v_add_u32 v{va}, s{sg}, v{vh}",
                                f"buffer_load_dwordx4 {vr(Hf+4*n,4)}, v{va}, {S(SHH)}, s{sH0} offen sc1"]

    def dreads(n):
        if n < 8 or n >= 20:
            off, pre = 2048 * (n % 20), ([f"s_mov_b32 s32, s{sG0}"] if n in (0, 20) else None)
        else:
            off, pre = 2048 * ((n - 8) % 3), (zbase((n - 8) // 3, 32) if (n - 8) % 3 == 0 else None)
        o = []
        for ct in range(2):
            x = [f"ds_read_b64_tr_b16 {vr(Fd[n%3]+4*ct+2*e4,2)}, v{rd+ct} offset:{off + 1024*e4}" for e4 in range(2)]
            if pre and ct == 0:
                x = pre + [f"v_add_u32 v{rd}, s32, v{rd0}", f"v_xor_b32 v{rd+1}, 64, v{rd}"] + x
            o.append(x)
        return o

    emit(A, dreads(0))
    emit(A, dreads(1))
    A("s_waitcnt vmcnt(0) lgkmcnt(0)")
    V.q = []
    A(f"v_mov_b32 v{t2}, v{vflv}")
    poll_flags("fc", vfl, "0", first=False)
    A(f"s_cmp_lt_u32 s{sFT}, 29")
    A("s_cbranch_scc1 L_gate_ok")
    A("s_mov_b32 s35, 0")
    A.label("L_gate")
    A("s_sleep 8")
    A(f"buffer_load_dwordx4 {vr(Hf,4)}, v{vh}, {S(SHH)}, s{sH0} offen sc1")
    A("s_waitcnt vmcnt(0)")
    emit(A, maxtree(rng(Hf, 4), t0))
    A("s_add_u32 s35, s35, 1")
    A(f"s_cmp_gt_u32 s35, {SPIN}")
    A("s_cbranch_scc1 L_gate_ok")
    A("s_cbranch_vccnz L_gate")
    A.label("L_gate_ok")
    A("s_barrier")
    stamp(A, "Edrain")
    if PRE[3]:
        A(f"s_sleep {PRE[3]}")
    EA = int(E("EA", "8"))
    allh = [(f"h{n}", hload(n)) for n in range(22)]
    bgq = allh[:18] + [("dl", dma_d(20, True)), ("dl", dma_d(21, True))] + allh[18:] + \
        [("hres", f"buffer_load_dwordx4 {vr(hres,4)}, v{l16}, {S(WS)}, s{sHO} offen sc1")]
    for i in range(EA):
        tag, x = bgq.pop(0)
        V.do(tag, x)
    for n in range(22):
        pend = [y[0] for y in bgq]
        assert f"h{n}" not in pend
        V.wait(f"h{n}")
        RT.check(f"pe{n}", rng(Hf + 4 * n, 4), t0, [hload(k, t2, 33) for k in range(n, min(n + 3, 22)) if f"h{k}" not in pend])
        if n % 2 == 0:
            stamp(A, f"e{n//2}")
        if n == 18:
            V.wait("dl")
        if n == 10:
            A("s_barrier")
        nx = dreads(n + 2) if n + 2 < 22 else [[], []]
        for ct in range(2):
            younger = 2 * (1 - ct) + (4 if n + 1 < 22 else 0) + (2 * ct if n + 2 < 22 else 0)
            A(f"s_waitcnt lgkmcnt({younger})")
            a = ea + 16 * ct
            A(f"{MF3} {vr(a,16)}, {vr(Fd[n%3]+4*ct,4)}, {vr(Hf+4*n,4)}, {'0' if n == 0 else vr(a,16)}")
            emit(A, nx[ct])
            if bgq and (ct == 0 or n < int(E("E2", "0"))):
                tag, x = bgq.pop(0)
                V.do(tag, x)
    assert not bgq
    V.wait("hres")
    stamp(A, "Emain")
    own = Hf
    hf = Hf + 8
    red = Hf + 16
    A(f"s_and_b32 s60, s{sW}, 3")
    for kq in range(4):
        if kq < 3:
            A(f"s_cmp_lg_u32 s60, {kq}")
            A(f"s_cbranch_scc1 L_rv{kq+1}")
        for o in range(4):
            a = ea + 8 * o
            if o != kq:
                for u in range(2):
                    A(f"ds_write_b128 v{lrw}, {vr(a+4*u,4)} offset:{o*16384 + ((kq-o-1)&3)*4096 + u*1024}")
        a = ea + 8 * kq
        for k in range(4):
            A(f"v_pk_mov_b32 {p2(own+2*k)}, {p2(a+2*k)}, {p2(a+2*k)} op_sel:[0,1]")
        emit(A, unpack_l(hf, hres))
        A("s_waitcnt lgkmcnt(0)")
        A("s_barrier")
        for k in range(6):
            A(f"ds_read_b128 {vr(red+4*k,4)}, v{lrw} offset:{kq*16384 + (k//2)*4096 + (k%2)*1024}")
        if kq < 3:
            A("s_branch L_rvd")
            A.label(f"L_rv{kq+1}")
    A.label("L_rvd")
    for sl in range(3):
        A(f"s_waitcnt lgkmcnt({2*(2-sl)})")
        for k in range(4):
            A(f"v_pk_add_f32 {p2(own+2*k)}, {p2(own+2*k)}, {p2(red+8*sl+2*k)}")
    o = red
    for k in range(4):
        A(f"v_cvt_pk_bf16_f32 v{o+k}, v{own+2*k}, v{own+2*k+1}")
    emit(A, unpack_l(own, o))
    for k in range(4):
        A(f"v_pk_add_f32 {p2(own+2*k)}, {p2(own+2*k)}, {p2(hf+2*k)}")
    for k in range(4):
        A(f"v_cvt_pk_bf16_f32 v{o+k}, v{own+2*k}, v{own+2*k+1}")
    A(f"buffer_store_dwordx4 {vr(o,4)}, v{vo}, {S(SOUT)}, s{sOO} offen{E('OUTF', '')}")
    stamp(A, "Eout")
    if E("DBGST"):
        A("s_load_dwordx2 s[34:35], s[0:1], 64")
        A("s_waitcnt vmcnt(0) lgkmcnt(0)")
        A("s_memrealtime s[94:95]")
        A("s_memtime s[96:97]")
        A("s_waitcnt lgkmcnt(0)")
        A(f"s_cmp_lg_u32 s2, {E('DBGST')}")
        A("s_cbranch_scc1 L_end")
        A(f"s_cmp_lg_u32 s{sW}, 0")
        A("s_cbranch_scc1 L_end")
        srd(A, 28, 34, 256)
        A(f"v_mov_b32 v{t0}, 0")
        A("s_mov_b64 exec, 1")
        for i in range(16):
            A("s_sub_u32 s100, s96, s98" if i == 0 else f"s_sub_u32 s100, s{64+2*i}, s64")
            A(f"v_mov_b32 v{t1}, s100")
            A(f"buffer_store_dword v{t1}, v{t0}, s[28:31], 0 offen offset:{4*i}")
        A("s_waitcnt vmcnt(0)")
    elif STAMPS:
        A("s_load_dwordx2 s[34:35], s[0:1], 72")
        A("s_waitcnt vmcnt(0) lgkmcnt(0)")
        A("s_memrealtime s[94:95]")
        A("s_waitcnt lgkmcnt(0)")
        srd(A, 96, 34, 16 * MB, 32 * MB)
        A(f"v_and_b32 v{t0}, 0x1c0, v0")
        A("s_lshl_b32 s100, s2, 9")
        A("s_mov_b64 exec, 1")
        for i in range(16):
            A(f"v_mov_b32 v{t1}, s{64+2*i}")
            A(f"buffer_store_dword v{t1}, v{t0}, s[96:99], s100 offen offset:{4*i}")
        A("s_waitcnt vmcnt(0)")
    A.label("L_end")
    A("s_endpgm")
    RT.flush()
    A.label("L_codeend")
    return name, A.finalize(), 256, (256, 512, 163840), 0


def build_s(as_list=False):
    name, body, nv, (gx, bx, lds), ag = gen_S()
    out = HEADER
    if STAMPS:
        out += "; STAMPSET " + ",".join(STAMPSET) + "\n"
    if as_list:
        out += f"; @launch kernel={name} grid=({gx},1,1) block=({bx},1,1) lds={lds}\n"
    else:
        out += f"; @launch grid=({gx},1,1) block=({bx},1,1) lds={lds}\n"
    out += '.amdgcn_target "amdgcn-amd-amdhsa--gfx950"\n' + body + kernel_desc(name, nv, agprs=ag)
    return out


if __name__ == "__main__":
    path = sys.argv[1] if len(sys.argv) > 1 else f"cdna_kernels/{NAME}.s"
    s = build_s(as_list=len(sys.argv) > 2)
    open(path, "w").write(s)
    print("lines", s.count("\n"))
```
